```python
import torch

def _softmax(x, axis=-1):
    return torch.softmax(x, dim=axis)
def _gelu(x):
    return torch.nn.functional.gelu(x, approximate="tanh")
def _silu(x):
    return torch.nn.functional.silu(x)
def _sigmoid(x):
    return torch.sigmoid(x)
def _layernorm(x, axis=-1, eps=1e-5):
    m = x.mean(dim=axis, keepdim=True)
    v = x.var(dim=axis, keepdim=True, unbiased=False)
    return (x - m) / torch.sqrt(v + eps)
def _scatter_add(tgt, idx, src, axis=0):
    return tgt.clone().index_add_(axis, idx, src)
def _segment_sum(src, seg, n):
    out = torch.zeros((n,) + src.shape[1:], dtype=src.dtype)
    return out.index_add_(0, seg, src)
def _pad(x, pw):
    flat = tuple(v for pair in reversed(pw) for v in pair)
    return torch.nn.functional.pad(x, flat)

kernel_name = 'recurrent_scan__ssm_conv_s5__mixer_s_mlp__prompt'

def setup_inputs():

    _w = (lambda a: (lambda t: t.to(torch.bfloat16) if t.is_floating_point() else t)(torch.as_tensor(a)))
    def _A_setup():
        B, S, D = 1, 2048, 512
        P = D
        Lambda_re = -0.5 * (lambda _x: torch.exp(torch.as_tensor(_x)))((lambda *s: torch.randn(*s, dtype=torch.bfloat16) * 0.2)(P))
        Lambda_im = (lambda *s: torch.randn(*s, dtype=torch.bfloat16) * 0.4)(P) * 1.0
        B_re = (lambda *s: torch.randn(*s, dtype=torch.bfloat16) * 0.2)(P, D) * (D ** -0.5)
        B_im = (lambda *s: torch.randn(*s, dtype=torch.bfloat16) * 0.2)(P, D) * (D ** -0.5)
        C_re = (lambda *s: torch.randn(*s, dtype=torch.bfloat16) * 0.2)(D, P) * (P ** -0.5)
        C_im = (lambda *s: torch.randn(*s, dtype=torch.bfloat16) * 0.2)(D, P) * (P ** -0.5)
        log_dt = (lambda *s: torch.randn(*s, dtype=torch.bfloat16) * 0.2)(P) * 0.3 - 2.0
        Dskip = (lambda *s: torch.randn(*s, dtype=torch.bfloat16) * 0.05)(D)
        return {
            "x": _w((lambda *s: torch.randn(*s, dtype=torch.bfloat16) * 0.05)(B, S, D)),
            "Lambda_re": _w(Lambda_re),
            "Lambda_im": _w(Lambda_im),
            "B_re": _w(B_re),
            "B_im": _w(B_im),
            "C_re": _w(C_re),
            "C_im": _w(C_im),
            "log_dt": _w(log_dt),
            "Dskip": _w(Dskip),
        }
    _A_in = _A_setup()

    def _B_setup():
        B, S, D, F = 1, 2048, 512, 1792
        return {
            "x":  _w((lambda *s: torch.randn(*s, dtype=torch.bfloat16) * 0.05)(B, S, D)),
            "w1": _w((lambda *s: torch.randn(*s, dtype=torch.bfloat16) * 3.2)(D, D) * (D ** -0.5)),
            "w2": _w((lambda *s: torch.randn(*s, dtype=torch.bfloat16) * 3.2)(D, D) * (D ** -0.5)),
            "w3": _w((lambda *s: torch.randn(*s, dtype=torch.bfloat16) * 3.2)(D, F) * (D ** -0.5)),
            "w4": _w((lambda *s: torch.randn(*s, dtype=torch.bfloat16) * 3.2)(F, D) * (F ** -0.5)),
        }
    _B_in = _B_setup()

    return {
        "A_x": _A_in["x"],
        "A_Lambda_re": _A_in["Lambda_re"],
        "A_Lambda_im": _A_in["Lambda_im"],
        "A_B_re": _A_in["B_re"],
        "A_B_im": _A_in["B_im"],
        "A_C_re": _A_in["C_re"],
        "A_C_im": _A_in["C_im"],
        "A_log_dt": _A_in["log_dt"],
        "A_Dskip": _A_in["Dskip"],
        "B_x": _B_in["x"],
        "B_w1": _B_in["w1"],
        "B_w2": _B_in["w2"],
        "B_w3": _B_in["w3"],
        "B_w4": _B_in["w4"],
    }

def reference(A_x, A_Lambda_re, A_Lambda_im, A_B_re, A_B_im, A_C_re, A_C_im, A_log_dt, A_Dskip, B_x, B_w1, B_w2, B_w3, B_w4):
    def _A_ref(x, Lambda_re, Lambda_im, B_re, B_im, C_re, C_im, log_dt, Dskip):
        Bsz, L, H = x.shape
        Lam = Lambda_re + 1j * Lambda_im
        Bmat = B_re + 1j * B_im
        Cmat = C_re + 1j * C_im
        dt = torch.exp(log_dt)
        Lam_bar = torch.exp(dt * Lam)
        B_bar = ((Lam_bar - 1.0) / Lam)[:, None] * Bmat
        Bu = torch.einsum("bld,pd->blp", x + 0j, B_bar)
        h = torch.zeros_like(Bu[:, 0, :])
        hs = []
        for t in range(L):
            h = Lam_bar[None, :] * h + Bu[:, t, :]
            hs.append(h)
        hseq = torch.stack(hs, 1)
        y = 2.0 * torch.einsum("blp,dp->bld", hseq, Cmat).real + x * Dskip[None, None, :]
        return y

    def _B_ref(x, w1, w2, w3, w4):
        B, S, D = x.shape
        h = _gelu(_layernorm(x, axis=-1) @ w1)
        c = D // 4
        g0 = _pad(h[:, :, 0*c:1*c], ((0, 0), (1, 0), (0, 0)))[:, :S, :]
        g1 = _pad(h[:, :, 1*c:2*c], ((0, 0), (0, 1), (0, 0)))[:, 1:, :]
        g2 = _pad(h[:, :, 2*c:3*c], ((0, 0), (2, 0), (0, 0)))[:, :S, :]
        g3 = _pad(h[:, :, 3*c:   ], ((0, 0), (0, 2), (0, 0)))[:, 2:, :]
        hs = torch.concatenate([g0, g1, g2, g3], axis=-1) @ w2
        x1 = x + hs
        h2 = _gelu(_layernorm(x1, axis=-1) @ w3) @ w4
        return x1 + h2

    x = A_x
    xn = _layernorm(x, axis=-1)
    s = _A_ref(xn, A_Lambda_re, A_Lambda_im, A_B_re, A_B_im, A_C_re, A_C_im, A_log_dt, A_Dskip)
    g = _silu(_B_ref(xn, B_w1, B_w2, B_w3, B_w4))
    return x + s * g
```

```python
import re

TRANS = ('v_exp_f32', 'v_log_f32', 'v_rcp_f32', 'v_rsq_f32', 'v_sqrt_f32', 'v_sin_f32', 'v_cos_f32', 'v_rcp_iflag_f32')
REG_RE = re.compile(r'(?<![\w.])(-?\|?|abs\()?([vas])(?:(\d+)|\[(\d+):(\d+)\])(?![\w])')


def regs_of(op):
    op = op.strip()
    out = []
    if op in ('vcc',):
        return [('s', 106), ('s', 107)]
    if op == 'vcc_lo':
        return [('s', 106)]
    if op == 'vcc_hi':
        return [('s', 107)]
    if op == 'exec':
        return [('x', 0)]
    if op == 'm0':
        return [('m', 0)]
    for m in REG_RE.finditer(op):
        k = m.group(2)
        if m.group(3) is not None:
            out.append((k, int(m.group(3))))
        else:
            out += [(k, i) for i in range(int(m.group(4)), int(m.group(5)) + 1)]
    return out


def split_ops(s):
    ops, depth, cur = [], 0, ''
    for ch in s:
        if ch in '[(':
            depth += 1
        if ch in '])':
            depth -= 1
        if ch == ',' and depth == 0:
            ops.append(cur.strip()); cur = ''
        else:
            cur += ch
    if cur.strip():
        ops.append(cur.strip())
    return ops


class Ins:
    __slots__ = ('text', 'op', 'cls', 'dst', 'src', 'srcc', 'passes', 'wide', 'lds', 'tag', 'dpp')


def parse(text):
    t = text.strip()
    tag = None
    if '#' in t:
        t, tag = t.split('#', 1)
        t = t.strip(); tag = tag.strip()
    sp = t.split(None, 1)
    op = sp[0]
    rest = sp[1] if len(sp) > 1 else ''
    ops = split_ops(rest)
    mods = ''
    if ops:
        last = ops[-1]
        depth = 0; cut = None
        for i, ch in enumerate(last):
            if ch in '[(':
                depth += 1
            if ch in '])':
                depth -= 1
            if ch == ' ' and depth == 0:
                cut = i; break
        if cut is not None:
            mods = last[cut:]; ops[-1] = last[:cut]
    I = Ins(); I.text = t; I.op = op; I.tag = tag; I.srcc = []; I.passes = 0; I.wide = False; I.lds = False
    I.dpp = ('row_' in mods or 'quad_perm' in mods or 'wave_' in mods)
    R = [regs_of(o) for o in ops]
    flat = lambda L: [r for x in L for r in x]
    base = op.replace('_e32', '').replace('_e64', '').replace('_dpp', '')
    if base.startswith('v_mfma'):
        I.cls = 'mfma'; I.dst = R[0]; I.src = R[1] + R[2]; I.srcc = R[3]
        I.passes = 8 if '32x32' in base else 4
    elif base.startswith('v_'):
        I.cls = 'trans' if base in TRANS else 'valu'
        if base.startswith('v_permlane') and 'swap' in base:
            I.cls = 'perm'; I.dst = R[0] + R[1]; I.src = R[0] + R[1]
        elif base.startswith('v_cmp'):
            I.dst = R[0]; I.src = flat(R[1:])
        elif base in ('v_add_co_u32', 'v_sub_co_u32', 'v_addc_co_u32', 'v_subb_co_u32', 'v_mad_u64_u32', 'v_div_scale_f32'):
            I.dst = R[0] + R[1]; I.src = flat(R[2:])
        elif base in ('v_fmac_f32', 'v_pk_fmac_f16', 'v_dot2c_f32_bf16', 'v_writelane_b32'):
            I.dst = R[0]; I.src = flat(R)
        elif base in ('v_readlane_b32', 'v_readfirstlane_b32'):
            I.cls = 'rdlane'; I.dst = R[0]; I.src = flat(R[1:])
        else:
            I.dst = R[0]; I.src = flat(R[1:])
            if base == 'v_cndmask_b32' and len(ops) == 3:
                I.src = I.src + [('s', 106), ('s', 107)]
            if I.dpp:
                I.src = I.src + R[0]
    elif base.startswith('ds_'):
        I.cls = 'ds'
        if base.startswith('ds_read') or base.startswith('ds_bpermute') or base.startswith('ds_permute') or base.startswith('ds_swizzle'):
            I.dst = R[0]; I.src = flat(R[1:])
        else:
            I.dst = []; I.src = flat(R)
    elif base.startswith('buffer_') or base.startswith('global_'):
        I.cls = 'vmem'
        I.lds = (' lds' in (mods + ' ')) and re.search(r'\blds\b', mods) is not None or '_lds_' in base
        if 'load' in base and not I.lds:
            I.dst = R[0]; I.src = flat(R[1:])
        elif 'atomic' in base and 'sc0' in mods:
            I.dst = R[0]; I.src = flat(R)
        else:
            I.dst = []; I.src = flat(R)
            if I.lds:
                I.src = I.src + [('m', 0)]
            if 'store' in base and ('x4' in base or 'x3' in base):
                I.wide = R[0] if base.startswith('buffer_') else R[1]
    elif base.startswith('s_load') or base in ('s_memtime', 's_memrealtime'):
        I.cls = 'smem'; I.dst = R[0]; I.src = flat(R[1:])
    elif base in ('s_waitcnt', 's_nop', 's_barrier', 's_endpgm', 's_branch', 's_setprio', 's_sleep') or base.startswith('s_cbranch'):
        I.cls = 'ctl'; I.dst = []; I.src = []
        if 'vcc' in base:
            I.src = [('s', 106), ('s', 107)]
    elif base.startswith('s_cmp') or base.startswith('s_bitcmp'):
        I.cls = 'salu'; I.dst = []; I.src = flat(R)
    elif base.startswith('s_'):
        I.cls = 'salu'; I.dst = R[0] if R else []; I.src = flat(R[1:])
        if 'saveexec' in base:
            I.dst = I.dst + [('x', 0)]
        if base in ('s_addk_i32', 's_mulk_i32'):
            I.src = I.src + R[0]
    else:
        raise ValueError('cannot parse ' + text)
    return I


class Reg:
    def __init__(self, kind, base, n, name=''):
        self.k = kind; self.b = base; self.n = n; self.name = name

    def __getitem__(self, i):
        if isinstance(i, slice):
            a = i.start or 0
            e = i.stop if i.stop is not None else self.n
            assert 0 <= a < e <= self.n, (self.name, a, e, self.n)
            if e - a == 1:
                return f'{self.k}{self.b + a}'
            return f'{self.k}[{self.b + a}:{self.b + e - 1}]'
        assert 0 <= i < self.n, (self.name, i, self.n)
        return f'{self.k}{self.b + i}'

    def t(self, i, n):
        return self[i:i + n]

    def sub(self, i, n):
        assert i + n <= self.n
        return Reg(self.k, self.b + i, n, self.name + f'+{i}')

    def __str__(self):
        return self[0:self.n]


class Pool:
    def __init__(self, kind, lo, hi):
        self.live = {}; self.k = kind; self.free = [True] * hi; self.lo = lo; self.hi = hi; self.peak = 0
        for i in range(lo):
            self.free[i] = False

    def alloc(self, n, align=1, name='', top=None):
        rng = range(0, self.hi - n + 1, align)
        if top is None:
            top = (self.k == 'v' and n >= 16)
        if top:
            rng = reversed(rng)
        for b in rng:
            if all(self.free[b:b + n]):
                for i in range(b, b + n):
                    self.free[i] = False
                self.peak = max(self.peak, b + n)
                self.live[b] = (n, name)
                return Reg(self.k, b, n, name)
        print(sorted((b, v) for b, v in self.live.items() if not self.free[b]))
        raise RuntimeError(f'out of {self.k} regs for {name} n={n}; free={sum(self.free)}')

    def at(self, b, n, name=''):
        assert all(self.free[b:b + n]), (name, b, n)
        for i in range(b, b + n):
            self.free[i] = False
        self.peak = max(self.peak, b + n)
        return Reg(self.k, b, n, name)

    def release(self, *rs):
        for r in rs:
            for i in range(r.b, r.b + r.n):
                assert not self.free[i], ('double free', r.name)
                self.free[i] = True

    def nfree(self):
        return sum(self.free)


class Asm:
    def __init__(self):
        self.lines = []
        self.pos = 0
        self.lastw = {}
        self.lastc = {}
        self.lastst = {}
        self.vm = []
        self.lg = []
        self.sm = set()
        self.smn = 0
        self.V = Pool('v', 1, 256)
        self.A = Pool('a', 0, 256)
        self.S = Pool('s', 3, 102)
        self.nlab = 0
        self.tail = []
        self.stat = {}

    def raw(self, text):
        self.lines.append(text)

    def label(self, name):
        self.lines.append(name + ':')

    def newlabel(self, p='L'):
        self.nlab += 1
        return f'{p}_{self.nlab}'

    def _emit(self, text, n=1):
        self.lines.append('  ' + text)
        self.pos += n

    def nop(self, n):
        while n > 0:
            k = min(n, 16)
            self._emit(f's_nop {k - 1}', k)
            n -= k

    def waitcnt(self, vm=None, lg=None):
        parts = []
        if vm is not None and len(self.vm) > vm:
            if vm <= 63:
                parts.append(f'vmcnt({vm})')
            self.vm = self.vm[len(self.vm) - vm:] if vm > 0 else []
        if lg is not None and (len(self.lg) > lg or self.smn):
            if self.smn:
                lg = 0
            if lg <= 15:
                parts.append(f'lgkmcnt({lg})')
            self.lg = self.lg[len(self.lg) - lg:] if lg > 0 else []
            if lg == 0:
                self.sm = set(); self.smn = 0
        if parts:
            self._emit('s_waitcnt ' + ' '.join(parts))

    def wait_vm_tag(self, tag):
        idx = [i for i, (r, t) in enumerate(self.vm) if t == tag]
        if idx:
            self.waitcnt(vm=len(self.vm) - 1 - idx[-1])

    def wait_lg_tag(self, tag):
        idx = [i for i, (r, t) in enumerate(self.lg) if t == tag]
        if idx:
            self.waitcnt(lg=len(self.lg) - 1 - idx[-1])

    def barrier(self):
        self.waitcnt(lg=0)
        self._emit('s_barrier')

    def fence(self, n=13):
        self.nop(n)
        self.lastw = {}; self.lastc = {}; self.lastst = {}

    def I(self, text):
        for t in text.split('\n'):
            t = t.strip()
            if not t or t.startswith(';'):
                continue
            if t.endswith(':'):
                self.lines.append(t); continue
            if t.startswith('@'):
                self.directive(t); continue
            self._one(parse(t))

    def directive(self, t):
        p = t[1:].split()
        if p[0] == 'barrier':
            self.barrier()
        elif p[0] == 'waitvm':
            self.wait_vm_tag(p[1])
        elif p[0] == 'waitlg':
            self.wait_lg_tag(p[1])
        elif p[0] == 'vm0':
            self.waitcnt(vm=0)
        elif p[0] == 'lg0':
            self.waitcnt(lg=0)
        elif p[0] == 'call':
            self.calls[p[1]](self)
        else:
            raise ValueError(t)

    def emit_all(self, L):
        for t in L:
            if callable(t):
                t(self)
            else:
                self.I(t)

    def _one(self, I):
        touched = set(I.src) | set(I.dst) | set(I.srcc)
        needvm = None
        for i, (r, t) in enumerate(self.vm):
            if r & touched:
                needvm = len(self.vm) - 1 - i
        needlg = None
        for i, (r, t) in enumerate(self.lg):
            if r & touched:
                if I.cls == 'ds' and not (r & set(I.src)):
                    continue
                needlg = len(self.lg) - 1 - i
        if self.sm & touched:
            needlg = 0
        if needvm is not None or needlg is not None:
            self.waitcnt(vm=needvm, lg=needlg)
        need = 0
        isv = I.cls in ('valu', 'trans', 'perm', 'rdlane')

        def req(p, n):
            nonlocal need
            need = max(need, p + n + 1)
        for r in set(I.src) | set(I.srcc):
            w = self.lastw.get(r)
            if not w:
                continue
            cls, p, passes, key = w
            wv = cls in ('valu', 'trans', 'perm', 'rdlane')
            if cls == 'mfma':
                if I.cls == 'mfma' and r in I.srcc and r not in I.src:
                    if key == (tuple(I.srcc), I.passes):
                        pass
                    else:
                        req(p, 10 if passes == 8 else 6)
                else:
                    req(p, 12 if passes == 8 else 8)
            elif wv and r[0] in 'va':
                if I.cls == 'mfma':
                    req(p, 2)
                elif I.cls == 'perm' or I.dpp:
                    req(p, 2)
                elif I.cls == 'rdlane':
                    req(p, 1)
                elif cls == 'trans' and I.cls != 'trans':
                    req(p, 1)
            elif wv and r[0] == 's':
                if isv:
                    req(p, 4 if I.cls == 'rdlane' else 2)
                elif I.cls == 'vmem':
                    req(p, 5)
                else:
                    req(p, 2)
            elif cls == 'salu' and r[0] == 'm':
                req(p, 1)
        for r in I.dst:
            w = self.lastw.get(r)
            if w and w[0] == 'mfma':
                cls, p, passes, key = w
                if I.cls == 'mfma' and key == (tuple(I.dst), I.passes):
                    pass
                else:
                    req(p, 12 if passes == 8 else 8)
            c = self.lastc.get(r)
            if c and I.cls != 'mfma':
                req(c[0], 7 if c[1] == 8 else 3)
            s = self.lastst.get(r)
            if s is not None:
                req(s, 2)
        if need > self.pos:
            self.nop(need - self.pos)
        p = self.pos
        n = 1
        if I.op == 's_nop':
            n = int(I.text.split()[1], 0) + 1
        self._emit(I.text, n)
        self.stat[I.cls] = self.stat.get(I.cls, 0) + 1
        for r in I.dst:
            self.lastw[r] = (I.cls, p, I.passes, (tuple(I.dst), I.passes))
        if I.cls == 'mfma':
            for r in I.srcc:
                self.lastc[r] = (p, I.passes)
        if I.wide:
            for r in I.wide:
                self.lastst[r] = p
        if I.cls == 'vmem':
            self.vm.append((set(I.dst), I.tag))
            assert len(self.vm) <= 200
        elif I.cls == 'ds':
            self.lg.append((set(I.dst), I.tag))
        elif I.cls == 'smem':
            self.sm |= set(I.dst); self.smn += 1
        elif I.op == 's_waitcnt':
            m = re.search(r'vmcnt\((\d+)\)', I.text)
            if m:
                k = int(m.group(1)); self.vm = self.vm[len(self.vm) - k:] if k and len(self.vm) > k else (self.vm if k else [])
            m = re.search(r'lgkmcnt\((\d+)\)', I.text)
            if m:
                k = int(m.group(1)); self.lg = self.lg[len(self.lg) - k:] if k and len(self.lg) > k else (self.lg if k else [])
                if k == 0:
                    self.sm = set(); self.smn = 0

    def text(self):
        return '\n'.join(self.lines + self.tail) + '\n'


def merge(main, fill, every=1, per=1, start=0):
    out = []
    fi = 0
    k = 0
    for t in main:
        out.append(t)
        if isinstance(t, str) and t.lstrip().startswith('v_mfma'):
            k += 1
            if k > start and (k - start) % every == 0:
                for _ in range(per):
                    if fi < len(fill):
                        out.append(fill[fi]); fi += 1
    out += fill[fi:]
    return out
```

```python
import sys, struct, math
sys.path.insert(0, 'work')
from asmb import *

KNAME = 'recurrent_scan__ssm_conv_s5__mixer_s_mlp__prompt_kernel'
HDR = open('recurrent_scan__ssm_conv_s5__mixer_s_mlp__prompt.s.ref').read().split('; @launch')[0]

def f2u(x):
    return struct.unpack('<I', struct.pack('<f', x))[0]
def hx(x):
    return '0x%08x' % f2u(x)

TS = 0x120000
O_XN, O_H1, O_X1, O_HS, O_H = 0x0, 0x20000, 0x40000, 0x60000, 0xA0000
O_ST2, O_ST3, O_FLG, O_IDS = 0x110000, 0x111000, 0x118000, 0x119000
O_SCAN = 0x1400000
O_DBG = 0x1800000
L_BB, BROW = 0, 1040
L_W1 = 66560
L_MISC = 99328
L_STX = L_MISC
L_TAG = L_MISC + 1024
L_HALO = L_MISC + 1280
L_HRED = L_MISC + 5376
L_STG = 114688
STGW = 12288
L_W3 = 0
LDS_BYTES = 163840
SPIN = 20000

LOG2E = 1.4426950408889634
GC0 = -2.0 * math.sqrt(2.0 / math.pi) * LOG2E
GC1 = GC0 * 0.044715


def gen(opts=None):
    o = dict(stamps=False, stop=None)
    o.update(opts or {})
    k = Asm()
    I = k.I
    V, A, S = k.V, k.A, k.S
    k.raw(HDR.rstrip('\n'))
    k.raw(f'; @launch grid=(256,1,1) block=(256,1,1) lds={LDS_BYTES}')
    k.raw('.amdgcn_target "amdgcn-amd-amdhsa--gfx950"\n.text\n.globl %s\n.p2align 12\n.type %s,@function\n%s:' % (KNAME, KNAME, KNAME))

    KA = S.at(16, 16, 'ka0'); KB = S.at(32, 16, 'ka1'); KW = S.at(48, 2, 'kaws')
    names = ['X', 'BRE', 'BIM', 'CRE', 'CIM', 'W1', 'W2', 'W3', 'W4', 'OUT', 'DBG', 'WS']
    SRD = {n: S.at(52 + 4 * i, 4, n) for i, n in enumerate(names)}
    sT, sJ, sW, sTB, sTAG, sSLOW = [S.alloc(1, name=n) for n in ('T', 'J', 'W', 'TB', 'TAG', 'SLOW')]
    sA, sB, sC, sD = [S.alloc(1, name=f'tmp{i}') for i in range(4)]
    sXCC = S.alloc(1, name='xcc')
    sM = S.at(50, 2, 'mask')

    nstamp = [0]
    STP = None

    def stamp(name):
        if o['stamps']:
            i = nstamp[0]; nstamp[0] += 1
            if i:
                I(f'v_writelane_b32 {vSTP}, {STP[2 * ((i - 1) & 1)]}, {i - 1}')
            I(f's_memtime {STP.t(2 * (i & 1), 2)}')
            k.stampnames.append(name)
    k.stampnames = []

    I('s_cmp_ge_u32 s2, 256')
    I('s_cbranch_scc1 L_end')
    I(f's_load_dwordx16 {KA}, s[0:1], 0')
    I(f's_load_dwordx16 {KB}, s[0:1], 64')
    I(f's_load_dwordx2 {KW}, s[0:1], 128')
    I(f's_getreg_b32 {sXCC}, hwreg(HW_REG_XCC_ID)')
    I(f's_and_b32 {sXCC}, {sXCC}, 15')
    vL = V.alloc(1, name='lane'); vt0 = V.alloc(1); vt1 = V.alloc(1); vt2 = V.alloc(1); vt3 = V.alloc(1)
    I(f'v_and_b32 {vL}, 63, v0')
    I(f'v_lshrrev_b32 {vt0}, 6, v0')
    I(f'v_readfirstlane_b32 {sW}, {vt0}')
    I(f's_and_b32 {sT}, s2, 7\ns_lshl_b32 {sT}, {sT}, 1\ns_lshr_b32 {sA}, s2, 7\ns_add_u32 {sT}, {sT}, {sA}')
    I(f's_lshr_b32 {sJ}, s2, 3\ns_and_b32 {sJ}, {sJ}, 15')
    I(f's_mul_i32 {sTB}, {sT}, {TS}')
    vP8 = V.alloc(1, name='p8'); vQ8 = V.alloc(1, name='q8'); vL31 = V.alloc(1, name='l31'); vH = V.alloc(1, name='h')
    vL16 = V.alloc(1, name='lane*16')
    I(f'v_and_b32 {vP8}, 7, {vL}\nv_lshrrev_b32 {vQ8}, 3, {vL}\nv_and_b32 {vL31}, 31, {vL}\nv_lshrrev_b32 {vH}, 5, {vL}\nv_lshlrev_b32 {vL16}, 4, {vL}')
    vXo = V.alloc(1); vHo = V.alloc(1)
    I(f'v_lshrrev_b32 {vt0}, 2, {vP8}\nv_lshlrev_b32 {vt0}, 4, {vt0}\nv_and_b32 {vt1}, 3, {vP8}\nv_add_u32 {vt0}, {vt0}, {vt1}\nv_lshlrev_b32 {vt0}, 10, {vt0}')
    I(f'v_lshl_add_u32 {vXo}, {vQ8}, 4, {vt0}')
    I(f'v_and_b32 {vt1}, 1, {vP8}\nv_lshlrev_b32 {vt1}, 10, {vt1}\nv_lshl_add_u32 {vHo}, {vQ8}, 4, {vt1}')
    I(f's_lshl_b32 {sA}, {sT}, 7\ns_lshr_b32 {sB}, {sJ}, 2\ns_lshl_b32 {sB}, {sB}, 5\ns_add_u32 {sA}, {sA}, {sB}\ns_and_b32 {sB}, {sJ}, 3\ns_lshl_b32 {sB}, {sB}, 2\ns_add_u32 {sA}, {sA}, {sB}\ns_lshl_b32 {sA}, {sA}, 10\ns_lshl_b32 {sB}, {sW}, 8\ns_add_u32 {sA}, {sA}, {sB}')
    I(f's_bitcmp1_b32 {sJ}, 2\ns_cselect_b32 {sC}, 128, -2\ns_lshl_b32 {sD}, {sT}, 7\ns_add_u32 {sC}, {sC}, {sD}\ns_lshl_b32 {sC}, {sC}, 10\ns_add_u32 {sC}, {sC}, {sB}')

    def srd(name, lo, size):
        r = SRD[name]
        I(f's_mov_b32 {r[0]}, {lo[0]}\ns_and_b32 {r[1]}, {lo[1]}, 0xffff\ns_mov_b32 {r[2]}, {size}\ns_mov_b32 {r[3]}, 0x20000')
    srd('X', KA.sub(0, 2), 0x200000)
    XP = V.alloc(8, 4, 'xp'); HP = V.alloc(8, 4, 'hp')
    I(f'buffer_load_dwordx4 {XP.t(0,4)}, {vXo}, {SRD["X"]}, {sA} offen')
    I(f'buffer_load_dwordx4 {XP.t(4,4)}, {vXo}, {SRD["X"]}, {sA} offen offset:128')
    I(f'buffer_load_dwordx4 {HP.t(0,4)}, {vHo}, {SRD["X"]}, {sC} offen')
    I(f'buffer_load_dwordx4 {HP.t(4,4)}, {vHo}, {SRD["X"]}, {sC} offen offset:128')
    V.release(vXo, vHo)
    srd('DBG', KB.sub(14, 2), 256)
    srd('WS', KW, 0x10000000)
    srd('BRE', KA.sub(6, 2), 0x80000); srd('BIM', KA.sub(8, 2), 0x80000)
    srd('W1', KB.sub(4, 2), 0x80000); srd('W2', KB.sub(6, 2), 0x80000)
    srd('CRE', KA.sub(10, 2), 0x80000); srd('CIM', KA.sub(12, 2), 0x80000)
    srd('W3', KB.sub(8, 2), 1835008); srd('W4', KB.sub(10, 2), 1835008)
    srd('OUT', KB.sub(12, 2), 0x400000)
    WS = SRD['WS']
    S.release(KA.sub(6, 8), KB.sub(2, 14), KW)
    vLre = V.alloc(1); vLim = V.alloc(1); vLdt = V.alloc(1)
    I(f's_lshl_b32 {sA}, {sJ}, 6\nv_lshl_add_u32 {vt0}, {vL31}, 1, {sA}')
    I(f'global_load_ushort {vLre}, {vt0}, {KA.t(2,2)}\nglobal_load_ushort {vLim}, {vt0}, {KA.t(4,2)}\nglobal_load_ushort {vLdt}, {vt0}, {KA.t(14,2)}')
    sTH, sCG, sN32, sT32 = [S.alloc(1, name=n) for n in ('th', 'cg', 'n32', 't32')]
    I(f's_lshr_b32 {sTH}, {sJ}, 3\ns_and_b32 {sCG}, {sJ}, 7\ns_and_b32 {sN32}, {sW}, 1\ns_lshr_b32 {sT32}, {sW}, 1')
    vTAU = V.alloc(1, name='tau')
    I(f'v_bfe_u32 {vt0}, {vL31}, 2, 1\nv_lshlrev_b32 {vt0}, 4, {vt0}\nv_lshrrev_b32 {vt1}, 3, {vL31}\nv_lshl_add_u32 {vt0}, {vt1}, 2, {vt0}\nv_and_b32 {vt1}, 3, {vL31}\nv_add_u32 {vTAU}, {vt0}, {vt1}')
    XT = V.alloc(8, 4, 'xtile'); SS = V.alloc(16, 4, 's', top=False); DS = SS.sub(0, 8); XNT = SS.sub(8, 8); X1P = V.alloc(8, 4, 'x1p')
    vMASK = V.alloc(1, name='hi16mask'); vTAGV = V.alloc(1, name='tagv'); vZERO = V.alloc(1, name='zero'); vREDw = V.alloc(3, 1, 'redw'); vREDr = V.alloc(1, name='redr')
    sROW = S.alloc(1, name='tilerow'); sCOL = S.alloc(1, name='tilecol')
    I(f's_lshl_b32 {sROW}, {sT}, 7\ns_lshl_b32 {sA}, {sTH}, 6\ns_add_u32 {sROW}, {sROW}, {sA}\ns_lshl_b32 {sA}, {sT32}, 5\ns_add_u32 {sROW}, {sROW}, {sA}')
    I(f's_lshl_b32 {sCOL}, {sCG}, 6\ns_lshl_b32 {sA}, {sN32}, 5\ns_add_u32 {sCOL}, {sCOL}, {sA}')
    I(f'v_lshlrev_b32 {vt0}, 10, {vTAU}\nv_lshl_add_u32 {vt0}, {vH}, 4, {vt0}')
    I(f's_lshl_b32 {sA}, {sROW}, 10\ns_lshl_b32 {sB}, {sCOL}, 1\ns_add_u32 {sA}, {sA}, {sB}')
    I(f'buffer_load_dwordx4 {XT.t(0,4)}, {vt0}, {SRD["X"]}, {sA} offen\nbuffer_load_dwordx4 {XT.t(4,4)}, {vt0}, {SRD["X"]}, {sA} offen offset:32')
    I(f'v_lshl_add_u32 {vt1}, {vH}, 4, {sB}')
    I(f'global_load_dwordx4 {DS.t(0,4)}, {vt1}, {KB.t(0,2)}\nglobal_load_dwordx4 {DS.t(4,4)}, {vt1}, {KB.t(0,2)} offset:32')
    vJUNK = V.alloc(1)
    I(f's_getpc_b64 {KA.t(0,2)}')
    k.label('L_pc')
    I(f's_lshr_b32 {sA}, s2, 3\ns_lshl_b32 {sA}, {sA}, 11')
    I(f'v_lshl_add_u32 {vt0}, v0, 3, {sA}\nv_min_u32 {vt0}, L_codeend-L_pc-4, {vt0}\nglobal_load_dword {vJUNK}, {vt0}, {KA.t(0,2)}')
    S.release(KA.sub(0, 6), KA.sub(14, 2), KB.sub(0, 2))
    if o['stamps']:
        STP = S.alloc(4, 2, 'stamps'); vSTP = V.alloc(1, name='stamps'); k.vSTP = vSTP
    stamp('start')

    I(f's_cmp_lg_u32 {sW}, 0\ns_cbranch_scc1 L_dma')
    sP = S.alloc(4, 2, 'tpair')
    I(f'v_mov_b32 {vt1}, 0')
    I('s_cmp_lg_u32 s2, 0\ns_cbranch_scc1 L_npoll')
    I(f's_memrealtime {sP.t(0,2)}\ns_memtime {sP.t(2,2)}')
    I(f's_lshl_b32 {sA}, {sP[2]}, 12\ns_xor_b32 {sA}, {sA}, {sP[0]}\ns_lshl_b32 {sA}, {sA}, 4\ns_or_b32 {sTAG}, {sA}, 0x80000000')
    I(f'v_mov_b32 {vt0}, {sTAG}\ns_mov_b64 exec, 1')
    k.raw(f'  buffer_store_dword {vt0}, {vt1}, {SRD["DBG"]}, 0 offen sc0 sc1')
    I('s_mov_b64 exec, -1\ns_branch L_ndone')
    k.label('L_npoll')
    I(f's_mov_b32 {sA}, 0')
    k.label('L_np')
    k.raw(f'  buffer_load_dword {vt0}, {vt1}, {SRD["DBG"]}, 0 offen sc1\n  s_waitcnt vmcnt(0)\n  v_readfirstlane_b32 {sTAG}, {vt0}\n  s_add_u32 {sA}, {sA}, 1\n  s_cmp_gt_u32 {sA}, {SPIN}\n  s_cbranch_scc1 L_ndone\n  s_cmp_eq_u32 {sTAG}, 0\n  s_cbranch_scc1 L_np')
    k.label('L_ndone')
    k.raw(f'  s_or_b32 {sA}, {sTAG}, {sXCC}\n  v_mov_b32 {vt0}, {sA}\n  s_lshl_b32 {sB}, {sJ}, 2\n  s_add_u32 {sB}, {sB}, {sTB}\n  s_add_u32 {sB}, {sB}, {O_IDS}\n  v_mov_b32 {vt2}, {sTAG}\n  v_mov_b32 {vt3}, {L_TAG}\n  s_mov_b64 exec, 1')
    k.raw(f'  buffer_store_dword {vt0}, {vt1}, {WS}, {sB} offen sc0 sc1\n  ds_write_b32 {vt3}, {vt2}\n  s_mov_b64 exec, -1\n  s_branch L_join0')
    S.release(sP)
    k.label('L_dma')
    vW1o = V.alloc(1)
    k.raw(f'  v_lshrrev_b32 {vt0}, 2, {vL}\n  v_lshlrev_b32 {vt0}, 10, {vt0}\n  v_and_b32 {vt1}, 3, {vL}\n  v_lshl_add_u32 {vW1o}, {vt1}, 4, {vt0}')
    k.raw(f'  s_lshl_b32 {sA}, {sJ}, 15\n  s_cmp_eq_u32 {sW}, 3\n  s_cbranch_scc1 L_dma3\n  s_cmp_eq_u32 {sW}, 2\n  s_cbranch_scc1 L_dma2')
    for nm, lab, lb in (('BRE', None, L_BB), ('BIM', 'L_dma2', L_BB + 32 * BROW)):
        if lab:
            k.label(lab)
        k.raw(f'  s_mov_b32 m0, {lb}\n  s_mov_b32 {sB}, 0')
        lp = k.newlabel('L_dmal')
        k.label(lp)
        k.raw(f'  buffer_load_dwordx4 {vL16}, {SRD[nm]}, {sA} offen lds\n  s_add_u32 {sA}, {sA}, 1024\n  s_add_u32 m0, m0, {BROW}\n  s_add_u32 {sB}, {sB}, 1\n  s_cmp_lt_u32 {sB}, 32\n  s_cbranch_scc1 {lp}\n  s_branch L_join0')
    k.label('L_dma3')
    k.raw(f'  s_mov_b32 m0, {L_W1}\n  s_mov_b32 {sB}, 0\n  s_lshl_b32 {sA}, {sJ}, 6')
    k.label('L_dmal3')
    k.raw(f'  buffer_load_dwordx4 {vW1o}, {SRD["W1"]}, {sA} offen lds\n  s_add_u32 {sA}, {sA}, 16384\n  s_add_u32 m0, m0, 1024\n  s_add_u32 {sB}, {sB}, 1\n  s_cmp_lt_u32 {sB}, 32\n  s_cbranch_scc1 L_dmal3')
    k.label('L_join0')
    V.release(vW1o)
    for i in range(32):
        k.vm.append((set(), 'wdma'))
    k.fence(3)
    I(f's_cmp_lg_u32 {sW}, 0\ns_cbranch_scc1 L_join1')
    k.raw('  s_waitcnt vmcnt(0)')
    k.label('L_join1')

    I('s_mov_b64 exec, 0')
    for w in range(4):
        I(f's_cmp_eq_u32 {sW}, {w}\ns_cbranch_scc1 L_stub{w}')
    k.label('L_stubret')
    I('s_mov_b64 exec, -1')

    I(f'v_mov_b32 {vMASK}, 0xffff0000')
    LAM = V.alloc(2, 2, 'lam'); CF = V.alloc(2, 2, 'coef2'); L16 = V.alloc(2, 2, 'lam16'); L128 = V.alloc(2, 2, 'lam128'); LOWN = V.alloc(2, 2, 'lown')
    T = V.alloc(8, 2, 'ctmp')
    I(f'v_lshlrev_b32 {vLre}, 16, {vLre}\nv_lshlrev_b32 {vLim}, 16, {vLim}\nv_lshlrev_b32 {vLdt}, 16, {vLdt}')
    I(f'v_mul_f32 {T[0]}, {hx(LOG2E)}, {vLdt}\nv_exp_f32 {T[0]}, {T[0]}\nv_cvt_pk_bf16_f32 {T[0]}, {T[0]}, {T[0]}\nv_lshlrev_b32 {T[0]}, 16, {T[0]}')
    I(f'v_mul_f32 {T[1]}, {T[0]}, {vLre}\nv_mul_f32 {T[2]}, {T[0]}, {vLim}')
    I(f'v_mul_f32 {T[1]}, {hx(LOG2E)}, {T[1]}\nv_exp_f32 {T[1]}, {T[1]}')
    I(f'v_mul_f32 {T[2]}, {hx(1.0 / (2 * math.pi))}, {T[2]}\nv_rndne_f32 {T[3]}, {T[2]}\nv_sub_f32 {T[2]}, {T[2]}, {T[3]}')
    I(f'v_cos_f32 {T[3]}, {T[2]}\nv_sin_f32 {T[4]}, {T[2]}')
    I(f'v_mul_f32 {LAM[0]}, {T[1]}, {T[3]}\nv_mul_f32 {LAM[1]}, {T[1]}, {T[4]}')
    I(f'v_add_f32 {T[0]}, -1.0, {LAM[0]}')
    I(f'v_mul_f32 {T[1]}, {vLre}, {vLre}\nv_fmac_f32 {T[1]}, {vLim}, {vLim}\nv_rcp_f32 {T[1]}, {T[1]}\nv_add_f32 {T[1]}, {T[1]}, {T[1]}')
    I(f'v_mul_f32 {T[2]}, {T[0]}, {vLre}\nv_fmac_f32 {T[2]}, {LAM[1]}, {vLim}\nv_mul_f32 {CF[0]}, {T[2]}, {T[1]}')
    I(f'v_mul_f32 {T[3]}, {LAM[1]}, {vLre}\nv_fma_f32 {T[3]}, -{T[0]}, {vLim}, {T[3]}\nv_mul_f32 {CF[1]}, {T[3]}, {T[1]}')

    def csq(d, s):
        I(f'v_mul_f32 {d[0]}, {s[1]}, {s[1]}\nv_mul_f32 {d[1]}, {s[0]}, {s[1]}\nv_fma_f32 {d[0]}, {s[0]}, {s[0]}, -{d[0]}\nv_add_f32 {d[1]}, {d[1]}, {d[1]}')

    def cmul(d, a, b):
        I(f'v_mul_f32 {d[0]}, {a[1]}, {b[1]}\nv_mul_f32 {d[1]}, {a[0]}, {b[1]}\nv_fma_f32 {d[0]}, {a[0]}, {b[0]}, -{d[0]}\nv_fmac_f32 {d[1]}, {a[1]}, {b[0]}')
    Ta, Tb, Tc, Td = T.sub(0, 2), T.sub(2, 2), T.sub(4, 2), T.sub(6, 2)
    csq(Ta, LAM); csq(Tb, Ta); csq(Ta, Tb); csq(L16, Ta)
    csq(Ta, L16); csq(Tb, Ta); csq(L128, Tb)
    I(f'v_cmp_eq_u32 vcc, 1, {vH}\nv_mov_b32 {Tc[0]}, 1.0\nv_mov_b32 {Tc[1]}, 0\nv_cndmask_b32 {Tc[0]}, {Tc[0]}, {L16[0]}, vcc\nv_cndmask_b32 {Tc[1]}, {Tc[1]}, {L16[1]}, vcc')
    I(f's_bitcmp1_b32 {sW}, 0\ns_cselect_b64 vcc, -1, 0')
    I(f'v_mov_b32 {Td[0]}, 1.0\nv_mov_b32 {Td[1]}, 0\nv_cndmask_b32 {Ta[0]}, {Td[0]}, {Ta[0]}, vcc\nv_cndmask_b32 {Ta[1]}, {Td[1]}, {Ta[1]}, vcc')
    I(f's_bitcmp1_b32 {sW}, 1\ns_cselect_b64 vcc, -1, 0')
    I(f'v_cndmask_b32 {Tb[0]}, {Td[0]}, {Tb[0]}, vcc\nv_cndmask_b32 {Tb[1]}, {Td[1]}, {Tb[1]}, vcc')
    cmul(Td, Tc, Ta); cmul(LOWN, Td, Tb)
    V.release(T, vLre, vLim, vLdt)

    def unpack(dst, src):
        L = []
        for i in range(src.n):
            L.append(f'v_lshlrev_b32 {dst[2*i]}, 16, {src[i]}')
            L.append(f'v_and_b32 {dst[2*i+1]}, {vMASK}, {src[i]}')
        return L

    def sums(F, SQ, t):
        n = F.n // 2
        L = [f'v_pk_add_f32 {t.t(0,2)}, {F.t(0,2)}, {F.t(2,2)}', f'v_pk_mul_f32 {t.t(2,2)}, {F.t(0,2)}, {F.t(0,2)}', f'v_pk_fma_f32 {t.t(2,2)}, {F.t(2,2)}, {F.t(2,2)}, {t.t(2,2)}']
        for i in range(2, n):
            L.append(f'v_pk_add_f32 {t.t(0,2)}, {t.t(0,2)}, {F.t(2*i,2)}')
            L.append(f'v_pk_fma_f32 {t.t(2,2)}, {F.t(2*i,2)}, {F.t(2*i,2)}, {t.t(2,2)}')
        L.append(f'v_add_f32 {SQ[0]}, {t[0]}, {t[1]}')
        L.append(f'v_add_f32 {SQ[1]}, {t[2]}, {t[3]}')
        return L

    def xswap(SQ, t, which):
        return [f'v_mov_b32 {t[0]}, {SQ[0]}', f'v_mov_b32 {t[1]}, {SQ[1]}',
                f'v_permlane{which}_swap_b32 {SQ[0]}, {t[0]}', f'v_permlane{which}_swap_b32 {SQ[1]}, {t[1]}',
                f'v_add_f32 {SQ[0]}, {SQ[0]}, {t[0]}', f'v_add_f32 {SQ[1]}, {SQ[1]}, {t[1]}']

    def finish_stats(SQ, NM, RI, PK, t, n=512):
        L = [f'v_mul_f32 {SQ[0]}, {hx(1.0/n)}, {SQ[0]}', f'v_mul_f32 {SQ[1]}, {hx(1.0/n)}, {SQ[1]}',
             f'v_fma_f32 {SQ[1]}, -{SQ[0]}, {SQ[0]}, {SQ[1]}', f'v_max_f32 {SQ[1]}, 0, {SQ[1]}',
             f'v_cvt_pk_bf16_f32 {t[0]}, {SQ[0]}, {SQ[1]}',
             f'v_and_b32 {t[1]}, {vMASK}, {t[0]}', f'v_add_f32 {t[1]}, {hx(1e-5)}, {t[1]}', f'v_cvt_pk_bf16_f32 {t[1]}, {t[1]}, {t[1]}',
             f'v_and_b32 {t[1]}, {vMASK}, {t[1]}', f'v_sqrt_f32 {t[1]}, {t[1]}', f'v_cvt_pk_bf16_f32 {t[1]}, {t[1]}, {t[1]}', f'v_and_b32 {t[1]}, {vMASK}, {t[1]}',
             f'v_rcp_f32 {RI}, {t[1]}', f'v_lshlrev_b32 {NM}, 16, {t[0]}']
        if PK is not None:
            L.append(f'v_lshrrev_b32 {t[0]}, 16, {NM}')
            L.append(f'v_or_b32 {PK}, {t[0]}, {t[1]}')
        L.append(f'v_xor_b32 {NM}, 0x80000000, {NM}')
        return L

    vSTXw = V.alloc(1); vSTXr = V.alloc(1)
    I(f's_lshl_b32 {sA}, {sW}, 3\ns_add_u32 {sA}, {sA}, {L_STX}\nv_lshl_add_u32 {vSTXw}, {vP8}, 5, {sA}\nv_lshlrev_b32 {vSTXr}, 5, {vP8}\nv_add_u32 {vSTXr}, {L_STX}, {vSTXr}')

    def row_stats(F, SQ, t, area, mid=None):
        k.emit_all(sums(F, SQ, t))
        I(f'v_add_f32_dpp {SQ[0]}, {SQ[0]}, {SQ[0]} row_ror:8 row_mask:0xf bank_mask:0xf')
        I(f'v_add_f32_dpp {SQ[1]}, {SQ[1]}, {SQ[1]} row_ror:8 row_mask:0xf bank_mask:0xf')
        k.emit_all(xswap(SQ, t, 16)); k.emit_all(xswap(SQ, t, 32))
        I(f's_mov_b64 exec, 0xff\nds_write_b64 {vSTXw}, {SQ} offset:{area*256}\ns_mov_b64 exec, -1')
        k.barrier()
        I(f'ds_read_b128 {t.t(0,4)}, {vSTXr} offset:{area*256}\nds_read_b128 {t.t(4,4)}, {vSTXr} offset:{area*256+16}')
        if mid:
            mid()
        I(f'v_pk_add_f32 {t.t(0,2)}, {t.t(0,2)}, {t.t(2,2)}\nv_pk_add_f32 {t.t(4,2)}, {t.t(4,2)}, {t.t(6,2)}\nv_pk_add_f32 {SQ}, {t.t(0,2)}, {t.t(4,2)}')

    def normalize(F, P, NM, RI):
        nm = f'v[{NM.b}:{NM.b+1}]'; ri = f'v[{RI.b}:{RI.b+1}]'
        for i in range(8):
            I(f'v_pk_add_f32 {F.t(2*i,2)}, {F.t(2*i,2)}, {nm} op_sel_hi:[1,0]')
        for i in range(8):
            I(f'v_cvt_pk_bf16_f32 {P[i]}, {F[2*i]}, {F[2*i+1]}')
        k.emit_all(unpack(F, P))
        for i in range(8):
            I(f'v_pk_mul_f32 {F.t(2*i,2)}, {F.t(2*i,2)}, {ri} op_sel_hi:[1,0]')
        for i in range(8):
            I(f'v_cvt_pk_bf16_f32 {P[i]}, {F[2*i]}, {F[2*i+1]}')

    def stores(L, tag='st'):
        ls = k.newlabel('L_slow'); lr = k.newlabel('L_sret')
        I(f's_cmp_lg_u32 {sSLOW}, 0')
        first = True
        mark = len(k.lines)
        for t in L:
            I(t + f' #{tag}')
        body = k.lines[mark:]
        del k.lines[mark:]
        pre = []
        while body and not body[0].lstrip().startswith('buffer_store'):
            pre.append(body.pop(0))
        k.lines += pre
        k.lines.append(f'  s_cbranch_scc1 {ls}')
        k.lines += body
        k.lines.append(lr + ':')
        k.tail.append(ls + ':')
        for b in body:
            k.tail.append(b + ' sc0 sc1' if b.lstrip().startswith('buffer_store') else b)
        k.tail.append(f'  s_branch {lr}')

    vFLG = V.alloc(1, name='flagoff')
    I(f'v_lshlrev_b32 {vFLG}, 2, {vL}')
    sFL = S.alloc(1, name='flagbase'); sMYF = S.alloc(1, name='myflag')
    I(f's_add_u32 {sFL}, {sTB}, {O_FLG}\ns_lshl_b32 {sMYF}, {sJ}, 4\ns_lshl_b32 {sA}, {sW}, 2\ns_add_u32 {sMYF}, {sMYF}, {sA}\ns_add_u32 {sMYF}, {sMYF}, {sFL}')
    I(f'v_mov_b32 {vZERO}, 0')

    def publish(phase, tag='st'):
        k.wait_vm_tag(tag)
        I('s_mov_b64 exec, 1')
        stores([f'buffer_store_dword {vTAGV}, {vZERO}, {WS}, {sMYF} offen offset:{phase*256}'], tag='flag')
        I('s_mov_b64 exec, -1')

    def poll(phase, mask):
        lp = k.newlabel('L_poll'); ld = k.newlabel('L_pdone')
        I(f's_mov_b32 {sA}, 0')
        k.fence(1)
        k.label(lp)
        k.raw(f'  buffer_load_dword {vt0}, {vFLG}, {WS}, {sFL} offen offset:{phase*256} sc1\n  s_waitcnt vmcnt(0)\n  v_cmp_ne_u32 vcc, {vt0}, {vTAGV}\n  s_add_u32 {sA}, {sA}, 1\n  s_cmp_gt_u32 {sA}, {SPIN}\n  s_cbranch_scc1 {ld}\n  s_and_b64 vcc, vcc, {mask}\n  s_cbranch_scc1 {lp}')
        k.label(ld)
        k.vm = []
        k.pos += 6

    def ids_issue():
        I(f's_add_u32 {sB}, {sTB}, {O_IDS}\nv_and_b32 {vt2}, 60, {vFLG}\nbuffer_load_dword {vt3}, {vt2}, {WS}, {sB} offen sc1')

    def ids_check():
        I(f's_or_b32 {sB}, {sTAG}, {sXCC}\nv_cmp_ne_u32 vcc, {sB}, {vt3}\ns_cmp_lg_u64 vcc, 0\ns_cselect_b32 {sSLOW}, 1, 0')
        if o.get('force_slow'):
            I(f's_mov_b32 {sSLOW}, 1')

    F = V.alloc(16, 2, 'F'); SQ = V.alloc(2, 2, 'SQ'); t8 = V.alloc(8, 4, 't8'); NM = V.alloc(2, 2, 'nm'); RI = V.alloc(2, 2, 'ri'); PK = V.alloc(2, 2, 'pk')
    k.emit_all(unpack(F, XP))
    stamp('x_in')

    def mid1():
        I(f'v_mov_b32 {vt0}, {L_TAG}\nds_read_b32 {vTAGV}, {vt0}')
    row_stats(F, SQ, t8, 0, mid1)
    I(f'v_readfirstlane_b32 {sTAG}, {vTAGV}')
    ids_issue()
    k.emit_all(finish_stats(SQ, NM[0], RI[0], None, t8))
    normalize(F, XP, NM, RI)
    ids_check()
    vSo = V.alloc(1)
    I(f'v_lshrrev_b32 {vt0}, 1, {vQ8}\nv_lshlrev_b32 {vt0}, 10, {vt0}\nv_and_b32 {vt1}, 1, {vQ8}\nv_lshl_add_u32 {vt0}, {vt1}, 9, {vt0}\nv_lshl_add_u32 {vSo}, {vP8}, 4, {vt0}')
    I(f's_lshr_b32 {sA}, {sJ}, 2\ns_lshl_b32 {sA}, {sA}, 15\ns_lshl_b32 {sB}, {sW}, 13\ns_add_u32 {sA}, {sA}, {sB}\ns_and_b32 {sB}, {sJ}, 3\ns_lshl_b32 {sB}, {sB}, 7\ns_add_u32 {sA}, {sA}, {sB}\ns_add_u32 {sA}, {sA}, {sTB}\ns_add_u32 {sC}, {sA}, {O_XN + 4096}\ns_add_u32 {sA}, {sA}, {O_XN}')
    stores([f'buffer_store_dwordx4 {XP.t(0,4)}, {vSo}, {WS}, {sA} offen', f'buffer_store_dwordx4 {XP.t(4,4)}, {vSo}, {WS}, {sC} offen'])
    k.emit_all(unpack(F, XP))
    row_stats(F, SQ, t8, 1)
    k.emit_all(finish_stats(SQ, NM[0], RI[0], PK[0], t8))
    I(f'v_mov_b32 {PK[1]}, {vTAGV}')
    I(f's_lshl_b32 {sA}, {sJ}, 6\ns_add_u32 {sA}, {sA}, {sTB}\ns_add_u32 {sA}, {sA}, {O_ST2}\nv_lshlrev_b32 {vt0}, 3, {vP8}')
    I(f's_cmp_eq_u32 {sW}, 0\ns_cselect_b64 exec, 0xff, 1')
    stores([f'buffer_store_dwordx2 {PK}, {vt0}, {WS}, {sA} offen'], tag='st2')
    I('s_mov_b64 exec, -1')
    publish(0)
    stamp('xn_pub')
    if o['stop'] == 'p0':
        return finish(k, o, STP, nstamp, sJ, sW, sA, vt0, vt1, WS)

    k.emit_all(unpack(F, HP))
    row_stats(F, SQ, t8, 2)
    k.emit_all(finish_stats(SQ, NM[0], RI[0], None, t8))
    normalize(F, HP, NM, RI)
    I(f's_lshl_b32 {sA}, {sW}, 10\ns_add_u32 {sA}, {sA}, {L_HALO}\nv_and_b32 {vt0}, 1, {vP8}\nv_lshlrev_b32 {vt0}, 4, {vt0}\nv_lshl_add_u32 {vt0}, {vQ8}, 6, {vt0}\nv_add_u32 {vt0}, {sA}, {vt0}')
    I(f'ds_write_b128 {vt0}, {HP.t(0,4)}\nds_write_b128 {vt0}, {HP.t(4,4)} offset:512')
    ONES = V.alloc(4, 4, 'ones')
    for i in range(4):
        I(f'v_mov_b32 {ONES[i]}, 0x3f803f80')
    I(f'v_lshlrev_b32 {vt1}, 6, {vL}\nv_add_u32 {vt1}, {L_HALO + 32}, {vt1}\nds_write_b128 {vt1}, {ONES}')
    k.emit_all(unpack(F, HP))
    k.wait_vm_tag('wdma')
    row_stats(F, SQ, t8, 3)
    HNM = V.alloc(1, name='hnm'); HRI = V.alloc(1, name='hri')
    k.emit_all(finish_stats(SQ, HNM[0], HRI[0], None, t8))
    V.release(F, SQ, NM, RI, PK, XP, HP, vSo, vSTXw, vSTXr, t8, vJUNK)
    stamp('halo_ln')

    vTRI = V.alloc(1, name='tr_inner')
    I(f'v_bfe_u32 {vt0}, {vL}, 2, 2\nv_lshlrev_b32 {vt0}, 6, {vt0}\nv_bfe_u32 {vt1}, {vL}, 4, 1\nv_lshl_add_u32 {vt0}, {vt1}, 5, {vt0}\nv_and_b32 {vt1}, 1, {vL}\nv_lshl_add_u32 {vt0}, {vt1}, 4, {vt0}\nv_bfe_u32 {vt1}, {vL}, 1, 1\nv_lshl_add_u32 {vTRI}, {vt1}, 3, {vt0}')
    vW1r = V.alloc(1, name='w1rd')
    I(f'v_lshl_add_u32 {vW1r}, {vH}, 9, {vTRI}\nv_add_u32 {vW1r}, {L_W1}, {vW1r}')
    vBr = V.alloc(1, name='brd')
    I(f'v_mul_u32_u24 {vBr}, {BROW}, {vL31}\nv_lshl_add_u32 {vBr}, {vH}, 4, {vBr}')

    I(f's_lshl_b32 {sA}, {sW}, 4\ns_lshl_b64 {sM}, 0xffff, {sA}')
    poll(0, sM)
    stamp('xn_seen')
    XN = A.alloc(128, 4, 'XN')
    sXN = S.alloc(1, name='xnbase')
    I(f's_lshl_b32 {sXN}, {sW}, 15\ns_add_u32 {sXN}, {sXN}, {sTB}')

    def xn_load(ks):
        L = []
        if ks % 4 == 0 and ks:
            L.append(f's_add_u32 {sXN}, {sXN}, 4096')
        L.append(f'buffer_load_dwordx4 {XN.t(4*ks,4)}, {vL16}, {WS}, {sXN} offen offset:{(ks%4)*1024} sc1')
        return L
    PF = o.get('pf1', 10)
    for ks in range(PF):
        k.emit_all(xn_load(ks))
    ST2 = V.alloc(2, 2, 'st2')
    sST2 = S.alloc(1); vST2o = V.alloc(1)
    I(f's_lshl_b32 {sA}, {sW}, 8\ns_add_u32 {sA}, {sA}, {sTB}\ns_add_u32 {sST2}, {sA}, {O_ST2}\nv_lshlrev_b32 {vST2o}, 3, {vL31}')

    HA = V.alloc(16, 4, 'hacc'); WF = V.alloc(24, 4, 'wf')
    I(f'v_min_u32 {vt0}, 2, {vL31}\nv_lshlrev_b32 {vt0}, 4, {vt0}\nv_lshl_add_u32 {vt0}, {vH}, 6, {vt0}\ns_lshl_b32 {sB}, {sW}, 10\ns_add_u32 {sB}, {sB}, {L_HALO}\nv_add_u32 {vt0}, {sB}, {vt0}')
    I(f's_lshl_b32 {sB}, {sW}, 13\nv_add_u32 {vt1}, {sB}, {vW1r}')
    for i in range(8):
        b = (i % 3) * 8
        I(f'ds_read_b64_tr_b16 {WF.t(b,2)}, {vt1} offset:{i*1024}\nds_read_b64_tr_b16 {WF.t(b+2,2)}, {vt1} offset:{i*1024+256}\nds_read_b128 {WF.t(b+4,4)}, {vt0} offset:{i*128}')
        if i >= 2:
            j = i - 2; bb = (j % 3) * 8
            I(f'v_mfma_f32_32x32x16_bf16 {HA}, {WF.t(bb,4)}, {WF.t(bb+4,4)}, {HA if j else 0}')
    for j in (6, 7):
        bb = (j % 3) * 8
        I(f'v_mfma_f32_32x32x16_bf16 {HA}, {WF.t(bb,4)}, {WF.t(bb+4,4)}, {HA}')
    I(f's_mul_i32 {sB}, {sW}, 384\ns_add_u32 {sB}, {sB}, {L_HRED}\nv_lshlrev_b32 {vt0}, 7, {vL31}\nv_lshl_add_u32 {vt0}, {vH}, 6, {vt0}\nv_add_u32 {vt0}, {sB}, {vt0}')
    I('s_mov_b32 exec_lo, 7\ns_mov_b32 exec_hi, 7')
    for i in range(4):
        I(f'ds_write_b128 {vt0}, {HA.t(4*i,4)} offset:{16*i}')
    I('s_mov_b64 exec, -1')
    k.barrier()
    CS1 = V.alloc(16, 4, 'cs1')
    I(f'v_lshlrev_b32 {vt0}, 6, {vH}\nv_add_u32 {vt0}, {L_HRED + 256}, {vt0}')
    for i in range(4):
        I(f'ds_read_b128 {CS1.t(4*i,4)}, {vt0} offset:{16*i}')
    for w in range(1, 4):
        for i in range(4):
            I(f'ds_read_b128 {HA.t(4*i,4)}, {vt0} offset:{w*384+16*i}')
        for i in range(8):
            I(f'v_pk_add_f32 {CS1.t(2*i,2)}, {CS1.t(2*i,2)}, {HA.t(2*i,2)}')
    GK = V.alloc(4, 2, 'gk')
    V.release(GK)
    GK = V.alloc(6, 2, 'gk')
    I(f'v_mov_b32 {GK[0]}, {hx(GC1)}\nv_mov_b32 {GK[2]}, {hx(GC0)}\nv_mov_b32 {GK[4]}, 1.0')
    gC1, gC0, gONE = GK.t(0, 2), GK.t(2, 2), GK.t(4, 2)

    def gelu_pairs(Z, n, t, outs):
        L = []
        P = lambda R, i: R.t(2 * i, 2)
        for i in range(n): L.append(f'v_pk_mul_f32 {P(t,i)}, {P(Z,i)}, {P(Z,i)}')
        for i in range(n): L.append(f'v_pk_fma_f32 {P(t,i)}, {P(t,i)}, {gC1}, {gC0} op_sel_hi:[1,0,0]')
        for i in range(n): L.append(f'v_pk_mul_f32 {P(t,i)}, {P(t,i)}, {P(Z,i)}')
        for i in range(2 * n): L.append(f'v_exp_f32 {t[i]}, {t[i]}')
        for i in range(n): L.append(f'v_pk_add_f32 {P(t,i)}, {P(t,i)}, {gONE} op_sel_hi:[1,0]')
        for i in range(2 * n): L.append(f'v_rcp_f32 {t[i]}, {t[i]}')
        for i in range(n): L.append(f'v_pk_mul_f32 {P(t,i)}, {P(t,i)}, {P(Z,i)}')
        for i in range(n): L.append(f'v_cvt_pk_bf16_f32 {outs[i]}, {t[2*i]}, {t[2*i+1]}')
        return L

    sDEL = S.alloc(1, name='delta')
    I(f's_lshr_b32 {sA}, {sJ}, 3\ns_add_u32 {sDEL}, {sA}, 1\ns_sub_u32 {sB}, 0, {sDEL}\ns_bitcmp1_b32 {sJ}, 2\ns_cselect_b32 {sDEL}, {sB}, {sDEL}')
    hz = V.alloc(8, 2, 'hz')
    I(f'v_and_b32 {vt0}, 1, {vL}\nv_lshlrev_b32 {vt0}, 7, {vt0}\nv_lshrrev_b32 {vt1}, 1, {vL}\nv_lshl_add_u32 {vt0}, {vt1}, 2, {vt0}\nv_add_u32 {vt0}, {L_HRED}, {vt0}\nv_lshlrev_b32 {vt3}, 2, {vt1}\nv_add_u32 {vt3}, {L_HRED + 256}, {vt3}')
    for w in range(4):
        I(f'ds_read_b32 {hz[w]}, {vt0} offset:{w*384}\nds_read_b32 {hz[4+w]}, {vt3} offset:{w*384}')
    I(f'v_add_f32 {hz[0]}, {hz[0]}, {hz[1]}\nv_add_f32 {hz[2]}, {hz[2]}, {hz[3]}\nv_add_f32 {hz[4]}, {hz[4]}, {hz[5]}\nv_add_f32 {hz[6]}, {hz[6]}, {hz[7]}\nv_add_f32 {hz[0]}, {hz[0]}, {hz[2]}\nv_add_f32 {hz[4]}, {hz[4]}, {hz[6]}')
    I(f'v_fmac_f32 {hz[0]}, {HNM}, {hz[4]}\nv_mul_f32 {hz[0]}, {hz[0]}, {HRI}\nv_cvt_pk_bf16_f32 {hz[0]}, {hz[0]}, {hz[0]}\nv_lshlrev_b32 {hz[0]}, 16, {hz[0]}\nv_mov_b32 {hz[1]}, {hz[0]}')
    k.emit_all(gelu_pairs(hz.sub(0, 2), 1, hz.sub(2, 2), [hz[0]]))
    I(f's_bitcmp1_b32 {sJ}, 2\ns_cselect_b32 {sB}, 15, 0\ns_cmp_eq_u32 {sT}, {sB}\ns_cselect_b32 {sB}, 0, -1\nv_and_b32 {hz[0]}, {sB}, {hz[0]}')
    def h1_rowoff(dst, tp, ta, tb):
        I(f'v_bfe_u32 {ta}, {tp}, 2, 2\nv_lshlrev_b32 {ta}, 3, {ta}\nv_bfe_u32 {tb}, {tp}, 4, 1\nv_lshl_add_u32 {ta}, {tb}, 2, {ta}\nv_and_b32 {tb}, 3, {tp}\nv_add_u32 {ta}, {ta}, {tb}\nv_lshlrev_b32 {ta}, 4, {ta}')
        I(f'v_lshrrev_b32 {tb}, 5, {tp}\nv_lshl_add_u32 {ta}, {tb}, 15, {ta}\nv_cmp_gt_u32 vcc, 128, {tp}\nv_bfrev_b32 {tb}, 1\nv_cndmask_b32 {dst}, {tb}, {ta}, vcc')
    I(f's_bitcmp1_b32 {sJ}, 2\ns_cselect_b32 {sB}, 128, -2\ns_add_u32 {sB}, {sB}, {sDEL}\nv_and_b32 {hz[2]}, 1, {vL}\nv_add_u32 {hz[2]}, {sB}, {hz[2]}')
    h1_rowoff(hz[3], hz[2], hz[4], hz[5])
    I(f'v_bfe_u32 {hz[4]}, {vt1}, 3, 1\nv_lshl_add_u32 {hz[3]}, {hz[4]}, 10, {hz[3]}\nv_lshrrev_b32 {hz[4]}, 4, {vt1}\nv_lshl_add_u32 {hz[3]}, {hz[4]}, 9, {hz[3]}\nv_and_b32 {hz[4]}, 7, {vt1}\nv_lshl_add_u32 {hz[3]}, {hz[4]}, 1, {hz[3]}')
    sH1 = S.alloc(1, name='h1base')
    I(f's_lshl_b32 {sH1}, {sJ}, 11\ns_add_u32 {sH1}, {sH1}, {sTB}\ns_add_u32 {sH1}, {sH1}, {O_H1}')
    I(f's_cmp_lg_u32 {sW}, 0\ns_cselect_b32 {sB}, 0x80000000, 0\nv_or_b32 {hz[3]}, {sB}, {hz[3]}')
    stores([f'buffer_store_short {hz[0]}, {hz[3]}, {WS}, {sH1} offen'], tag='sth')
    V.release(hz, HNM, HRI, HA)
    vH1o = V.alloc(1, name='h1off')
    I(f's_lshl_b32 {sB}, {sW}, 5\ns_add_u32 {sB}, {sB}, {sDEL}\nv_add_u32 {vt0}, {sB}, {vTAU}')
    h1_rowoff(vH1o, vt0, vt1, vt3)
    I(f'v_lshl_add_u32 {vH1o}, {vH}, 9, {vH1o}')
    I(f'buffer_load_dwordx2 {ST2}, {vST2o}, {WS}, {sST2} offen sc1')
    stamp('p1_start')

    ARE = V.alloc(16, 4, 'are'); AIM = V.alloc(16, 4, 'aim'); A3 = V.alloc(16, 4, 'a3')
    jobs = []
    g1 = 0
    ratio = o.get('g1ratio', 4 / 3)
    for ks in range(32):
        jobs.append(('w', ks))
        while g1 < min(2 * (ks + 1), int(ratio * (ks + 1))):
            jobs.append(('re' if g1 % 2 == 0 else 'im', g1 // 2)); g1 += 1
    nfirst = len(jobs)
    while g1 < 64:
        jobs.append(('re' if g1 % 2 == 0 else 'im', g1 // 2)); g1 += 1
    NB = 6

    def wread(i):
        ty, ks = jobs[i]; b = (i % NB) * 4
        if ty == 'w':
            return [f'ds_read_b64_tr_b16 {WF.t(b,2)}, {vW1r} offset:{ks*1024}', f'ds_read_b64_tr_b16 {WF.t(b+2,2)}, {vW1r} offset:{ks*1024+256}']
        return [f'ds_read_b128 {WF.t(b,4)}, {vBr} offset:{ks*32 + (32*BROW if ty == "im" else 0)}']

    def mm(i):
        ty, ks = jobs[i]; b = (i % NB) * 4
        if ty == 'w':
            return f'v_mfma_f32_32x32x16_bf16 {A3}, {WF.t(b,4)}, {XN.t(4*ks,4)}, {A3 if ks else 0}'
        acc = ARE if ty == 're' else AIM
        return f'v_mfma_f32_32x32x16_bf16 {acc}, {XN.t(4*ks,4)}, {WF.t(b,4)}, {acc if ks else 0}'
    AH = 4
    first, second = [], []
    for i in range(AH):
        first += wread(i)
    nxt = PF
    for i in range(len(jobs)):
        tgt = first if i < nfirst else second
        if i + AH < len(jobs):
            tgt += wread(i + AH)
        if jobs[i][0] == 'w' and nxt < 32:
            tgt += xn_load(nxt); nxt += 1
        tgt.append(mm(i))
    k.emit_all(first)
    stamp('g3_done')
    ep = []
    NM2 = V.alloc(2, 2); RI2 = V.alloc(2, 2); GT = V.alloc(16, 2, 'gt'); HP2 = V.alloc(8, 4, 'h1p')

    def st2_check(k_):
        lp = k.newlabel('L_st2'); ld = k.newlabel('L_st2d')
        I(f'v_cmp_ne_u32 vcc, {ST2[1]}, {vTAGV}\ns_mov_b32 {sA}, 0\ns_cbranch_vccz {ld}')
        k.label(lp)
        k.raw(f'  buffer_load_dwordx2 {ST2}, {vST2o}, {WS}, {sST2} offen sc1\n  s_waitcnt vmcnt(0)\n  v_cmp_ne_u32 vcc, {ST2[1]}, {vTAGV}\n  s_add_u32 {sA}, {sA}, 1\n  s_cmp_gt_u32 {sA}, {SPIN}\n  s_cbranch_scc1 {ld}\n  s_cbranch_vccnz {lp}')
        k.label(ld)
    ep.append(st2_check)
    ep += [f'v_lshlrev_b32 {NM2[0]}, 16, {ST2[0]}', f'v_and_b32 {RI2[0]}, {vMASK}, {ST2[0]}', f'v_xor_b32 {NM2[0]}, 0x80000000, {NM2[0]}', f'v_rcp_f32 {RI2[0]}, {RI2[0]}']
    for i in range(8): ep.append(f'v_pk_fma_f32 {A3.t(2*i,2)}, {CS1.t(2*i,2)}, {NM2}, {A3.t(2*i,2)} op_sel_hi:[1,0,1]')
    for i in range(8): ep.append(f'v_pk_mul_f32 {A3.t(2*i,2)}, {A3.t(2*i,2)}, {RI2} op_sel_hi:[1,0]')
    for i in range(8): ep.append(f'v_cvt_pk_bf16_f32 {HP2[i]}, {A3[2*i]}, {A3[2*i+1]}')
    ep += unpack(A3, HP2)
    ep += gelu_pairs(A3, 8, GT, [HP2[i] for i in range(8)])
    ep.append(lambda k_: stores([f'buffer_store_dwordx4 {HP2.t(0,4)}, {vH1o}, {WS}, {sH1} offen', f'buffer_store_dwordx4 {HP2.t(4,4)}, {vH1o}, {WS}, {sH1} offen offset:1024']))
    k.emit_all(merge(second, ep, every=1, per=o.get('ep_per', 5)))
    if not o.get('no_recheck'):
        pass
    publish(1)
    stamp('h1_pub')
    V.release(A3, CS1, NM2, RI2, GT, HP2, ST2, vST2o, vH1o, WF, vW1r, vBr); A.release(XN)
    S.release(sST2, sH1, sXN, sDEL)

    def scan(g, out=None):
        gt = V.alloc(2, 2)
        for r in range(16):
            I(f'v_fma_f32 {gt[0]}, {LAM[0]}, {g[0]}, {ARE[r]}\nv_fma_f32 {gt[1]}, {LAM[0]}, {g[1]}, {AIM[r]}')
            if out:
                I(f'v_fma_f32 {ARE[r]}, -{LAM[1]}, {g[1]}, {gt[0]}\nv_fma_f32 {AIM[r]}, {LAM[1]}, {g[0]}, {gt[1]}')
                g = V2(ARE[r], AIM[r])
            else:
                I(f'v_fma_f32 {gt[0]}, -{LAM[1]}, {g[1]}, {gt[0]}\nv_fma_f32 {g[1]}, {LAM[1]}, {g[0]}, {gt[1]}\nv_mov_b32 {g[0]}, {gt[0]}')
        V.release(gt)

    class V2:
        def __init__(s, a, b): s.r = (a, b)
        def __getitem__(s, i): return s.r[i]
    G = V.alloc(2, 2, 'g')
    I(f'v_mov_b32 {G[0]}, {ARE[0]}\nv_mov_b32 {G[1]}, {AIM[0]}')
    gt = V.alloc(4, 2)
    cur, oth = G, gt.sub(0, 2)
    for r in range(1, 16):
        I(f'v_fma_f32 {oth[0]}, {LAM[0]}, {cur[0]}, {ARE[r]}\nv_fma_f32 {oth[1]}, {LAM[0]}, {cur[1]}, {AIM[r]}')
        I(f'v_fma_f32 {oth[0]}, -{LAM[1]}, {cur[1]}, {oth[0]}\nv_fma_f32 {oth[1]}, {LAM[1]}, {cur[0]}, {oth[1]}')
        cur, oth = oth, cur
    L_SEG = L_STG + 3 * STGW + 8192
    I(f's_lshl_b32 {sA}, {sW}, 9\ns_add_u32 {sA}, {sA}, {L_SEG}\nv_lshl_add_u32 {vt0}, {vL}, 3, {sA}')
    I(f'ds_write_b64 {vt0}, {cur.t(0,2)}')
    k.barrier()
    E = V.alloc(16, 4, 'segs')
    I(f'v_lshlrev_b32 {vt0}, 3, {vL31}\nv_add_u32 {vt0}, {L_SEG}, {vt0}')
    for s in range(8):
        I(f'ds_read_b64 {E.t(2*s,2)}, {vt0} offset:{s*256}')

    vW3o = V.alloc(7, 1, 'w3o')
    for n in range(7):
        I(f'v_lshrrev_b32 {vt1}, 4, {vL}\nv_add_u32 {vt1}, {4*n}, {vt1}\nv_mul_u32_u24 {vt2}, 37, {vt1}\nv_lshrrev_b32 {vt2}, 8, {vt2}\nv_mul_u32_u24 {vt3}, 7, {vt2}\nv_sub_u32 {vt1}, {vt1}, {vt3}')
        I(f'v_lshlrev_b32 {vt1}, 5, {vt1}\nv_and_b32 {vt3}, 1, {vL}\nv_lshl_add_u32 {vt1}, {vt3}, 4, {vt1}')
        I(f'v_and_b32 {vt3}, 1, {vt2}\nv_lshlrev_b32 {vt3}, 2, {vt3}\nv_bfe_u32 {vW3o[n]}, {vL}, 1, 3\nv_xor_b32 {vt3}, {vt3}, {vW3o[n]}\nv_lshl_add_u32 {vt3}, {vt2}, 3, {vt3}')
        I(f'v_mul_u32_u24 {vt3}, 3584, {vt3}\nv_add_u32 {vW3o[n]}, {vt3}, {vt1}')

    def w3_dma(sg_list):
        L = []
        for sg in sg_list:
            L.append(f's_lshl_b32 {sC}, {sW}, 2\ns_add_u32 {sC}, {sC}, {sg}\ns_mul_i32 {sD}, {sC}, 7168\ns_mul_i32 {sC}, {sC}, {32*3584}\ns_mul_i32 {sB}, {sJ}, 224\ns_add_u32 {sC}, {sC}, {sB}')
            for n in range(7):
                L.append(f's_add_u32 m0, {sD}, {L_W3 + n*1024}\nbuffer_load_dwordx4 {vW3o[n]}, {SRD["W3"]}, {sC} offen lds #w3')
        return L

    CIN = V.alloc(2, 2, 'cin'); P = gt.sub(0, 2); Q = gt.sub(2, 2)
    I(f's_lshl_b32 {sA}, {sW}, 1\nv_add_u32 {vt0}, {sA}, {vH}')
    I(f'v_mov_b32 {CIN[0]}, 0\nv_mov_b32 {CIN[1]}, 0\nv_mov_b32 {P[0]}, {E[0]}\nv_mov_b32 {P[1]}, {E[1]}')
    for s in range(1, 8):
        I(f'v_cmp_eq_u32 vcc, {s}, {vt0}')
        I(f'v_fma_f32 {Q[0]}, {L16[0]}, {P[0]}, {E[2*s]}\nv_fma_f32 {Q[1]}, {L16[0]}, {P[1]}, {E[2*s+1]}')
        I(f'v_cndmask_b32 {CIN[0]}, {CIN[0]}, {P[0]}, vcc\nv_cndmask_b32 {CIN[1]}, {CIN[1]}, {P[1]}, vcc')
        I(f'v_fma_f32 {Q[0]}, -{L16[1]}, {P[1]}, {Q[0]}\nv_fma_f32 {Q[1]}, {L16[1]}, {P[0]}, {Q[1]}')
        P, Q = Q, P
    I(f'v_mov_b32 {E[0]}, {P[0]}\nv_mov_b32 {E[1]}, {vTAGV}\nv_mov_b32 {E[2]}, {P[1]}\nv_mov_b32 {E[3]}, {vTAGV}')
    sSC = S.alloc(1, name='scanbase')
    I(f's_lshl_b32 {sSC}, {sJ}, 9\ns_add_u32 {sSC}, {sSC}, {O_SCAN}\ns_lshl_b32 {sA}, {sT}, 13\ns_add_u32 {sA}, {sA}, {sSC}\nv_lshlrev_b32 {vt0}, 4, {vL31}')
    I(f's_cmp_eq_u32 {sW}, 0\ns_cselect_b64 exec, 0xffffffff, 1')
    I(f'buffer_store_dwordx4 {E.t(0,4)}, {vt0}, {WS}, {sA} offen sc0 sc1')
    I('s_mov_b64 exec, -1')
    V.release(E, G, gt, L16)
    stamp('scan1')

    vSTGo = V.alloc(1, name='stg_src')
    I(f'v_lshrrev_b32 {vt0}, 5, {vL}\nv_lshlrev_b32 {vt0}, 2, {vt0}\nv_bfe_u32 {vt1}, {vL}, 2, 2\nv_add_u32 {vt0}, {vt0}, {vt1}\nv_lshlrev_b32 {vt0}, 10, {vt0}\nv_bfe_u32 {vt1}, {vL}, 4, 1\nv_lshl_add_u32 {vt0}, {vt1}, 6, {vt0}\nv_and_b32 {vt1}, 3, {vL}\nv_lshl_add_u32 {vSTGo}, {vt1}, 4, {vt0}')
    sSTG = S.alloc(1, name='stgbase')
    I(f's_mul_i32 {sSTG}, {sW}, {STGW}\ns_add_u32 {sSTG}, {sSTG}, {L_STG}')
    vRN = V.alloc(2, 1, 'rd_nat'); vRP = V.alloc(2, 1, 'rd_pair')
    for ni in range(2):
        I(f's_xor_b32 {sA}, {sN32}, {ni}\ns_lshl_b32 {sA}, {sA}, 8\ns_add_u32 {sA}, {sA}, {sSTG}\nv_add_u32 {vt0}, {sA}, {vTRI}')
        I(f'v_lshl_add_u32 {vRN[ni]}, {vH}, 10, {vt0}\nv_lshl_add_u32 {vRP[ni]}, {vH}, 9, {vt0}')

    def stage_dma(srdname, row0_s, nrows, ldsoff, tag):
        L = []
        for d in range(nrows // 8):
            L.append(f's_add_u32 m0, {sSTG}, {ldsoff + d*1024}\nbuffer_load_dwordx4 {vSTGo}, {SRD[srdname]}, {row0_s} offen lds #{tag}\ns_add_u32 {row0_s}, {row0_s}, 8192')
        return L

    def rd_nat(dst, ldsoff):
        L = []
        for ni in range(2):
            for rd in range(2):
                L.append(f'ds_read_b64_tr_b16 {dst.t(4*ni+2*rd,2)}, {vRN[ni]} offset:{ldsoff + rd*512}')
        return L

    def rd_pair(dst, ldsoff):
        L = []
        for s in range(2):
            for ni in range(2):
                for rd in range(2):
                    L.append(f'ds_read_b64_tr_b16 {dst.t(8*s+4*ni+2*rd,2)}, {vRP[ni]} offset:{ldsoff + s*1024 + rd*2048}')
        return L

    W2R = A.at(160, 64, 'w2')
    sR = S.alloc(1, name='srcrow')
    I(f's_lshl_b32 {sR}, {sW}, 17\ns_lshl_b32 {sA}, {sCG}, 7\ns_add_u32 {sR}, {sR}, {sA}')
    k.emit_all(stage_dma('W2', sR, 64, 0, 'w2a'))
    k.emit_all(w3_dma([0, 1]))
    k.wait_vm_tag('w2a')
    for ks in range(4):
        k.emit_all(rd_nat(W2R.sub(8*ks, 8), ks*2048))
    k.waitcnt(lg=0)
    k.emit_all(stage_dma('W2', sR, 64, 0, 'w2b'))
    k.wait_vm_tag('w2b')
    for ks in range(4):
        k.emit_all(rd_nat(W2R.sub(32 + 8*ks, 8), ks*2048))

    for i in range(1, 4):
        I(f's_xor_b32 {sA}, {sW}, {i}\ns_mul_i32 {sA}, {sA}, {STGW}\ns_add_u32 {sA}, {sA}, {L_STG + (i-1)*4096}\nv_add_u32 {vREDw[i-1]}, {sA}, {vL16}')
    I(f'v_add_u32 {vREDr}, {sSTG}, {vL16}')

    def reduce4(ACC, tmp):
        k.barrier()
        for i in range(1, 4):
            for q in range(4):
                I(f'ds_write_b128 {vREDw[i-1]}, {ACC.t(16*i+4*q,4)} offset:{q*1024}')
        k.barrier()
        for i in range(3):
            for q in range(4):
                I(f'ds_read_b128 {tmp.t(16*i+4*q,4)}, {vREDr} offset:{i*4096+q*1024}')
        for i in range(3):
            for q in range(8):
                I(f'v_pk_add_f32 {ACC.t(2*q,2)}, {ACC.t(2*q,2)}, {tmp.t(16*i+2*q,2)}')

    def act_base(dst0, dst1, off, kpt, k0mul):
        for ti, d in ((0, dst0), (1, dst1)):
            I(f's_xor_b32 {sA}, {sT32}, {ti}\ns_lshl_b32 {sB}, {sTH}, 1\ns_add_u32 {sA}, {sA}, {sB}\ns_mul_i32 {sA}, {sA}, {kpt}\ns_mul_i32 {sB}, {sW}, {k0mul}\ns_add_u32 {sA}, {sA}, {sB}\ns_lshl_b32 {sA}, {sA}, 10\ns_add_u32 {sA}, {sA}, {sTB}\ns_add_u32 {d}, {sA}, {off}')

    sB0 = S.alloc(1); sB1 = S.alloc(1)

    def act_load(dst, ks, ti):
        sb = sB0 if ti == 0 else sB1
        L = []
        if ks % 4 == 0 and ks:
            L.append(f's_add_u32 {sb}, {sb}, 4096')
        L.append(f'buffer_load_dwordx4 {dst}, {vL16}, {WS}, {sb} offen offset:{(ks%4)*1024} sc1')
        return L

    act_base(sB0, sB1, O_H1, 32, 8)
    I(f's_lshl_b32 {sA}, {sW}, 4\ns_lshl_b64 {sM}, 0xffff, {sA}')
    sOWN = S.alloc(1, name='ownfrag')
    I(f's_lshl_b32 {sA}, {sTH}, 1\ns_add_u32 {sA}, {sA}, {sT32}\ns_lshl_b32 {sA}, {sA}, 5\ns_lshl_b32 {sB}, {sCG}, 2\ns_add_u32 {sA}, {sA}, {sB}\ns_lshl_b32 {sB}, {sN32}, 1\ns_add_u32 {sA}, {sA}, {sB}\ns_lshl_b32 {sA}, {sA}, 10\ns_add_u32 {sOWN}, {sA}, {sTB}')
    poll(1, sM)
    stamp('h1_seen')
    HB = A.alloc(64, 4, 'h1frags'); ACC = V.alloc(64, 4, 'acc4')
    for ks in range(8):
        for ti in range(2):
            k.emit_all(act_load(HB.t(8*ks+4*ti, 4), ks, ti))
    I(f'buffer_load_dwordx4 {XNT.t(0,4)}, {vL16}, {WS}, {sOWN} offen sc1\nbuffer_load_dwordx4 {XNT.t(4,4)}, {vL16}, {WS}, {sOWN} offen offset:1024 sc1')
    k.emit_all(w3_dma([2, 3]))
    V.release(vW3o)
    for ks in range(8):
        for ti in range(2):
            for ni in range(2):
                acc = ACC.sub(16*(2*ti+ni), 16)
                I(f'v_mfma_f32_32x32x16_bf16 {acc}, {W2R.t(8*ks+4*ni,4)}, {HB.t(8*ks+4*ti,4)}, {acc if ks else 0}')
    stamp('g4_mfma')
    reduce4(ACC, ACC.sub(16, 48))
    A.release(W2R)
    a0 = ACC.sub(0, 16); f1 = ACC.sub(16, 16); tq = ACC.sub(32, 8); SQ = ACC.sub(40, 2)
    for i in range(8): I(f'v_cvt_pk_bf16_f32 {X1P[i]}, {a0[2*i]}, {a0[2*i+1]}')
    k.emit_all(unpack(a0, X1P)); k.emit_all(unpack(f1, XNT))
    for i in range(8): I(f'v_pk_add_f32 {a0.t(2*i,2)}, {a0.t(2*i,2)}, {f1.t(2*i,2)}')
    for i in range(8): I(f'v_cvt_pk_bf16_f32 {X1P[i]}, {a0[2*i]}, {a0[2*i+1]}')
    I(f's_add_u32 {sC}, {sOWN}, {O_X1}')
    stores([f'buffer_store_dwordx4 {X1P.t(0,4)}, {vL16}, {WS}, {sC} offen', f'buffer_store_dwordx4 {X1P.t(4,4)}, {vL16}, {WS}, {sC} offen offset:1024'])
    k.emit_all(unpack(a0, X1P))
    k.emit_all(sums(a0, SQ, tq)); k.emit_all(xswap(SQ, tq, 32))
    I(f's_lshl_b32 {sA}, {sTH}, 1\ns_add_u32 {sA}, {sA}, {sT32}\ns_lshl_b32 {sA}, {sA}, 12\ns_lshl_b32 {sB}, {sCG}, 9\ns_add_u32 {sA}, {sA}, {sB}\ns_lshl_b32 {sB}, {sN32}, 8\ns_add_u32 {sA}, {sA}, {sB}\ns_add_u32 {sA}, {sA}, {sTB}\ns_add_u32 {sA}, {sA}, {O_ST3}')
    I(f'v_and_b32 {vt0}, 15, {vL}\nv_lshlrev_b32 {vt0}, 4, {vt0}\nv_bfe_u32 {vt1}, {vL}, 4, 1\nv_lshl_add_u32 {vt0}, {vt1}, 3, {vt0}')
    I('s_mov_b64 exec, 0xffffffff')
    stores([f'buffer_store_dwordx2 {SQ}, {vt0}, {WS}, {sA} offen'])
    I('s_mov_b64 exec, -1')
    publish(2)
    stamp('x1_pub')
    V.release(ACC); A.release(HB)
    if o['stop'] == 'g4':
        return finish(k, o, STP, nstamp, sJ, sW, sA, vt0, vt1, WS)

    EG = V.alloc(60, 4, 'eg')
    I(f'v_lshlrev_b32 {vt2}, 4, {vL31}')
    lp = k.newlabel('L_sc'); ld = k.newlabel('L_scd')
    I(f's_mov_b32 {sD}, 0')
    k.waitcnt(vm=0)
    k.label(lp)
    I(f's_mov_b32 {sA}, {sSC}')
    for t in range(15):
        I(f'buffer_load_dwordx4 {EG.t(4*t,4)}, {vt2}, {WS}, {sA} offen sc1\ns_add_u32 {sA}, {sA}, 8192')
    I(f's_mov_b64 {sM}, 0')
    k.waitcnt(vm=0)
    for t in range(15):
        lsk = k.newlabel('L_scs')
        I(f's_cmp_le_u32 {sT}, {t}\ns_cbranch_scc1 {lsk}')
        I(f'v_and_b32 {vt0}, {EG[4*t+1]}, {EG[4*t+3]}\nv_or_b32 {vt1}, {EG[4*t+1]}, {EG[4*t+3]}\nv_cmp_ne_u32 vcc, {vt0}, {vTAGV}\ns_or_b64 {sM}, {sM}, vcc\nv_cmp_ne_u32 vcc, {vt1}, {vTAGV}\ns_or_b64 {sM}, {sM}, vcc')
        k.label(lsk)
    k.waitcnt(vm=0)
    I(f's_add_u32 {sD}, {sD}, 1\ns_cmp_gt_u32 {sD}, {SPIN}\ns_cbranch_scc1 {ld}\ns_cmp_lg_u64 {sM}, 0\ns_cbranch_scc1 {lp}')
    k.label(ld)
    C0 = V.alloc(2, 2); C1 = V.alloc(2, 2)
    I(f'v_mov_b32 {C0[0]}, 0\nv_mov_b32 {C0[1]}, 0')
    lh = k.newlabel('L_hd')
    for t in range(15):
        I(f's_cmp_le_u32 {sT}, {t}\ns_cbranch_scc1 {lh}')
        I(f'v_fma_f32 {C1[0]}, {L128[0]}, {C0[0]}, {EG[4*t]}\nv_fma_f32 {C1[1]}, {L128[0]}, {C0[1]}, {EG[4*t+2]}')
        I(f'v_fma_f32 {C1[0]}, -{L128[1]}, {C0[1]}, {C1[0]}\nv_fma_f32 {C0[1]}, {L128[1]}, {C0[0]}, {C1[1]}\nv_mov_b32 {C0[0]}, {C1[0]}')
    k.label(lh)
    I(f'v_fmac_f32 {CIN[0]}, {LOWN[0]}, {C0[0]}\nv_fmac_f32 {CIN[1]}, {LOWN[0]}, {C0[1]}\nv_fma_f32 {CIN[0]}, -{LOWN[1]}, {C0[1]}, {CIN[0]}\nv_fmac_f32 {CIN[1]}, {LOWN[1]}, {C0[0]}')
    scan(CIN, out=True)
    HR = EG.sub(0, 16); HI = EG.sub(16, 16); PR = EG.sub(32, 8); PI = EG.sub(40, 8)
    for r in range(16):
        I(f'v_mul_f32 {HR[r]}, {CF[0]}, {ARE[r]}\nv_mul_f32 {HI[r]}, -{CF[0]}, {AIM[r]}')
    for r in range(16):
        I(f'v_fma_f32 {HR[r]}, -{CF[1]}, {AIM[r]}, {HR[r]}\nv_fma_f32 {HI[r]}, -{CF[1]}, {ARE[r]}, {HI[r]}')
    for i in range(8):
        I(f'v_cvt_pk_bf16_f32 {PR[i]}, {HR[2*i]}, {HR[2*i+1]}\nv_cvt_pk_bf16_f32 {PI[i]}, {HI[2*i]}, {HI[2*i+1]}')
    TRS = 80
    k.barrier()
    I(f'v_mul_u32_u24 {vt0}, {TRS}, {vL31}\nv_lshl_add_u32 {vt0}, {vH}, 5, {vt0}\nv_add_u32 {vt0}, {sSTG}, {vt0}')
    I(f'ds_write_b128 {vt0}, {PR.t(0,4)}\nds_write_b128 {vt0}, {PR.t(4,4)} offset:16\nds_write_b128 {vt0}, {PI.t(0,4)} offset:{32*TRS}\nds_write_b128 {vt0}, {PI.t(4,4)} offset:{32*TRS+16}')
    I(f'v_bfe_u32 {vt1}, {vL}, 2, 2\nv_lshl_add_u32 {vt1}, {vH}, 3, {vt1}\nv_mul_u32_u24 {vt1}, {TRS}, {vt1}\nv_and_b32 {vt0}, 1, {vL}\nv_lshl_add_u32 {vt1}, {vt0}, 5, {vt1}\nv_bfe_u32 {vt0}, {vL}, 4, 1\nv_lshl_add_u32 {vt1}, {vt0}, 4, {vt1}\nv_bfe_u32 {vt0}, {vL}, 1, 1\nv_lshl_add_u32 {vt1}, {vt0}, 3, {vt1}\nv_add_u32 {vt1}, {sSTG}, {vt1}')
    k.waitcnt(lg=0)
    HF = EG.sub(0, 16)
    for f in range(4):
        for rd in range(2):
            I(f'ds_read_b64_tr_b16 {HF.t(4*f+2*rd,2)}, {vt1} offset:{(16*f + 4*rd)*TRS}')
    I(f's_lshl_b32 {sA}, {sW}, 6\ns_lshl_b32 {sB}, {sJ}, 2\ns_add_u32 {sA}, {sA}, {sB}\ns_lshl_b32 {sA}, {sA}, 10\ns_add_u32 {sA}, {sA}, {sTB}\ns_add_u32 {sA}, {sA}, {O_HS}')
    stores([f'buffer_store_dwordx4 {HF.t(4*f,4)}, {vL16}, {WS}, {sA} offen offset:{f*1024}' for f in range(4)])
    k.wait_vm_tag('w3')
    publish(3)
    V.release(EG, C0, C1, CIN, ARE, AIM, LAM, CF, L128, LOWN)
    S.release(sSC)
    stamp('hs_pub')

    k.barrier()
    vW3r = V.alloc(4, 1, 'w3rd')
    for rd in range(2):
        I(f'v_bfe_u32 {vt0}, {vL}, 2, 2\nv_add_u32 {vt0}, {4*rd}, {vt0}\nv_bfe_u32 {vt1}, {vL}, 4, 1\nv_lshlrev_b32 {vt1}, 2, {vt1}\nv_xor_b32 {vt0}, {vt0}, {vt1}\nv_lshlrev_b32 {vt0}, 5, {vt0}\nv_and_b32 {vt1}, 3, {vL}\nv_lshl_add_u32 {vt0}, {vt1}, 3, {vt0}\nv_lshrrev_b32 {vt1}, 4, {vL}\nv_mul_u32_u24 {vt1}, 1792, {vt1}\nv_add_u32 {vW3r[rd]}, {vt0}, {vt1}')
        I(f'v_add_u32 {vW3r[2+rd]}, {8*7168}, {vW3r[rd]}')

    def w3read(dst, tile, s):
        hi = 2 if s >= 8 else 0
        off = (s % 8) * 7168 + tile * 256
        return [f'ds_read_b64_tr_b16 {dst.t(2*rd,2)}, {vW3r[hi+rd]} offset:{off}' for rd in range(2)]
    CS3 = V.alloc(28, 4, 'cs3'); WF = V.alloc(24, 4, 'wf5')
    vcs = V.alloc(2, 1)
    I(f's_mul_i32 {sA}, {sW}, {4*7168}\nv_add_u32 {vcs[0]}, {sA}, {vW3r[0]}\nv_add_u32 {vcs[1]}, {sA}, {vW3r[1]}')
    cj = [(t, s) for s in range(4) for t in range(7)]
    for i in range(len(cj) + 3):
        if i < len(cj):
            t, s = cj[i]; b = (i % 6) * 4
            for rd in range(2):
                I(f'ds_read_b64_tr_b16 {WF.t(b+2*rd,2)}, {vcs[rd]} offset:{s*7168 + t*256}')
        if i >= 3:
            t, s = cj[i-3]; b = ((i-3) % 6) * 4
            I(f'v_mfma_f32_16x16x32_bf16 {CS3.t(4*t,4)}, {WF.t(b,4)}, {ONES}, {CS3.t(4*t,4) if s else 0}')
    V.release(vcs, ONES)
    I(f'v_lshrrev_b32 {vt0}, 4, {vL}\nv_lshlrev_b32 {vt0}, 4, {vt0}\nv_add_u32 {vt1}, {sSTG}, {vt0}\nv_add_u32 {vt0}, {L_STG}, {vt0}')
    I('s_mov_b32 exec_lo, 0x00010001\ns_mov_b32 exec_hi, 0x00010001')
    for t in range(7):
        I(f'ds_write_b128 {vt1}, {CS3.t(4*t,4)} offset:{6144 + t*64}')
    I('s_mov_b64 exec, -1')
    k.barrier()
    ctmp = V.alloc(28, 4)
    for w in range(4):
        dst = CS3 if w == 0 else ctmp
        for t in range(7):
            I(f'ds_read_b128 {dst.t(4*t,4)}, {vt0} offset:{w*STGW + 6144 + t*64}')
        if w:
            for q in range(14):
                I(f'v_pk_add_f32 {CS3.t(2*q,2)}, {CS3.t(2*q,2)}, {ctmp.t(2*q,2)}')
    V.release(ctmp)
    stamp('cs3')

    I(f's_lshl_b32 {sB}, {sN32}, 1\ns_lshl_b32 {sA}, 0x33333333, {sB}\ns_bitcmp1_b32 {sW}, 1\ns_cselect_b32 {sM[0]}, 0, {sA}\ns_cselect_b32 {sM[1]}, {sA}, 0')
    vFo = V.alloc(1, name='frag16off')
    I(f'v_lshlrev_b32 {vt0}, 10, {vH}\nv_bfe_u32 {vt1}, {vL}, 4, 1\nv_lshl_add_u32 {vt0}, {vt1}, 9, {vt0}\nv_and_b32 {vt1}, 15, {vL}\nv_lshl_add_u32 {vFo}, {vt1}, 4, {vt0}')
    I(f's_lshl_b32 {sB0}, {sW}, 15\ns_add_u32 {sB0}, {sB0}, {sTB}\ns_add_u32 {sB0}, {sB0}, {O_X1}')
    I(f's_lshl_b32 {sB1}, {sW}, 12\ns_add_u32 {sB1}, {sB1}, {sTB}\ns_add_u32 {sB1}, {sB1}, {O_ST3}')
    I(f'v_lshrrev_b32 {vt2}, 4, {vL}\nv_lshlrev_b32 {vt2}, 10, {vt2}\nv_and_b32 {vt1}, 15, {vL}\nv_lshl_add_u32 {vt2}, {vt1}, 4, {vt2}')
    poll(2, sM)
    stamp('x1_seen')
    XA = A.alloc(128, 4, 'xa'); A5 = V.alloc(56, 4, 'acc5')
    SP = A5.sub(0, 16)
    for i in range(4):
        I(f'buffer_load_dwordx4 {SP.t(4*i,4)}, {vt2}, {WS}, {sB1} offen offset:{i*256} sc1')

    def xa_load(s):
        L = []
        if s % 2 == 0 and s:
            L.append(f's_add_u32 {sB0}, {sB0}, 4096')
        for u in range(2):
            L.append(f'buffer_load_dwordx4 {XA.t(8*s+4*u,4)}, {vFo}, {WS}, {sB0} offen offset:{(s%2)*2048 + u*256} sc1')
        return L
    PF5 = o.get('pf5', 6)
    for s in range(PF5):
        k.emit_all(xa_load(s))
    NM3 = V.alloc(4, 2, 'nm3'); RI3 = V.alloc(4, 2, 'ri3'); tq = V.alloc(4, 2)
    I(f'v_pk_add_f32 {SP.t(0,2)}, {SP.t(0,2)}, {SP.t(4,2)}\nv_pk_add_f32 {SP.t(2,2)}, {SP.t(2,2)}, {SP.t(6,2)}\nv_pk_add_f32 {SP.t(8,2)}, {SP.t(8,2)}, {SP.t(12,2)}\nv_pk_add_f32 {SP.t(10,2)}, {SP.t(10,2)}, {SP.t(14,2)}')
    I(f'v_pk_add_f32 {SP.t(0,2)}, {SP.t(0,2)}, {SP.t(8,2)}\nv_pk_add_f32 {SP.t(2,2)}, {SP.t(2,2)}, {SP.t(10,2)}')
    for u in range(2):
        sq = SP.sub(2*u, 2)
        k.emit_all(xswap(sq, tq, 16)); k.emit_all(xswap(sq, tq, 32))
        k.emit_all(finish_stats(sq, NM3[2*u], RI3[2*u], None, tq))
    V.release(tq)
    j5 = [(t, s) for s in range(16) for t in range(4)] + [(t, s) for s in range(16) for t in (4, 5)] + [(6, s) for s in range(16)]
    AH = 4
    main = []
    for i in range(AH):
        main += w3read(WF.sub((i % 6) * 4, 4), *j5[i])
    nxt = PF5
    for i, (t, s) in enumerate(j5):
        if i + AH < len(j5):
            main += w3read(WF.sub(((i + AH) % 6) * 4, 4), *j5[i + AH])
        if t == 0 and nxt < 16:
            main += xa_load(nxt); nxt += 1
        for u in range(2):
            acc = A5.t(8*t + 4*u, 4)
            main.append(f'v_mfma_f32_16x16x32_bf16 {acc}, {WF.t((i % 6)*4, 4)}, {XA.t(8*s+4*u,4)}, {acc if s else 0}')
    k.emit_all(main)
    stamp('g5_mfma')
    V.release(WF, vW3r); A.release(XA)
    sH = S.alloc(1, name='hbase')
    I(f's_mul_i32 {sH}, {sW}, 112\ns_mul_i32 {sA}, {sJ}, 7\ns_add_u32 {sH}, {sH}, {sA}\ns_lshl_b32 {sH}, {sH}, 10\ns_add_u32 {sH}, {sH}, {sTB}\ns_add_u32 {sH}, {sH}, {O_H}')
    GT = V.alloc(16, 2, 'gt5'); OP = V.alloc(8, 4, 'hout')

    def ep5(tiles):
        L = []
        for t in tiles:
            for u in range(2):
                for q in range(2):
                    r = A5.t(8*t+4*u+2*q, 2)
                    L.append(f'v_pk_fma_f32 {r}, {CS3.t(4*t+2*q,2)}, {NM3.t(2*u,2)}, {r} op_sel_hi:[1,0,1]')
        for t in tiles:
            for u in range(2):
                for q in range(2):
                    r = A5.t(8*t+4*u+2*q, 2)
                    L.append(f'v_pk_mul_f32 {r}, {r}, {RI3.t(2*u,2)} op_sel_hi:[1,0]')
        Z = A5.sub(8*tiles[0], 8*len(tiles))
        n = Z.n // 2
        for i in range(n): L.append(f'v_cvt_pk_bf16_f32 {GT[i]}, {Z[2*i]}, {Z[2*i+1]}')
        L += unpack(Z, GT.sub(0, n))
        if len(tiles) == 2:
            outs = [OP[4*u + 2*ti + q] for ti in range(2) for u in range(2) for q in range(2)]
        else:
            outs = [OP[2*u + q] for u in range(2) for q in range(2)]
        L += gelu_pairs(Z, n, GT, outs)
        return L
    for P_ in range(3):
        k.emit_all(ep5([2*P_, 2*P_+1]))
        if P_ == 2:
            I(f's_add_u32 {sH}, {sH}, 4096')
        stores([f'buffer_store_dwordx4 {OP.t(4*u,4)}, {vFo}, {WS}, {sH} offen offset:{(P_%2)*2048 + u*256}' for u in range(2)])
    k.emit_all(ep5([6]))
    I(f'v_lshlrev_b32 {vt0}, 9, {vH}\nv_and_b32 {vt1}, 15, {vL}\nv_lshl_add_u32 {vt0}, {vt1}, 4, {vt0}\nv_bfe_u32 {vt1}, {vL}, 4, 1\nv_lshl_add_u32 {vt0}, {vt1}, 3, {vt0}')
    stores([f'buffer_store_dwordx2 {OP.t(2*u,2)}, {vt0}, {WS}, {sH} offen offset:{2048 + u*256}' for u in range(2)])
    publish(4)
    stamp('h_pub')
    V.release(A5, GT, OP, CS3, NM3, RI3, vFo)
    S.release(sH)
    if o['stop'] == 'g5':
        return finish(k, o, STP, nstamp, sJ, sW, sA, vt0, vt1, WS)

    k.barrier()
    sBIG = S.alloc(1, name='bigstg')
    I(f's_mul_i32 {sBIG}, {sW}, 28672')
    vCo = V.alloc(4, 1, 'co')
    I(f'v_lshrrev_b32 {vt0}, 4, {vL}\nv_and_b32 {vt1}, 15, {vL}\nv_xor_b32 {vt1}, {vt1}, {vt0}\nv_lshlrev_b32 {vt1}, 4, {vt1}\nv_lshl_add_u32 {vCo[0]}, {vt0}, 10, {vt1}')
    for i in range(1, 4):
        I(f'v_xor_b32 {vCo[i]}, {64*i}, {vCo[0]}')
    vCr = V.alloc(1, name='crd')
    I(f'v_and_b32 {vt0}, 15, {vL}\nv_xor_b32 {vt0}, {vt0}, {vH}\nv_lshlrev_b32 {vt0}, 4, {vt0}\nv_lshl_add_u32 {vCr}, {vL31}, 8, {vt0}\nv_add_u32 {vCr}, {sBIG}, {vCr}')
    CR = A.alloc(64, 4, 'cfr')
    ACC2 = V.alloc(64, 4, 'acc2'); HB = A.alloc(64, 4, 'hsfr')
    I(f's_lshl_b32 {sB}, {sTH}, 1\ns_lshl_b32 {sA}, 0x3333, {sB}\ns_lshl_b32 {sC}, {sW}, 4\ns_mov_b32 {sM[0]}, {sA}\ns_mov_b32 {sM[1]}, 0\ns_lshl_b64 {sM}, {sM}, {sC}')
    act_base(sB0, sB1, O_HS, 64, 16)
    poll(3, sM)
    for mat in range(2):
        nm = 'CRE' if mat == 0 else 'CIM'
        for ni in range(2):
            I(f's_xor_b32 {sA}, {sN32}, {ni}\ns_lshl_b32 {sA}, {sA}, 5\ns_lshl_b32 {sB}, {sCG}, 6\ns_add_u32 {sA}, {sA}, {sB}\ns_lshl_b32 {sA}, {sA}, 10\ns_lshl_b32 {sB}, {sW}, 8\ns_add_u32 {sA}, {sA}, {sB}')
            for i in range(8):
                frow = 16*(i >> 2) + 8*(i & 1) + 4*((i >> 1) & 1)
                I(f's_add_u32 {sB}, {sA}, {frow*1024}\ns_add_u32 m0, {sBIG}, {ni*8192 + i*1024}\nbuffer_load_dwordx4 {vCo[i&3]}, {SRD[nm]}, {sB} offen lds #cdma')
        for jj in range(4):
            for e in range(2):
                for ti in range(2):
                    sb = sB0 if ti == 0 else sB1
                    I(f's_add_u32 {sA}, {sb}, {jj*4096}\nbuffer_load_dwordx4 {HB.t(16*jj+8*e+4*ti,4)}, {vL16}, {WS}, {sA} offen offset:{(2*mat+e)*1024} sc1')
        k.wait_vm_tag('cdma')
        for ksp in range(8):
            I(f'v_xor_b32 {vt0}, {32*ksp}, {vCr}')
            for ni in range(2):
                I(f'ds_read_b128 {CR.t(8*ksp+4*ni,4)}, {vt0} offset:{ni*8192}')
        for ksp in range(8):
            for ti in range(2):
                for ni in range(2):
                    acc = ACC2.sub(16*(2*ti+ni), 16)
                    I(f'v_mfma_f32_32x32x16_bf16 {acc}, {CR.t(8*ksp+4*ni,4)}, {HB.t(8*ksp+4*ti,4)}, {acc if (ksp or mat) else 0}')
        k.waitcnt(lg=0)
    V.release(vCo, vCr); A.release(CR, HB)
    reduce4(ACC2, ACC2.sub(16, 48))
    f1 = ACC2.sub(16, 16); f2 = ACC2.sub(32, 16); pp = ACC2.sub(48, 8)
    k.emit_all(unpack(f1, XNT)); k.emit_all(unpack(f2, DS))
    for i in range(8): I(f'v_pk_mul_f32 {f1.t(2*i,2)}, {f1.t(2*i,2)}, {f2.t(2*i,2)}')
    for i in range(8): I(f'v_cvt_pk_bf16_f32 {pp[i]}, {f1[2*i]}, {f1[2*i+1]}')
    k.emit_all(unpack(f1, pp))
    for i in range(8): I(f'v_pk_add_f32 {SS.t(2*i,2)}, {ACC2.t(2*i,2)}, {f1.t(2*i,2)}')
    V.release(ACC2)
    stamp('g2')

    W4R = A.at(0, 224, 'w4')
    I(f's_mul_i32 {sR}, {sW}, {448*1024}\ns_lshl_b32 {sA}, {sCG}, 7\ns_add_u32 {sR}, {sR}, {sA}')
    I(f's_sub_u32 {sA}, {sBIG}, {sSTG}')
    vRN2 = V.alloc(2, 1); vRP2 = V.alloc(2, 1)
    for ni in range(2):
        I(f'v_add_u32 {vRN2[ni]}, {sA}, {vRN[ni]}\nv_add_u32 {vRP2[ni]}, {sA}, {vRP[ni]}')
    oRN, oRP, oSTG = vRN, vRP, sSTG
    vRN, vRP = vRN2, vRP2

    def stage_dma2(nrows, ldsoff, tag):
        L = []
        for d in range(nrows // 8):
            L.append(f's_add_u32 m0, {sBIG}, {ldsoff + d*1024}\nbuffer_load_dwordx4 {vSTGo}, {SRD["W4"]}, {sR} offen lds #{tag}\ns_add_u32 {sR}, {sR}, 8192')
        return L

    def rd_nat2(dst, ldsoff):
        return [f'ds_read_b64_tr_b16 {dst.t(4*ni+2*rd,2)}, {vRN2[ni]} offset:{ldsoff + rd*512}' for ni in range(2) for rd in range(2)]

    def rd_pair2(dst, ldsoff):
        return [f'ds_read_b64_tr_b16 {dst.t(8*s+4*ni+2*rd,2)}, {vRP2[ni]} offset:{ldsoff + s*1024 + rd*2048}' for s in range(2) for ni in range(2) for rd in range(2)]
    for half in range(2):
        k.emit_all(stage_dma2(224, 0, 'w4'))
        k.wait_vm_tag('w4')
        for mb in range(2):
            base = (2*half + mb) * 56
            for P_ in range(3):
                k.emit_all(rd_pair2(W4R.sub(base + 16*P_, 16), mb*14336 + P_*4096))
            k.emit_all(rd_nat2(W4R.sub(base + 48, 8), mb*14336 + 12288))
        k.waitcnt(lg=0)
    act_base(sB0, sB1, O_H, 112, 28)
    poll(4, sM)
    stamp('h_seen')
    NBUF = o.get('nbuf6', 12)
    ACC6 = V.alloc(64, 4, 'acc6'); HB = V.alloc(8 * NBUF, 4, 'hfr')
    PF6 = o.get('pf6', NBUF - 1)
    main = []
    for ks in range(PF6):
        for ti in range(2):
            main += act_load(HB.t(8*(ks % NBUF)+4*ti, 4), ks, ti)
    for ks in range(28):
        if ks + PF6 < 28:
            for ti in range(2):
                main += act_load(HB.t(8*((ks+PF6) % NBUF)+4*ti, 4), ks+PF6, ti)
        for ti in range(2):
            for ni in range(2):
                acc = ACC6.sub(16*(2*ti+ni), 16)
                main.append(f'v_mfma_f32_32x32x16_bf16 {acc}, {W4R.t(8*ks+4*ni,4)}, {HB.t(8*(ks % NBUF)+4*ti,4)}, {acc if ks else 0}')
    k.emit_all(main)
    stamp('g6_mfma')
    reduce4(ACC6, ACC6.sub(16, 48))
    a0 = ACC6.sub(0, 16); f1 = ACC6.sub(16, 16); e_ = ACC6.sub(32, 16); pp = ACC6.sub(48, 8); NL = ACC6.sub(56, 2)
    I(f'v_mov_b32 {NL[0]}, {hx(-LOG2E)}')
    for i in range(8): I(f'v_cvt_pk_bf16_f32 {pp[i]}, {a0[2*i]}, {a0[2*i+1]}')
    k.emit_all(unpack(a0, pp)); k.emit_all(unpack(f1, X1P))
    for i in range(8): I(f'v_pk_add_f32 {a0.t(2*i,2)}, {a0.t(2*i,2)}, {f1.t(2*i,2)}')
    for i in range(8): I(f'v_cvt_pk_bf16_f32 {pp[i]}, {a0[2*i]}, {a0[2*i+1]}')
    k.emit_all(unpack(a0, pp))
    for i in range(8): I(f'v_pk_mul_f32 {e_.t(2*i,2)}, {a0.t(2*i,2)}, {NL} op_sel_hi:[1,0]')
    for i in range(16): I(f'v_exp_f32 {e_[i]}, {e_[i]}')
    for i in range(8): I(f'v_pk_add_f32 {e_.t(2*i,2)}, {e_.t(2*i,2)}, {gONE} op_sel_hi:[1,0]')
    for i in range(16): I(f'v_rcp_f32 {e_[i]}, {e_[i]}')
    for i in range(8): I(f'v_pk_mul_f32 {a0.t(2*i,2)}, {a0.t(2*i,2)}, {e_.t(2*i,2)}')
    for i in range(8): I(f'v_cvt_pk_bf16_f32 {pp[i]}, {a0[2*i]}, {a0[2*i+1]}')
    k.emit_all(unpack(a0, pp)); k.emit_all(unpack(f1, XT))
    for i in range(8): I(f'v_pk_fma_f32 {a0.t(2*i,2)}, {a0.t(2*i,2)}, {SS.t(2*i,2)}, {f1.t(2*i,2)}')
    I(f'v_lshlrev_b32 {vt0}, 11, {vTAU}\nv_lshl_add_u32 {vt0}, {vH}, 5, {vt0}\ns_lshl_b32 {sA}, {sROW}, 11\ns_lshl_b32 {sB}, {sCOL}, 2\ns_add_u32 {sA}, {sA}, {sB}')
    for q in range(4):
        I(f'buffer_store_dwordx4 {a0.t(4*q,4)}, {vt0}, {SRD["OUT"]}, {sA} offen offset:{(q>>1)*64 + (q&1)*16}')
    stamp('end')
    return finish(k, o, STP, nstamp, sJ, sW, sA, vt0, vt1, WS)


def finish(k, o, STP, nstamp, sJ, sW, sA, vt0, vt1, WS):
    I = k.I
    if o['stamps']:
        i = nstamp[0]
        I(f'v_writelane_b32 {k.vSTP}, {STP[2 * ((i - 1) & 1)]}, {i - 1}')
        I(f's_lshl_b32 {sA}, s2, 2\ns_add_u32 {sA}, {sA}, {sW}\ns_lshl_b32 {sA}, {sA}, 7\ns_add_u32 {sA}, {sA}, {O_DBG}\nv_and_b32 {vt1}, 63, v0\nv_lshlrev_b32 {vt1}, 2, {vt1}\ns_mov_b64 exec, 0xffffffff')
        I(f'buffer_store_dword {k.vSTP}, {vt1}, {WS}, {sA} offen')
    k.label('L_end')
    k.raw('  s_endpgm')
    body = k.lines + k.tail
    return body, k


def layout(body, k):
    import subprocess, re, os
    foot = f'''.section .rodata,"a"
.p2align 6
.amdhsa_kernel {KNAME}
  .amdhsa_next_free_vgpr 512
  .amdhsa_next_free_sgpr 102
  .amdhsa_accum_offset 256
  .amdhsa_group_segment_fixed_size 0
  .amdhsa_kernarg_size 136
  .amdhsa_user_sgpr_count 2
  .amdhsa_user_sgpr_kernarg_segment_ptr 1
  .amdhsa_system_sgpr_workgroup_id_x 1
.end_amdhsa_kernel
'''
    lines = '\n'.join(body).split('\n')
    probe = []
    start = next(i for i, l in enumerate(lines) if l.startswith(KNAME + ':'))
    for i, l in enumerate(lines):
        if i > start:
            probe.append(f'PB_{i}:')
        probe.append(l)
    stubs = '\n'.join(f'L_stub{w}:' for w in range(4))
    open('probe.s', 'w').write('\n'.join(probe) + f'\nPB_end:\n{stubs}\nL_codeend:\n' + foot)
    r = subprocess.run(['clang', '-x', 'assembler', '-target', 'amdgcn-amd-amdhsa', '-mcpu=gfx950', '-c', 'probe.s', '-o', 'probe.o'], capture_output=True, text=True)
    if r.returncode:
        print(r.stderr[:4000]); raise SystemExit(1)
    sy = subprocess.run(['nm', 'probe.o'], capture_output=True, text=True).stdout
    off = {}
    for l in sy.split('\n'):
        p = l.split()
        if len(p) == 3 and p[2].startswith('PB_'):
            off[p[2][3:]] = int(p[0], 16)
    idx = sorted(int(x) for x in off if x != 'end')
    size = {}
    for a, b in zip(idx, idx[1:] + ['end']):
        size[a] = off[str(b)] - off[str(a)]
    out = lines[:start + 1]
    pos = 0
    page = 1
    marks = []
    retline = next(i for i, l in enumerate(lines) if l.startswith('L_stubret'))
    for i in idx:
        sz = size[i]
        if pos >= page * 4096 and i > retline + 1 and sz > 0 and okstub(lines, i):
            marks.append(len(out)); out.append(None); pos += 4
            page = pos // 4096 + 1
        out.append(lines[i]); pos += sz
    n = len(marks)
    for j, m in enumerate(marks):
        nxt = f'L_stub{j + 4}' if j + 4 < n else 'L_stubret'
        out[m] = f'L_stub{j}:\n  s_cbranch_execz {nxt}'
    extra = ''.join(f'L_stub{j}:\n  s_branch L_stubret\n' for j in range(n, 4))
    return '\n'.join(out) + '\n' + extra + 'L_codeend:\n' + foot, pos


def okstub(lines, i):
    return True


if __name__ == '__main__':
    import json
    opts = json.loads(sys.argv[2]) if len(sys.argv) > 2 else {}
    body, k = gen(opts)
    txt, size = layout(body, k)
    open(sys.argv[1], 'w').write(txt)
    print('code bytes', size, 'vpeak', k.V.peak, 'apeak', k.A.peak, 'speak', k.S.peak, k.stat, k.stampnames)
```

```python
import re

TRANS = ('v_exp_f32', 'v_log_f32', 'v_rcp_f32', 'v_rsq_f32', 'v_sqrt_f32', 'v_sin_f32', 'v_cos_f32', 'v_rcp_iflag_f32')
REG_RE = re.compile(r'(?<![\w.])(-?\|?|abs\()?([vas])(?:(\d+)|\[(\d+):(\d+)\])(?![\w])')


def regs_of(op):
    op = op.strip()
    out = []
    if op in ('vcc',):
        return [('s', 106), ('s', 107)]
    if op == 'vcc_lo':
        return [('s', 106)]
    if op == 'vcc_hi':
        return [('s', 107)]
    if op == 'exec':
        return [('x', 0)]
    if op == 'm0':
        return [('m', 0)]
    for m in REG_RE.finditer(op):
        k = m.group(2)
        if m.group(3) is not None:
            out.append((k, int(m.group(3))))
        else:
            out += [(k, i) for i in range(int(m.group(4)), int(m.group(5)) + 1)]
    return out


def split_ops(s):
    ops, depth, cur = [], 0, ''
    for ch in s:
        if ch in '[(':
            depth += 1
        if ch in '])':
            depth -= 1
        if ch == ',' and depth == 0:
            ops.append(cur.strip()); cur = ''
        else:
            cur += ch
    if cur.strip():
        ops.append(cur.strip())
    return ops


class Ins:
    __slots__ = ('text', 'op', 'cls', 'dst', 'src', 'srcc', 'passes', 'wide', 'lds', 'tag', 'dpp')


def parse(text):
    t = text.strip()
    tag = None
    if '#' in t:
        t, tag = t.split('#', 1)
        t = t.strip(); tag = tag.strip()
    sp = t.split(None, 1)
    op = sp[0]
    rest = sp[1] if len(sp) > 1 else ''
    ops = split_ops(rest)
    mods = ''
    if ops:
        last = ops[-1]
        depth = 0; cut = None
        for i, ch in enumerate(last):
            if ch in '[(':
                depth += 1
            if ch in '])':
                depth -= 1
            if ch == ' ' and depth == 0:
                cut = i; break
        if cut is not None:
            mods = last[cut:]; ops[-1] = last[:cut]
    I = Ins(); I.text = t; I.op = op; I.tag = tag; I.srcc = []; I.passes = 0; I.wide = False; I.lds = False
    I.dpp = ('row_' in mods or 'quad_perm' in mods or 'wave_' in mods)
    R = [regs_of(o) for o in ops]
    flat = lambda L: [r for x in L for r in x]
    base = op.replace('_e32', '').replace('_e64', '').replace('_dpp', '')
    if base.startswith('v_mfma'):
        I.cls = 'mfma'; I.dst = R[0]; I.src = R[1] + R[2]; I.srcc = R[3]
        I.passes = 8 if '32x32' in base else 4
    elif base.startswith('v_'):
        I.cls = 'trans' if base in TRANS else 'valu'
        if base.startswith('v_permlane') and 'swap' in base:
            I.cls = 'perm'; I.dst = R[0] + R[1]; I.src = R[0] + R[1]
        elif base.startswith('v_cmp'):
            I.dst = R[0]; I.src = flat(R[1:])
        elif base in ('v_add_co_u32', 'v_sub_co_u32', 'v_addc_co_u32', 'v_subb_co_u32', 'v_mad_u64_u32', 'v_div_scale_f32'):
            I.dst = R[0] + R[1]; I.src = flat(R[2:])
        elif base in ('v_fmac_f32', 'v_pk_fmac_f16', 'v_dot2c_f32_bf16', 'v_writelane_b32'):
            I.dst = R[0]; I.src = flat(R)
        elif base in ('v_readlane_b32', 'v_readfirstlane_b32'):
            I.cls = 'rdlane'; I.dst = R[0]; I.src = flat(R[1:])
        else:
            I.dst = R[0]; I.src = flat(R[1:])
            if base == 'v_cndmask_b32' and len(ops) == 3:
                I.src = I.src + [('s', 106), ('s', 107)]
            if I.dpp:
                I.src = I.src + R[0]
    elif base.startswith('ds_'):
        I.cls = 'ds'
        if base.startswith('ds_read') or base.startswith('ds_bpermute') or base.startswith('ds_permute') or base.startswith('ds_swizzle'):
            I.dst = R[0]; I.src = flat(R[1:])
        else:
            I.dst = []; I.src = flat(R)
    elif base.startswith('buffer_') or base.startswith('global_'):
        I.cls = 'vmem'
        I.lds = (' lds' in (mods + ' ')) and re.search(r'\blds\b', mods) is not None or '_lds_' in base
        if 'load' in base and not I.lds:
            I.dst = R[0]; I.src = flat(R[1:])
        elif 'atomic' in base and 'sc0' in mods:
            I.dst = R[0]; I.src = flat(R)
        else:
            I.dst = []; I.src = flat(R)
            if I.lds:
                I.src = I.src + [('m', 0)]
            if 'store' in base and ('x4' in base or 'x3' in base):
                I.wide = R[0] if base.startswith('buffer_') else R[1]
    elif base.startswith('s_load') or base in ('s_memtime', 's_memrealtime'):
        I.cls = 'smem'; I.dst = R[0]; I.src = flat(R[1:])
    elif base in ('s_waitcnt', 's_nop', 's_barrier', 's_endpgm', 's_branch', 's_setprio', 's_sleep') or base.startswith('s_cbranch'):
        I.cls = 'ctl'; I.dst = []; I.src = []
        if 'vcc' in base:
            I.src = [('s', 106), ('s', 107)]
    elif base.startswith('s_cmp') or base.startswith('s_bitcmp'):
        I.cls = 'salu'; I.dst = []; I.src = flat(R)
    elif base.startswith('s_'):
        I.cls = 'salu'; I.dst = R[0] if R else []; I.src = flat(R[1:])
        if 'saveexec' in base:
            I.dst = I.dst + [('x', 0)]
        if base in ('s_addk_i32', 's_mulk_i32'):
            I.src = I.src + R[0]
    else:
        raise ValueError('cannot parse ' + text)
    return I


class Reg:
    def __init__(self, kind, base, n, name=''):
        self.k = kind; self.b = base; self.n = n; self.name = name

    def __getitem__(self, i):
        if isinstance(i, slice):
            a = i.start or 0
            e = i.stop if i.stop is not None else self.n
            assert 0 <= a < e <= self.n, (self.name, a, e, self.n)
            if e - a == 1:
                return f'{self.k}{self.b + a}'
            return f'{self.k}[{self.b + a}:{self.b + e - 1}]'
        assert 0 <= i < self.n, (self.name, i, self.n)
        return f'{self.k}{self.b + i}'

    def t(self, i, n):
        return self[i:i + n]

    def sub(self, i, n):
        assert i + n <= self.n
        return Reg(self.k, self.b + i, n, self.name + f'+{i}')

    def __str__(self):
        return self[0:self.n]


class Pool:
    def __init__(self, kind, lo, hi):
        self.live = {}; self.k = kind; self.free = [True] * hi; self.lo = lo; self.hi = hi; self.peak = 0
        for i in range(lo):
            self.free[i] = False

    def alloc(self, n, align=1, name='', top=None):
        rng = range(0, self.hi - n + 1, align)
        if top is None:
            top = (self.k == 'v' and n >= 16)
        if top:
            rng = reversed(rng)
        for b in rng:
            if all(self.free[b:b + n]):
                for i in range(b, b + n):
                    self.free[i] = False
                self.peak = max(self.peak, b + n)
                self.live[b] = (n, name)
                return Reg(self.k, b, n, name)
        print(sorted((b, v) for b, v in self.live.items() if not self.free[b]))
        raise RuntimeError(f'out of {self.k} regs for {name} n={n}; free={sum(self.free)}')

    def at(self, b, n, name=''):
        if not all(self.free[b:b + n]):
            print('LIVE', self.dump())
            raise AssertionError((name, b, n))
        for i in range(b, b + n):
            self.free[i] = False
        self.peak = max(self.peak, b + n)
        self.live[b] = (n, name)
        return Reg(self.k, b, n, name)

    def dump(self):
        out = []
        i = 0
        while i < self.hi:
            if not self.free[i]:
                n, nm = self.live.get(i, (1, '?'))
                out.append((i, n, nm)); i += n
            else:
                i += 1
        return out

    def release(self, *rs):
        for r in rs:
            for i in range(r.b, r.b + r.n):
                assert not self.free[i], ('double free', r.name)
                self.free[i] = True

    def nfree(self):
        return sum(self.free)


class Asm:
    def __init__(self):
        self.lines = []
        self.pos = 0
        self.lastw = {}
        self.lastc = {}
        self.lastst = {}
        self.vm = []
        self.lg = []
        self.sm = set()
        self.smn = 0
        self.V = Pool('v', 1, 256)
        self.A = Pool('a', 0, 256)
        self.S = Pool('s', 3, 102)
        self.nlab = 0
        self.tail = []
        self.stat = {}

    def raw(self, text):
        self.lines.append(text)

    def label(self, name):
        self.lines.append(name + ':')

    def newlabel(self, p='L'):
        self.nlab += 1
        return f'{p}_{self.nlab}'

    def _emit(self, text, n=1):
        self.lines.append('  ' + text)
        self.pos += n

    def nop(self, n):
        while n > 0:
            k = min(n, 16)
            self._emit(f's_nop {k - 1}', k)
            n -= k

    def waitcnt(self, vm=None, lg=None):
        parts = []
        if vm is not None and len(self.vm) > vm:
            if vm <= 63:
                parts.append(f'vmcnt({vm})')
            self.vm = self.vm[len(self.vm) - vm:] if vm > 0 else []
        if lg is not None and (len(self.lg) > lg or self.smn):
            if self.smn:
                lg = 0
            if lg <= 15:
                parts.append(f'lgkmcnt({lg})')
            self.lg = self.lg[len(self.lg) - lg:] if lg > 0 else []
            if lg == 0:
                self.sm = set(); self.smn = 0
        if parts:
            self._emit('s_waitcnt ' + ' '.join(parts))

    def wait_vm_tag(self, tag):
        idx = [i for i, (r, t) in enumerate(self.vm) if t == tag]
        if idx:
            self.waitcnt(vm=len(self.vm) - 1 - idx[-1])

    def wait_lg_tag(self, tag):
        idx = [i for i, (r, t) in enumerate(self.lg) if t == tag]
        if idx:
            self.waitcnt(lg=len(self.lg) - 1 - idx[-1])

    def barrier(self):
        self.waitcnt(lg=0)
        self._emit('s_barrier')

    def fence(self, n=13):
        self.nop(n)
        self.lastw = {}; self.lastc = {}; self.lastst = {}

    def I(self, text):
        for t in text.split('\n'):
            t = t.strip()
            if not t or t.startswith(';'):
                continue
            if t.endswith(':'):
                self.lines.append(t); continue
            if t.startswith('@'):
                self.directive(t); continue
            self._one(parse(t))

    def directive(self, t):
        p = t[1:].split()
        if p[0] == 'barrier':
            self.barrier()
        elif p[0] == 'waitvm':
            self.wait_vm_tag(p[1])
        elif p[0] == 'waitlg':
            self.wait_lg_tag(p[1])
        elif p[0] == 'vm0':
            self.waitcnt(vm=0)
        elif p[0] == 'lg0':
            self.waitcnt(lg=0)
        elif p[0] == 'call':
            self.calls[p[1]](self)
        else:
            raise ValueError(t)

    def emit_all(self, L):
        for t in L:
            if callable(t):
                t(self)
            else:
                self.I(t)

    def _one(self, I):
        touched = set(I.src) | set(I.dst) | set(I.srcc)
        needvm = None
        for i, (r, t) in enumerate(self.vm):
            if r & touched:
                needvm = len(self.vm) - 1 - i
        needlg = None
        for i, (r, t) in enumerate(self.lg):
            if r & touched:
                if I.cls == 'ds' and not (r & set(I.src)):
                    continue
                needlg = len(self.lg) - 1 - i
        if self.sm & touched:
            needlg = 0
        if needvm is not None or needlg is not None:
            self.waitcnt(vm=needvm, lg=needlg)
        need = 0
        isv = I.cls in ('valu', 'trans', 'perm', 'rdlane')

        def req(p, n):
            nonlocal need
            need = max(need, p + n + 1)
        for r in set(I.src) | set(I.srcc):
            w = self.lastw.get(r)
            if not w:
                continue
            cls, p, passes, key = w
            wv = cls in ('valu', 'trans', 'perm', 'rdlane')
            if cls == 'mfma':
                if I.cls == 'mfma' and r in I.srcc and r not in I.src:
                    if key == (tuple(I.srcc), I.passes):
                        pass
                    else:
                        req(p, 10 if passes == 8 else 6)
                else:
                    req(p, 12 if passes == 8 else 8)
            elif wv and r[0] in 'va':
                if I.cls == 'mfma':
                    req(p, 2)
                elif I.cls == 'perm' or I.dpp:
                    req(p, 2)
                elif I.cls == 'rdlane':
                    req(p, 1)
                elif cls == 'trans' and I.cls != 'trans':
                    req(p, 1)
            elif wv and r[0] == 's':
                if isv:
                    req(p, 4 if I.cls == 'rdlane' else 2)
                elif I.cls == 'vmem':
                    req(p, 5)
                else:
                    req(p, 2)
            elif cls == 'salu' and r[0] == 'm':
                req(p, 1)
        for r in I.dst:
            w = self.lastw.get(r)
            if w and w[0] == 'mfma':
                cls, p, passes, key = w
                if I.cls == 'mfma' and key == (tuple(I.dst), I.passes):
                    pass
                else:
                    req(p, 12 if passes == 8 else 8)
            c = self.lastc.get(r)
            if c and I.cls != 'mfma':
                req(c[0], 7 if c[1] == 8 else 3)
            s = self.lastst.get(r)
            if s is not None:
                req(s, 2)
        if need > self.pos:
            self.nop(need - self.pos)
        p = self.pos
        n = 1
        if I.op == 's_nop':
            n = int(I.text.split()[1], 0) + 1
        self._emit(I.text, n)
        self.stat[I.cls] = self.stat.get(I.cls, 0) + 1
        for r in I.dst:
            self.lastw[r] = (I.cls, p, I.passes, (tuple(I.dst), I.passes))
        if I.cls == 'mfma':
            for r in I.srcc:
                self.lastc[r] = (p, I.passes)
        if I.wide:
            for r in I.wide:
                self.lastst[r] = p
        if I.cls == 'vmem':
            self.vm.append((set(I.dst), I.tag))
            assert len(self.vm) <= 200
        elif I.cls == 'ds':
            self.lg.append((set(I.dst), I.tag))
        elif I.cls == 'smem':
            self.sm |= set(I.dst); self.smn += 1
        elif I.op == 's_waitcnt':
            m = re.search(r'vmcnt\((\d+)\)', I.text)
            if m:
                k = int(m.group(1)); self.vm = self.vm[len(self.vm) - k:] if k and len(self.vm) > k else (self.vm if k else [])
            m = re.search(r'lgkmcnt\((\d+)\)', I.text)
            if m:
                k = int(m.group(1)); self.lg = self.lg[len(self.lg) - k:] if k and len(self.lg) > k else (self.lg if k else [])
                if k == 0:
                    self.sm = set(); self.smn = 0

    def text(self):
        return '\n'.join(self.lines + self.tail) + '\n'


class Anchor:
    def __init__(self, fn):
        self.fn = fn

    def __call__(self, k):
        self.fn(k)


def is_anchor(t):
    return isinstance(t, Anchor) or (isinstance(t, str) and t.lstrip().startswith('v_mfma'))


def merge(main, fill, every=1, per=1, start=0, tail=True):
    out = []
    fi = 0
    k = 0
    acc = 0.0
    for t in main:
        out.append(t)
        if is_anchor(t):
            k += 1
            if k > start and (k - start) % every == 0:
                acc += per
                while acc >= 1.0 - 1e-9:
                    acc -= 1.0
                    if fi < len(fill):
                        out.append(fill[fi]); fi += 1
    if tail:
        out += fill[fi:]
        return out
    return out, fill[fi:]


class Quads:
    def __init__(self):
        self.free = []
        self.map = {}

    def add(self, reg):
        for i in range(0, reg.n, 4):
            self.free.append(reg.sub(i, 4))

    def take(self, key):
        assert key not in self.map, key
        if not self.free:
            raise RuntimeError(f'no free quad for {key}')
        q = self.free.pop(0)
        self.map[key] = q
        return q

    def __getitem__(self, key):
        return self.map[key]

    def has(self, key):
        return key in self.map

    def give(self, key):
        self.free.append(self.map.pop(key))

    def remove(self, reg):
        want = {(reg.k, reg.b + i) for i in range(0, reg.n, 4)}
        keep = [q for q in self.free if (q.k, q.b) not in want]
        assert len(self.free) - len(keep) == len(want), ('quads busy', reg.k, reg.b, reg.n)
        self.free = keep
```

```python
import sys, struct, math
sys.path.insert(0, 'work')
from asmb import *

KNAME = 'recurrent_scan__ssm_conv_s5__mixer_s_mlp__prompt_kernel'
HDR = open('recurrent_scan__ssm_conv_s5__mixer_s_mlp__prompt.s.ref').read().split('; @launch')[0]

def f2u(x):
    return struct.unpack('<I', struct.pack('<f', x))[0]
def hx(x):
    return '0x%08x' % f2u(x)

TS = 0x120000
O_XN, O_H1, O_X1, O_HS, O_H = 0x0, 0x20000, 0x40000, 0x60000, 0xA0000
O_ST2, O_ST3, O_FLG, O_IDS = 0x110000, 0x111000, 0x118000, 0x119000
O_SCAN = 0x1400000
O_EPOCH = 0x1480000
O_WTF = 0x14C0000
O_WT = 0x1500000
WTS = 104 * 1024
O_DBG = 0x1900000
L_BB, BROW = 0, 1040
L_W1 = 66560
L_MISC = 99328
L_STX = L_MISC
L_HALO = L_MISC + 1280
L_HRED = L_MISC + 5376
L_UP = 106496
L_STG = 57344
STGW = 12288
L_SEG = L_HALO
LDS_BYTES = 163840
SPIN = 50000

LOG2E = 1.4426950408889634
GC0 = -2.0 * math.sqrt(2.0 / math.pi) * LOG2E
GC1 = GC0 * 0.044715


class Ctx:
    pass


def gen(opts=None):
    o = dict(stamps=False, stop=None)
    o.update(opts or {})
    k = Asm()
    I = k.I
    V, A, S = k.V, k.A, k.S
    k.raw(HDR.rstrip('\n'))
    k.raw(f'; @launch grid=(256,1,1) block=(256,1,1) lds={LDS_BYTES}')
    k.raw('.amdgcn_target "amdgcn-amd-amdhsa--gfx950"\n.text\n.globl %s\n.p2align 12\n.type %s,@function\n%s:' % (KNAME, KNAME, KNAME))

    KA = S.at(16, 16, 'ka0'); KB = S.at(32, 16, 'ka1'); KW = S.at(48, 2, 'kaws')
    names = ['X', 'BRE', 'BIM', 'CRE', 'CIM', 'W1', 'W2', 'W3', 'W4', 'OUT', 'WS', 'DSK']
    SRD = {n: S.at(52 + 4 * i, 4, n) for i, n in enumerate(names)}
    sT, sJ, sW, sTB, sTAG, sSLOW = [S.alloc(1, name=n) for n in ('T', 'J', 'W', 'TB', 'TAG', 'SLOW')]
    sA, sB, sC, sD = [S.alloc(1, name=f'tmp{i}') for i in range(4)]
    sXCC = S.alloc(1, name='xcc')
    sM = S.at(50, 2, 'mask')
    sEP = S.alloc(1, name='epoch')

    nstamp = [0]
    c = Ctx(); c.STP = None; c.vSTP = None

    def stamp(name):
        if o['stamps']:
            i = nstamp[0]; nstamp[0] += 1
            if i:
                I(f'v_writelane_b32 {c.vSTP}, {c.STP[2 * ((i - 1) & 1)]}, {i - 1}')
            I(f's_memtime {c.STP.t(2 * (i & 1), 2)}')
            k.stampnames.append(name)
    k.stampnames = []

    I('s_cmp_ge_u32 s2, 256')
    I('s_cbranch_scc1 L_end')
    I(f's_load_dwordx16 {KA}, s[0:1], 0')
    I(f's_load_dwordx16 {KB}, s[0:1], 64')
    I(f's_load_dwordx2 {KW}, s[0:1], 128')
    I(f's_getreg_b32 {sXCC}, hwreg(HW_REG_XCC_ID)')
    I(f's_and_b32 {sXCC}, {sXCC}, 15')
    vL = V.alloc(1, name='lane'); vt0 = V.alloc(1); vt1 = V.alloc(1); vt2 = V.alloc(1); vt3 = V.alloc(1)
    I(f'v_and_b32 {vL}, 63, v0')
    I(f'v_lshrrev_b32 {vt0}, 6, v0')
    I(f'v_readfirstlane_b32 {sW}, {vt0}')
    I(f's_and_b32 {sT}, s2, 7\ns_lshl_b32 {sT}, {sT}, 1\ns_lshr_b32 {sA}, s2, 7\ns_add_u32 {sT}, {sT}, {sA}')
    I(f's_lshr_b32 {sJ}, s2, 3\ns_and_b32 {sJ}, {sJ}, 15')
    I(f's_mul_i32 {sTB}, {sT}, {TS}')
    vL31 = V.alloc(1, name='l31'); vH = V.alloc(1, name='h'); vL16 = V.alloc(1, name='lane*16')
    vTAU = V.alloc(1, name='tau'); vMASK = V.alloc(1, name='hi16mask'); vTAGV = V.alloc(1, name='tagv'); vZERO = V.alloc(1, name='zero')
    vREDw = V.alloc(3, 1, 'redw'); vREDr = V.alloc(1, name='redr'); vFLG = V.alloc(1, name='flagoff'); vLN = V.alloc(2, 1, 'lane16^nt')
    GK = V.alloc(6, 2, 'gk')
    if o['stamps']:
        c.vSTP = V.alloc(1, name='stamps')
    X1P = V.alloc(8, 4, 'x1p'); XNT = V.alloc(8, 4, 'xnt')
    vP8 = V.alloc(1, name='p8'); vQ8 = V.alloc(1, name='q8')
    I(f'v_and_b32 {vP8}, 7, {vL}\nv_lshrrev_b32 {vQ8}, 3, {vL}\nv_and_b32 {vL31}, 31, {vL}\nv_lshrrev_b32 {vH}, 5, {vL}\nv_lshlrev_b32 {vL16}, 4, {vL}')
    vXo = V.alloc(1); vHo = V.alloc(1)
    I(f'v_lshrrev_b32 {vt0}, 2, {vP8}\nv_lshlrev_b32 {vt0}, 4, {vt0}\nv_and_b32 {vt1}, 3, {vP8}\nv_add_u32 {vt0}, {vt0}, {vt1}\nv_lshlrev_b32 {vt0}, 10, {vt0}')
    I(f'v_lshl_add_u32 {vXo}, {vQ8}, 4, {vt0}')
    I(f'v_and_b32 {vt1}, 1, {vP8}\nv_lshlrev_b32 {vt1}, 10, {vt1}\nv_lshl_add_u32 {vHo}, {vQ8}, 4, {vt1}')
    I(f's_lshl_b32 {sA}, {sT}, 7\ns_lshr_b32 {sB}, {sJ}, 2\ns_lshl_b32 {sB}, {sB}, 5\ns_add_u32 {sA}, {sA}, {sB}\ns_and_b32 {sB}, {sJ}, 3\ns_lshl_b32 {sB}, {sB}, 2\ns_add_u32 {sA}, {sA}, {sB}\ns_lshl_b32 {sA}, {sA}, 10\ns_lshl_b32 {sB}, {sW}, 8\ns_add_u32 {sA}, {sA}, {sB}')
    I(f's_bitcmp1_b32 {sJ}, 2\ns_cselect_b32 {sC}, 128, -2\ns_lshl_b32 {sD}, {sT}, 7\ns_add_u32 {sC}, {sC}, {sD}\ns_lshl_b32 {sC}, {sC}, 10\ns_add_u32 {sC}, {sC}, {sB}')
    I(f's_mov_b32 {sD}, {O_EPOCH}')

    def srd(name, lo, size):
        r = SRD[name]
        I(f's_mov_b32 {r[0]}, {lo[0]}\ns_and_b32 {r[1]}, {lo[1]}, 0xffff\ns_mov_b32 {r[2]}, {size}\ns_mov_b32 {r[3]}, 0x20000')
    srd('X', KA.sub(0, 2), 0x200000)
    I(f's_load_dword {sEP}, {KW}, {sD}')
    XP = V.alloc(8, 4, 'xp'); HP = V.alloc(8, 4, 'hp')
    I(f'buffer_load_dwordx4 {XP.t(0,4)}, {vXo}, {SRD["X"]}, {sA} offen')
    I(f'buffer_load_dwordx4 {XP.t(4,4)}, {vXo}, {SRD["X"]}, {sA} offen offset:128')
    I(f'buffer_load_dwordx4 {HP.t(0,4)}, {vHo}, {SRD["X"]}, {sC} offen')
    I(f'buffer_load_dwordx4 {HP.t(4,4)}, {vHo}, {SRD["X"]}, {sC} offen offset:128')
    V.release(vXo, vHo)
    srd('W1', KB.sub(4, 2), 0x80000)
    vW1o = V.alloc(1, name='w1o')
    I(f'v_lshrrev_b32 {vt0}, 2, {vL}\nv_lshlrev_b32 {vt0}, 10, {vt0}\nv_and_b32 {vt1}, 3, {vL}\nv_lshl_add_u32 {vW1o}, {vt1}, 4, {vt0}')
    I(f's_lshl_b32 {sA}, {sW}, 17\ns_lshl_b32 {sB}, {sJ}, 6\ns_add_u32 {sA}, {sA}, {sB}\ns_lshl_b32 {sB}, {sW}, 13\ns_add_u32 m0, {sB}, {L_W1}')
    for i in range(8):
        I(f'buffer_load_dwordx4 {vW1o}, {SRD["W1"]}, {sA} offen lds #wdma')
        if i < 7:
            I(f's_add_u32 {sA}, {sA}, 16384\ns_add_u32 m0, m0, 1024')
    srd('WS', KW, 0x10000000)
    srd('BRE', KA.sub(6, 2), 0x80000); srd('BIM', KA.sub(8, 2), 0x80000)
    srd('W2', KB.sub(6, 2), 0x80000)
    srd('CRE', KA.sub(10, 2), 0x80000); srd('CIM', KA.sub(12, 2), 0x80000)
    srd('W3', KB.sub(8, 2), 1835008); srd('W4', KB.sub(10, 2), 1835008)
    srd('OUT', KB.sub(12, 2), 0x400000)
    srd('DSK', KB.sub(0, 2), 1024)
    WS = SRD['WS']
    S.release(KA.sub(6, 8), KB, KW)
    vLre = V.alloc(1); vLim = V.alloc(1); vLdt = V.alloc(1)
    I(f's_lshl_b32 {sA}, {sJ}, 6\nv_lshl_add_u32 {vt0}, {vL31}, 1, {sA}')
    I(f'global_load_ushort {vLre}, {vt0}, {KA.t(2,2)}\nglobal_load_ushort {vLim}, {vt0}, {KA.t(4,2)}\nglobal_load_ushort {vLdt}, {vt0}, {KA.t(14,2)}')
    vJUNK = V.alloc(1)
    I(f's_getpc_b64 {KA.t(0,2)}')
    k.label('L_pc')
    I(f's_lshr_b32 {sA}, s2, 3\ns_lshl_b32 {sA}, {sA}, 11')
    I(f'v_lshl_add_u32 {vt0}, v0, 3, {sA}\nv_min_u32 {vt0}, L_codeend-L_pc-4, {vt0}\nglobal_load_dword {vJUNK}, {vt0}, {KA.t(0,2)}')
    S.release(KA.sub(0, 6), KA.sub(14, 2))
    if o['stamps']:
        c.STP = S.alloc(4, 2, 'stamps')
    stamp('start')
    sTH, sCG, sN32, sT32 = [S.alloc(1, name=n) for n in ('th', 'cg', 'n32', 't32')]
    I(f's_lshr_b32 {sTH}, {sJ}, 3\ns_and_b32 {sCG}, {sJ}, 7\ns_and_b32 {sN32}, {sW}, 1\ns_lshr_b32 {sT32}, {sW}, 1')

    sPC, sPW, sPI, sPD = [S.alloc(1, name=n) for n in ('pcg', 'pw', 'pi', 'pdst')]
    I(f's_lshr_b32 {sPC}, {sJ}, 1\ns_and_b32 {sPW}, {sJ}, 1\ns_lshl_b32 {sPW}, {sPW}, 1\ns_and_b32 {sA}, {sT}, 1\ns_add_u32 {sPW}, {sPW}, {sA}\ns_lshr_b32 {sPI}, {sT}, 1')
    I(f's_lshl_b32 {sA}, {sPC}, 2\ns_add_u32 {sA}, {sA}, {sPW}\ns_mul_i32 {sPD}, {sA}, {WTS}\ns_add_u32 {sPD}, {sPD}, {O_WT}')
    CQ = V.alloc(4, 4, 'cpiece')
    I(f'v_and_b32 {vt0}, 0x13, {vL}\nv_bfe_u32 {vt1}, {vL}, 2, 1\nv_lshl_add_u32 {vt0}, {vt1}, 3, {vt0}\nv_bfe_u32 {vt1}, {vL}, 3, 1\nv_lshl_add_u32 {vt0}, {vt1}, 2, {vt0}\nv_lshlrev_b32 {vt0}, 10, {vt0}\nv_lshl_add_u32 {vt0}, {vH}, 4, {vt0}')
    I(f's_lshl_b32 {sA}, {sPC}, 16\ns_lshl_b32 {sB}, {sN32}, 15\ns_add_u32 {sA}, {sA}, {sB}\ns_lshl_b32 {sB}, {sPW}, 8\ns_add_u32 {sA}, {sA}, {sB}\ns_lshr_b32 {sB}, {sPI}, 1\ns_lshl_b32 {sB}, {sB}, 6\ns_add_u32 {sA}, {sA}, {sB}\ns_lshl_b32 {sB}, {sT32}, 5\ns_add_u32 {sA}, {sA}, {sB}')
    I(f's_bitcmp1_b32 {sPI}, 0\ns_cbranch_scc1 L_cim')
    k.raw(f'  buffer_load_dwordx4 {CQ}, {vt0}, {SRD["CRE"]}, {sA} offen\n  s_branch L_cdone\nL_cim:')
    I(f'buffer_load_dwordx4 {CQ}, {vt0}, {SRD["CIM"]}, {sA} offen #craw')
    k.label('L_cdone')
    I(f's_mul_i32 {sA}, {sPW}, 448\ns_lshr_b32 {sB}, {sPI}, 1\ns_mul_i32 {sB}, {sB}, 112\ns_add_u32 {sA}, {sA}, {sB}\ns_lshl_b32 {sB}, {sW}, 5\ns_add_u32 {sA}, {sA}, {sB}\ns_lshl_b32 {sA}, {sA}, 10\ns_lshl_b32 {sB}, {sPC}, 7\ns_add_u32 {sA}, {sA}, {sB}\ns_and_b32 {sC}, {sPI}, 1\ns_lshl_b32 {sC}, {sC}, 6\ns_add_u32 {sA}, {sA}, {sC}')
    I(f's_mul_i32 {sC}, {sW}, 3072\ns_add_u32 m0, {sC}, {L_UP}')
    I(f'buffer_load_dwordx4 {vW1o}, {SRD["W4"]}, {sA} offen lds #praw')
    I(f's_add_u32 m0, m0, 1024\ns_cmp_eq_u32 {sW}, 3\ns_cbranch_scc1 L_pw3')
    k.raw(f'  s_add_u32 {sA}, {sA}, 16384\n  buffer_load_dwordx4 {vW1o}, {SRD["W4"]}, {sA} offen lds\n  buffer_load_dword {vJUNK}, {vL16}, {SRD["W4"]}, {sA} offen\n  s_branch L_pdone\nL_pw3:')
    I(f's_lshl_b32 {sA}, {sPW}, 17\ns_lshl_b32 {sC}, {sPI}, 14\ns_add_u32 {sA}, {sA}, {sC}\ns_add_u32 {sA}, {sA}, {sB}')
    I(f'buffer_load_dwordx4 {vW1o}, {SRD["W2"]}, {sA} offen lds #praw\ns_add_u32 m0, m0, 1024\ns_add_u32 {sA}, {sA}, 64')
    I(f'buffer_load_dwordx4 {vW1o}, {SRD["W2"]}, {sA} offen lds #praw')
    k.label('L_pdone')
    k.fence(1)

    sBs = S.alloc(1, name='bsrc'); sBd = S.alloc(1, name='bdst')
    I(f's_lshl_b32 {sBs}, {sJ}, 15\ns_lshl_b32 {sA}, {sW}, 13\ns_add_u32 {sBs}, {sBs}, {sA}\ns_mul_i32 {sBd}, {sW}, {8*BROW}')

    def bdma(i):
        nm = 'BRE' if i < 8 else 'BIM'
        r = i % 8
        return [f's_add_u32 m0, {sBd}, {L_BB + (32 if i >= 8 else 0) * BROW + r * BROW}\ns_add_u32 {sD}, {sBs}, {r*1024}\nbuffer_load_dwordx4 {vL16}, {SRD[nm]}, {sD} offen lds #wdma']
    NB1 = o.get('nb1', 6)
    for i in range(NB1):
        k.emit_all(bdma(i))

    I('s_mov_b64 exec, 0')
    for w in range(4):
        I(f's_cmp_eq_u32 {sW}, {w}\ns_cbranch_scc1 L_stub{w}')
    k.label('L_stubret')
    I('s_mov_b64 exec, -1')
    stamp('stubs')

    I(f'v_mov_b32 {vMASK}, 0xffff0000\nv_mov_b32 {vZERO}, 0\nv_lshlrev_b32 {vFLG}, 2, {vL}')
    I(f'v_mov_b32 {GK[0]}, {hx(GC1)}\nv_mov_b32 {GK[2]}, {hx(GC0)}\nv_mov_b32 {GK[4]}, 1.0')
    gC1, gC0, gONE = GK.t(0, 2), GK.t(2, 2), GK.t(4, 2)
    I(f'v_bfe_u32 {vt0}, {vL31}, 2, 1\nv_lshlrev_b32 {vt0}, 4, {vt0}\nv_lshrrev_b32 {vt1}, 3, {vL31}\nv_lshl_add_u32 {vt0}, {vt1}, 2, {vt0}\nv_and_b32 {vt1}, 3, {vL31}\nv_add_u32 {vTAU}, {vt0}, {vt1}')
    for ni in range(2):
        I(f's_xor_b32 {sA}, {sN32}, {ni}\ns_lshl_b32 {sA}, {sA}, 10\nv_add_u32 {vLN[ni]}, {sA}, {vL16}')
    vTRI = V.alloc(1, name='tr_inner')
    I(f'v_bfe_u32 {vt0}, {vL}, 2, 2\nv_lshlrev_b32 {vt0}, 6, {vt0}\nv_bfe_u32 {vt1}, {vL}, 4, 1\nv_lshl_add_u32 {vt0}, {vt1}, 5, {vt0}\nv_and_b32 {vt1}, 1, {vL}\nv_lshl_add_u32 {vt0}, {vt1}, 4, {vt0}\nv_bfe_u32 {vt1}, {vL}, 1, 1\nv_lshl_add_u32 {vTRI}, {vt1}, 3, {vt0}')
    sFL = S.alloc(1, name='flagbase'); sMYF = S.alloc(1, name='myflag')
    I(f's_add_u32 {sFL}, {sTB}, {O_FLG}\ns_lshl_b32 {sMYF}, {sJ}, 4\ns_lshl_b32 {sA}, {sW}, 2\ns_add_u32 {sMYF}, {sMYF}, {sA}\ns_add_u32 {sMYF}, {sMYF}, {sFL}')
    vSTXw = V.alloc(1); vSTXr = V.alloc(1)
    I(f's_lshl_b32 {sA}, {sW}, 4\ns_add_u32 {sA}, {sA}, {L_STX}\nv_lshl_add_u32 {vSTXw}, {vP8}, 6, {sA}\nv_lshlrev_b32 {vSTXr}, 6, {vP8}\nv_add_u32 {vSTXr}, {L_STX}, {vSTXr}')
    vSo = V.alloc(1)
    I(f'v_lshrrev_b32 {vt0}, 1, {vQ8}\nv_lshlrev_b32 {vt0}, 10, {vt0}\nv_and_b32 {vt1}, 1, {vQ8}\nv_lshl_add_u32 {vt0}, {vt1}, 9, {vt0}\nv_lshl_add_u32 {vSo}, {vP8}, 4, {vt0}')
    sXS = S.alloc(2, 1, 'xnst')
    I(f's_lshr_b32 {sA}, {sJ}, 2\ns_lshl_b32 {sA}, {sA}, 15\ns_lshl_b32 {sB}, {sW}, 13\ns_add_u32 {sA}, {sA}, {sB}\ns_and_b32 {sB}, {sJ}, 3\ns_lshl_b32 {sB}, {sB}, 7\ns_add_u32 {sA}, {sA}, {sB}\ns_add_u32 {sA}, {sA}, {sTB}\ns_add_u32 {sXS[1]}, {sA}, {O_XN + 4096}\ns_add_u32 {sXS[0]}, {sA}, {O_XN}')
    I(f's_add_u32 {sTAG}, {sEP}, 16\ns_and_b32 {sTAG}, {sTAG}, -16\nv_mov_b32 {vTAGV}, {sTAG}')
    I(f's_or_b32 {sA}, {sTAG}, {sXCC}\nv_mov_b32 {vt0}, {sA}\ns_lshl_b32 {sB}, {sJ}, 2\ns_add_u32 {sB}, {sB}, {sTB}\ns_add_u32 {sB}, {sB}, {O_IDS}\ns_mov_b64 exec, 1')
    I(f'buffer_store_dword {vt0}, {vZERO}, {WS}, {sB} offen\ns_mov_b64 exec, -1')
    stamp('tag')

    def unpack(dst, src):
        L = []
        for i in range(src.n):
            L.append(f'v_lshlrev_b32 {dst[2*i]}, 16, {src[i]}')
            L.append(f'v_and_b32 {dst[2*i+1]}, {vMASK}, {src[i]}')
        return L

    def sums(F, SQ, t):
        n = F.n // 2
        L = [f'v_pk_add_f32 {t.t(0,2)}, {F.t(0,2)}, {F.t(2,2)}', f'v_pk_mul_f32 {t.t(2,2)}, {F.t(0,2)}, {F.t(0,2)}', f'v_pk_fma_f32 {t.t(2,2)}, {F.t(2,2)}, {F.t(2,2)}, {t.t(2,2)}']
        for i in range(2, n):
            L.append(f'v_pk_add_f32 {t.t(0,2)}, {t.t(0,2)}, {F.t(2*i,2)}')
            L.append(f'v_pk_fma_f32 {t.t(2,2)}, {F.t(2*i,2)}, {F.t(2*i,2)}, {t.t(2,2)}')
        L.append(f'v_add_f32 {SQ[0]}, {t[0]}, {t[1]}')
        L.append(f'v_add_f32 {SQ[1]}, {t[2]}, {t[3]}')
        return L

    def xswap(SQ, t, which):
        n = SQ.n
        return ([f'v_mov_b32 {t[i]}, {SQ[i]}' for i in range(n)] + [f'v_permlane{which}_swap_b32 {SQ[i]}, {t[i]}' for i in range(n)]
                + [f'v_add_f32 {SQ[i]}, {SQ[i]}, {t[i]}' for i in range(n)])

    def finish_stats(SQ, NM, RI, PK, t, n=512):
        L = [f'v_mul_f32 {SQ[0]}, {hx(1.0/n)}, {SQ[0]}', f'v_mul_f32 {SQ[1]}, {hx(1.0/n)}, {SQ[1]}',
             f'v_fma_f32 {SQ[1]}, -{SQ[0]}, {SQ[0]}, {SQ[1]}', f'v_max_f32 {SQ[1]}, 0, {SQ[1]}',
             f'v_cvt_pk_bf16_f32 {t[0]}, {SQ[0]}, {SQ[1]}',
             f'v_and_b32 {t[1]}, {vMASK}, {t[0]}', f'v_add_f32 {t[1]}, {hx(1e-5)}, {t[1]}', f'v_cvt_pk_bf16_f32 {t[1]}, {t[1]}, {t[1]}',
             f'v_and_b32 {t[1]}, {vMASK}, {t[1]}', f'v_sqrt_f32 {t[1]}, {t[1]}', f'v_cvt_pk_bf16_f32 {t[1]}, {t[1]}, {t[1]}', f'v_and_b32 {t[1]}, {vMASK}, {t[1]}',
             f'v_rcp_f32 {RI}, {t[1]}', f'v_lshlrev_b32 {NM}, 16, {t[0]}']
        if PK is not None:
            L.append(f'v_lshrrev_b32 {t[0]}, 16, {NM}')
            L.append(f'v_or_b32 {PK}, {t[0]}, {t[1]}')
        L.append(f'v_xor_b32 {NM}, 0x80000000, {NM}')
        return L

    def zipl(a, b):
        out = []
        for i in range(max(len(a), len(b))):
            if i < len(a): out.append(a[i])
            if i < len(b): out.append(b[i])
        return out

    def row_stats2(F, F2, SQ, t, area, mid=None):
        k.emit_all(zipl(sums(F, SQ.sub(0, 2), t.sub(0, 4)), sums(F2, SQ.sub(2, 2), t.sub(4, 4))))
        for i in range(4):
            I(f'v_add_f32_dpp {SQ[i]}, {SQ[i]}, {SQ[i]} row_ror:8 row_mask:0xf bank_mask:0xf')
        k.emit_all(xswap(SQ, t, 16)); k.emit_all(xswap(SQ, t, 32))
        I(f's_mov_b64 exec, 0xff\nds_write_b128 {vSTXw}, {SQ} offset:{area*512}\ns_mov_b64 exec, -1')
        if mid:
            mid()
        k.barrier()
        for i in range(4):
            I(f'ds_read_b128 {t.t(4*i,4)}, {vSTXr} offset:{area*512+16*i}')
        I(f'v_pk_add_f32 {t.t(0,2)}, {t.t(0,2)}, {t.t(4,2)}\nv_pk_add_f32 {t.t(8,2)}, {t.t(8,2)}, {t.t(12,2)}\nv_pk_add_f32 {t.t(2,2)}, {t.t(2,2)}, {t.t(6,2)}\nv_pk_add_f32 {t.t(10,2)}, {t.t(10,2)}, {t.t(14,2)}')
        I(f'v_pk_add_f32 {SQ.t(0,2)}, {t.t(0,2)}, {t.t(8,2)}\nv_pk_add_f32 {SQ.t(2,2)}, {t.t(2,2)}, {t.t(10,2)}')

    def normalize(F, P, NM, RI):
        nm = f'v[{NM.b}:{NM.b+1}]'; ri = f'v[{RI.b}:{RI.b+1}]'
        for i in range(8):
            I(f'v_pk_add_f32 {F.t(2*i,2)}, {F.t(2*i,2)}, {nm} op_sel_hi:[1,0]')
        for i in range(8):
            I(f'v_cvt_pk_bf16_f32 {P[i]}, {F[2*i]}, {F[2*i+1]}')
        k.emit_all(unpack(F, P))
        for i in range(8):
            I(f'v_pk_mul_f32 {F.t(2*i,2)}, {F.t(2*i,2)}, {ri} op_sel_hi:[1,0]')
        for i in range(8):
            I(f'v_cvt_pk_bf16_f32 {P[i]}, {F[2*i]}, {F[2*i+1]}')

    def stores(L, tag='st'):
        ls = k.newlabel('L_slow'); lr = k.newlabel('L_sret')
        I(f's_cmp_lg_u32 {sSLOW}, 0')
        mark = len(k.lines)
        for t in L:
            I(t + f' #{tag}')
        body = k.lines[mark:]
        del k.lines[mark:]
        pre = []
        while body and not body[0].lstrip().startswith('buffer_store'):
            pre.append(body.pop(0))
        k.lines += pre
        k.lines.append(f'  s_cbranch_scc1 {ls}')
        k.lines += body
        k.lines.append(lr + ':')
        k.tail.append(ls + ':')
        for b in body:
            k.tail.append(b + ' sc0 sc1' if b.lstrip().startswith('buffer_store') else b)
        k.tail.append(f'  s_branch {lr}')

    def publish(phase, tag='st'):
        k.wait_vm_tag(tag)
        I('s_mov_b64 exec, 1')
        stores([f'buffer_store_dword {vTAGV}, {vZERO}, {WS}, {sMYF} offen offset:{phase*256}'], tag='flag')
        I('s_mov_b64 exec, -1')

    def poll_at(sbase, off, mask, voff=None):
        lp = k.newlabel('L_poll'); ld = k.newlabel('L_pdone')
        I(f's_mov_b32 {sA}, 0')
        k.fence(1)
        k.label(lp)
        k.raw(f'  buffer_load_dword {vt0}, {voff or vFLG}, {WS}, {sbase} offen offset:{off} sc1\n  s_waitcnt vmcnt(0)\n  v_cmp_ne_u32 vcc, {vt0}, {vTAGV}\n  s_add_u32 {sA}, {sA}, 1\n  s_cmp_gt_u32 {sA}, {SPIN}\n  s_cbranch_scc1 {ld}\n  s_and_b64 vcc, vcc, {mask}\n  s_cbranch_scc1 {lp}')
        k.label(ld)
        k.vm = []
        k.pos += 6

    def poll(phase, mask):
        poll_at(sFL, phase * 256, mask)

    def lazy_check(vdst, sbase, off, mask):
        lo = k.newlabel('L_lz'); lr = k.newlabel('L_lzr')
        I(f'v_cmp_ne_u32 vcc, {vdst}, {vTAGV}\ns_and_b64 vcc, vcc, {mask}\ns_cbranch_scc1 {lo}')
        k.label(lr)
        k.tail.append(f'{lo}:\n  s_mov_b32 {sA}, 0\n{lo}_p:\n  buffer_load_dword {vdst}, {vFLG}, {WS}, {sbase} offen offset:{off} sc1\n  s_waitcnt vmcnt(0)\n  v_cmp_ne_u32 vcc, {vdst}, {vTAGV}\n  s_add_u32 {sA}, {sA}, 1\n  s_cmp_gt_u32 {sA}, {SPIN}\n  s_cbranch_scc1 {lr}\n  s_and_b64 vcc, vcc, {mask}\n  s_cbranch_scc1 {lo}_p\n  s_branch {lr}')

    def ids_issue(dst):
        I(f's_add_u32 {sB}, {sTB}, {O_IDS}\nv_and_b32 {vt2}, 60, {vFLG}\nbuffer_load_dword {dst}, {vt2}, {WS}, {sB} offen sc1 #ids')

    def ids_check(src):
        I(f's_or_b32 {sB}, {sTAG}, {sXCC}\nv_cmp_ne_u32 vcc, {sB}, {src}\ns_cmp_lg_u64 vcc, 0\ns_cselect_b32 {sSLOW}, 1, 0')
        if o.get('force_slow'):
            I(f's_mov_b32 {sSLOW}, 1')

    F = V.alloc(16, 2, 'F'); F2 = V.alloc(16, 2, 'F2'); SQ = V.alloc(4, 4, 'SQ'); t16 = V.alloc(16, 4, 't16')
    NM = V.alloc(2, 2, 'nm'); RI = V.alloc(2, 2, 'ri'); PK = V.alloc(2, 2, 'pk'); vID = V.alloc(1, name='ids')
    k.emit_all(unpack(F, XP))
    stamp('x_in')
    k.emit_all(unpack(F2, HP))
    row_stats2(F, F2, SQ, t16, 0)
    k.emit_all(finish_stats(SQ.sub(0, 2), NM[0], RI[0], None, t16))
    normalize(F, XP, NM, RI)
    xn_st = [f'buffer_store_dwordx4 {XP.t(0,4)}, {vSo}, {WS}, {sXS[0]} offen', f'buffer_store_dwordx4 {XP.t(4,4)}, {vSo}, {WS}, {sXS[1]} offen']
    for t in xn_st:
        I(t + ' #st')
    ids_issue(vID)
    stamp('xn_st')
    PT = V.alloc(12, 4, 'pt')
    I(f's_lshr_b32 {sA}, {sPI}, 1\ns_lshl_b32 {sA}, {sA}, 2\ns_and_b32 {sB}, {sPI}, 1\ns_lshl_b32 {sC}, {sB}, 1\ns_add_u32 {sA}, {sA}, {sC}\ns_add_u32 {sA}, {sA}, {sT32}\ns_lshl_b32 {sA}, {sA}, 1\ns_add_u32 {sA}, {sA}, {sN32}\ns_lshl_b32 {sA}, {sA}, 10\ns_add_u32 {sA}, {sA}, {sPD}')
    I(f's_add_u32 {sA}, {sA}, {16*1024}\nbuffer_store_dwordx4 {CQ}, {vL16}, {WS}, {sA} offen sc0 sc1 #wt')
    stamp('c_st')
    I(f's_lshr_b32 {sA}, {sPI}, 1\ns_mul_i32 {sA}, {sA}, 7\ns_lshl_b32 {sC}, {sW}, 1\ns_add_u32 {sA}, {sA}, {sC}\ns_lshl_b32 {sA}, {sA}, 1\ns_add_u32 {sA}, {sA}, {sB}\ns_lshl_b32 {sA}, {sA}, 10\ns_add_u32 {sA}, {sA}, {sPD}\ns_add_u32 {sA}, {sA}, {48*1024}')
    I(f's_mul_i32 {sC}, {sW}, 3072\ns_add_u32 {sC}, {sC}, {L_UP}\nv_add_u32 {vt1}, {sC}, {vTRI}')
    k.wait_vm_tag('praw')
    stamp('praw')
    I(f's_cmp_eq_u32 {sW}, 3\ns_cbranch_scc1 L_pt3')
    k.raw(f'  v_lshl_add_u32 {vt1}, {vH}, 8, {vt1}')
    for s in range(2):
        for rd in range(2):
            k.raw(f'  ds_read_b64_tr_b16 {PT.t(4*s+2*rd,2)}, {vt1} offset:{rd*1024 + s*512}')
    k.raw(f'  s_waitcnt lgkmcnt(0)\n  buffer_store_dwordx4 {PT.t(0,4)}, {vL16}, {WS}, {sA} offen sc0 sc1\n  buffer_store_dwordx4 {PT.t(4,4)}, {vL16}, {WS}, {sA} offen offset:2048 sc0 sc1\n  buffer_store_dwordx4 {PT.t(4,4)}, {vL16}, {WS}, {sA} offen offset:2048 sc0 sc1\n  s_branch L_ptd\nL_pt3:')
    I(f'v_lshl_add_u32 {vt1}, {vH}, 9, {vt1}')
    for b in range(3):
        for rd in range(2):
            I(f'ds_read_b64_tr_b16 {PT.t(4*b+2*rd,2)}, {vt1} offset:{b*1024 + rd*256}')
    I(f's_lshl_b32 {sC}, {sPI}, 11\ns_add_u32 {sC}, {sC}, {sPD}')
    k.waitcnt(lg=0)
    I(f'buffer_store_dwordx4 {PT.t(0,4)}, {vL16}, {WS}, {sA} offen sc0 sc1 #wt')
    I(f'buffer_store_dwordx4 {PT.t(4,4)}, {vL16}, {WS}, {sC} offen sc0 sc1 #wt\nbuffer_store_dwordx4 {PT.t(8,4)}, {vL16}, {WS}, {sC} offen offset:1024 sc0 sc1 #wt')
    k.label('L_ptd')
    k.fence(2)
    stamp('pt_st')
    for i in range(NB1, 16):
        k.emit_all(bdma(i))
    S.release(sBs, sBd)
    stamp('b_iss')
    V.release(vW1o, CQ, vJUNK)
    k.emit_all(finish_stats(SQ.sub(2, 2), NM[0], RI[0], None, t16))
    normalize(F2, HP, NM, RI)
    V.release(PT)
    I(f's_lshl_b32 {sA}, {sW}, 10\ns_add_u32 {sA}, {sA}, {L_HALO}\nv_and_b32 {vt0}, 1, {vP8}\nv_lshlrev_b32 {vt0}, 4, {vt0}\nv_lshl_add_u32 {vt0}, {vQ8}, 6, {vt0}\nv_add_u32 {vt0}, {sA}, {vt0}')
    I(f'ds_write_b128 {vt0}, {HP.t(0,4)}\nds_write_b128 {vt0}, {HP.t(4,4)} offset:512')
    ONES = V.at(204, 4, 'ones')
    for i in range(4):
        I(f'v_mov_b32 {ONES[i]}, 0x3f803f80')
    I(f'v_lshlrev_b32 {vt1}, 6, {vL}\nv_add_u32 {vt1}, {L_HALO + 32}, {vt1}\nds_write_b128 {vt1}, {ONES}')
    stamp('halo_n')
    ids_check(vID)
    I(f's_cmp_lg_u32 {sSLOW}, 0\ns_cbranch_scc1 L_xnslow\ns_mov_b64 exec, 1')
    I(f'buffer_store_dword {vTAGV}, {vZERO}, {WS}, {sMYF} offen #flag')
    k.label('L_xnret')
    I('s_mov_b64 exec, -1')
    k.tail.append('L_xnslow:\n' + ''.join(f'  {t} sc0 sc1\n' for t in xn_st) + f'  s_waitcnt vmcnt(0)\n  s_mov_b64 exec, 1\n  buffer_store_dword {vTAGV}, {vZERO}, {WS}, {sMYF} offen sc0 sc1\n  s_branch L_xnret')
    stamp('xn_pub')
    k.emit_all(zipl(unpack(F, XP), unpack(F2, HP)))
    row_stats2(F, F2, SQ, t16, 1)
    k.emit_all(finish_stats(SQ.sub(0, 2), NM[0], RI[0], PK[0], t16))
    I(f'v_mov_b32 {PK[1]}, {vTAGV}')
    I(f's_lshl_b32 {sA}, {sJ}, 6\ns_add_u32 {sA}, {sA}, {sTB}\ns_add_u32 {sA}, {sA}, {O_ST2}\nv_lshlrev_b32 {vt0}, 3, {vP8}')
    I(f's_cmp_eq_u32 {sW}, 0\ns_cselect_b64 exec, 0xff, 1')
    stores([f'buffer_store_dwordx2 {PK}, {vt0}, {WS}, {sA} offen'], tag='st2')
    I('s_mov_b64 exec, -1')
    HNM = V.alloc(1, name='hnm'); HRI = V.alloc(1, name='hri')
    k.emit_all(finish_stats(SQ.sub(2, 2), HNM[0], HRI[0], None, t16))
    V.release(F, F2, SQ, NM, RI, PK, XP, HP, vSo, vSTXw, vSTXr, t16, vP8, vQ8)
    S.release(sXS)

    LAM = V.alloc(2, 2, 'lam'); CF = V.alloc(2, 2, 'coef2'); L16 = V.alloc(2, 2, 'lam16'); L128 = V.alloc(2, 2, 'lam128'); LOWN = V.alloc(2, 2, 'lown'); L256 = V.alloc(2, 2, 'lam256')
    T = V.alloc(8, 2, 'ctmp')
    I(f'v_lshlrev_b32 {vLre}, 16, {vLre}\nv_lshlrev_b32 {vLim}, 16, {vLim}\nv_lshlrev_b32 {vLdt}, 16, {vLdt}')
    I(f'v_mul_f32 {T[0]}, {hx(LOG2E)}, {vLdt}\nv_exp_f32 {T[0]}, {T[0]}\nv_cvt_pk_bf16_f32 {T[0]}, {T[0]}, {T[0]}\nv_lshlrev_b32 {T[0]}, 16, {T[0]}')
    I(f'v_mul_f32 {T[1]}, {T[0]}, {vLre}\nv_mul_f32 {T[2]}, {T[0]}, {vLim}')
    I(f'v_mul_f32 {T[1]}, {hx(LOG2E)}, {T[1]}\nv_exp_f32 {T[1]}, {T[1]}')
    I(f'v_mul_f32 {T[2]}, {hx(1.0 / (2 * math.pi))}, {T[2]}\nv_rndne_f32 {T[3]}, {T[2]}\nv_sub_f32 {T[2]}, {T[2]}, {T[3]}')
    I(f'v_cos_f32 {T[3]}, {T[2]}\nv_sin_f32 {T[4]}, {T[2]}')
    I(f'v_mul_f32 {LAM[0]}, {T[1]}, {T[3]}\nv_mul_f32 {LAM[1]}, {T[1]}, {T[4]}')
    I(f'v_add_f32 {T[0]}, -1.0, {LAM[0]}')
    I(f'v_mul_f32 {T[1]}, {vLre}, {vLre}\nv_fmac_f32 {T[1]}, {vLim}, {vLim}\nv_rcp_f32 {T[1]}, {T[1]}\nv_add_f32 {T[1]}, {T[1]}, {T[1]}')
    I(f'v_mul_f32 {T[2]}, {T[0]}, {vLre}\nv_fmac_f32 {T[2]}, {LAM[1]}, {vLim}\nv_mul_f32 {CF[0]}, {T[2]}, {T[1]}')
    I(f'v_mul_f32 {T[3]}, {LAM[1]}, {vLre}\nv_fma_f32 {T[3]}, -{T[0]}, {vLim}, {T[3]}\nv_mul_f32 {CF[1]}, {T[3]}, {T[1]}')

    def csq(d, s):
        I(f'v_mul_f32 {d[0]}, {s[1]}, {s[1]}\nv_mul_f32 {d[1]}, {s[0]}, {s[1]}\nv_fma_f32 {d[0]}, {s[0]}, {s[0]}, -{d[0]}\nv_add_f32 {d[1]}, {d[1]}, {d[1]}')

    def cmul(d, a, b):
        I(f'v_mul_f32 {d[0]}, {a[1]}, {b[1]}\nv_mul_f32 {d[1]}, {a[0]}, {b[1]}\nv_fma_f32 {d[0]}, {a[0]}, {b[0]}, -{d[0]}\nv_fmac_f32 {d[1]}, {a[1]}, {b[0]}')
    Ta, Tb, Tc, Td = T.sub(0, 2), T.sub(2, 2), T.sub(4, 2), T.sub(6, 2)
    csq(Ta, LAM); csq(Tb, Ta); csq(Ta, Tb); csq(L16, Ta)
    csq(Ta, L16); csq(Tb, Ta); csq(L128, Tb); csq(L256, L128)
    I(f'v_cmp_eq_u32 vcc, 1, {vH}\nv_mov_b32 {Tc[0]}, 1.0\nv_mov_b32 {Tc[1]}, 0\nv_cndmask_b32 {Tc[0]}, {Tc[0]}, {L16[0]}, vcc\nv_cndmask_b32 {Tc[1]}, {Tc[1]}, {L16[1]}, vcc')
    I(f's_bitcmp1_b32 {sW}, 0\ns_cselect_b64 vcc, -1, 0')
    I(f'v_mov_b32 {Td[0]}, 1.0\nv_mov_b32 {Td[1]}, 0\nv_cndmask_b32 {Ta[0]}, {Td[0]}, {Ta[0]}, vcc\nv_cndmask_b32 {Ta[1]}, {Td[1]}, {Ta[1]}, vcc')
    I(f's_bitcmp1_b32 {sW}, 1\ns_cselect_b64 vcc, -1, 0')
    I(f'v_cndmask_b32 {Tb[0]}, {Td[0]}, {Tb[0]}, vcc\nv_cndmask_b32 {Tb[1]}, {Td[1]}, {Tb[1]}, vcc')
    cmul(Td, Tc, Ta); cmul(LOWN, Td, Tb)
    V.release(T, vLre, vLim, vLdt)
    vW1r = V.alloc(1, name='w1rd')
    I(f'v_lshl_add_u32 {vW1r}, {vH}, 9, {vTRI}\nv_add_u32 {vW1r}, {L_W1}, {vW1r}')
    vBr = V.alloc(1, name='brd')
    I(f'v_mul_u32_u24 {vBr}, {BROW}, {vL31}\nv_lshl_add_u32 {vBr}, {vH}, 4, {vBr}')
    V.release(vTRI)
    stamp('p0_done')

    sWTF = S.alloc(1, name='wtf')
    I(f's_lshl_b32 {sA}, {sPC}, 2\ns_add_u32 {sA}, {sA}, {sPW}\ns_lshl_b32 {sA}, {sA}, 7\ns_lshl_b32 {sB}, {sPI}, 4\ns_add_u32 {sA}, {sA}, {sB}\ns_lshl_b32 {sB}, {sW}, 2\ns_add_u32 {sA}, {sA}, {sB}\ns_add_u32 {sA}, {sA}, {O_WTF}\ns_mov_b64 exec, 1')
    k.wait_vm_tag('wt')
    stamp('wt_done')
    I(f'buffer_store_dword {vTAGV}, {vZERO}, {WS}, {sA} offen sc0 sc1\ns_mov_b64 exec, -1')
    I(f's_lshl_b32 {sA}, {sW}, 4\ns_lshl_b64 {sM}, 0xffff, {sA}')
    poll(0, sM)
    stamp('xn_seen')
    XN = A.at(0, 128, 'XN')
    sXN = S.alloc(1, name='xnbase')
    I(f's_lshl_b32 {sXN}, {sW}, 15\ns_add_u32 {sXN}, {sXN}, {sTB}')

    def xn_load(ks):
        L = []
        if ks % 4 == 0 and ks:
            L.append(f's_add_u32 {sXN}, {sXN}, 4096')
        L.append(f'buffer_load_dwordx4 {XN.t(4*ks,4)}, {vL16}, {WS}, {sXN} offen offset:{(ks%4)*1024} sc1')
        return L
    PF = o.get('pf1', 10)
    for ks in range(PF):
        k.emit_all(xn_load(ks))
    S.release(sPC, sPW, sPI, sPD)
    sWT = S.alloc(1, name='wtbase')
    I(f's_lshl_b32 {sA}, {sCG}, 2\ns_add_u32 {sA}, {sA}, {sW}\ns_lshl_b32 {sWTF}, {sA}, 7\ns_add_u32 {sWTF}, {sWTF}, {O_WTF}\ns_mul_i32 {sWT}, {sA}, {WTS}\ns_add_u32 {sWT}, {sWT}, {O_WT}')
    ST2 = V.alloc(2, 2, 'st2')
    sST2 = S.alloc(1); vST2o = V.alloc(1)
    I(f's_lshl_b32 {sA}, {sW}, 8\ns_add_u32 {sA}, {sA}, {sTB}\ns_add_u32 {sST2}, {sA}, {O_ST2}\nv_lshlrev_b32 {vST2o}, 3, {vL31}')
    k.barrier()
    ids_issue(vID)

    HA = V.alloc(16, 4, 'hacc'); WF = A.at(192, 24, 'wf')
    I(f'v_min_u32 {vt0}, 2, {vL31}\nv_lshlrev_b32 {vt0}, 4, {vt0}\nv_lshl_add_u32 {vt0}, {vH}, 6, {vt0}\ns_lshl_b32 {sB}, {sW}, 10\ns_add_u32 {sB}, {sB}, {L_HALO}\nv_add_u32 {vt0}, {sB}, {vt0}')
    I(f's_lshl_b32 {sB}, {sW}, 13\nv_add_u32 {vt1}, {sB}, {vW1r}')
    for i in range(8):
        b = (i % 3) * 8
        I(f'ds_read_b64_tr_b16 {WF.t(b,2)}, {vt1} offset:{i*1024}\nds_read_b64_tr_b16 {WF.t(b+2,2)}, {vt1} offset:{i*1024+256}\nds_read_b128 {WF.t(b+4,4)}, {vt0} offset:{i*128}')
        if i >= 2:
            j = i - 2; bb = (j % 3) * 8
            I(f'v_mfma_f32_32x32x16_bf16 {HA}, {WF.t(bb,4)}, {WF.t(bb+4,4)}, {HA if j else 0}')
    for j in (6, 7):
        bb = (j % 3) * 8
        I(f'v_mfma_f32_32x32x16_bf16 {HA}, {WF.t(bb,4)}, {WF.t(bb+4,4)}, {HA}')
    sDEL = S.alloc(1, name='delta'); sH1 = S.alloc(1, name='h1base')
    I(f's_lshr_b32 {sA}, {sJ}, 3\ns_add_u32 {sDEL}, {sA}, 1\ns_sub_u32 {sB}, 0, {sDEL}\ns_bitcmp1_b32 {sJ}, 2\ns_cselect_b32 {sDEL}, {sB}, {sDEL}')
    I(f's_lshl_b32 {sH1}, {sJ}, 11\ns_add_u32 {sH1}, {sH1}, {sTB}\ns_add_u32 {sH1}, {sH1}, {O_H1}')
    I(f's_mul_i32 {sB}, {sW}, 384\ns_add_u32 {sB}, {sB}, {L_HRED}\nv_lshlrev_b32 {vt0}, 7, {vL31}\nv_lshl_add_u32 {vt0}, {vH}, 6, {vt0}\nv_add_u32 {vt0}, {sB}, {vt0}')
    I('s_mov_b32 exec_lo, 7\ns_mov_b32 exec_hi, 7')
    for i in range(4):
        I(f'ds_write_b128 {vt0}, {HA.t(4*i,4)} offset:{16*i}')
    I('s_mov_b64 exec, -1')

    def gelu_pairs(Z, n, t, outs):
        L = []
        P = lambda R, i: R.t(2 * i, 2)
        for i in range(n): L.append(f'v_pk_mul_f32 {P(t,i)}, {P(Z,i)}, {P(Z,i)}')
        for i in range(n): L.append(f'v_pk_fma_f32 {P(t,i)}, {P(t,i)}, {gC1}, {gC0} op_sel_hi:[1,0,0]')
        for i in range(n): L.append(f'v_pk_mul_f32 {P(t,i)}, {P(t,i)}, {P(Z,i)}')
        for i in range(2 * n): L.append(f'v_exp_f32 {t[i]}, {t[i]}')
        for i in range(n): L.append(f'v_pk_add_f32 {P(t,i)}, {P(t,i)}, {gONE} op_sel_hi:[1,0]')
        for i in range(2 * n): L.append(f'v_rcp_f32 {t[i]}, {t[i]}')
        for i in range(n): L.append(f'v_pk_mul_f32 {P(t,i)}, {P(t,i)}, {P(Z,i)}')
        for i in range(n): L.append(f'v_cvt_pk_bf16_f32 {outs[i]}, {t[2*i]}, {t[2*i+1]}')
        return L

    def h1_rowoff(dst, tp, ta, tb):
        return [f'v_bfe_u32 {ta}, {tp}, 2, 2', f'v_lshlrev_b32 {ta}, 3, {ta}', f'v_bfe_u32 {tb}, {tp}, 4, 1', f'v_lshl_add_u32 {ta}, {tb}, 2, {ta}', f'v_and_b32 {tb}, 3, {tp}', f'v_add_u32 {ta}, {ta}, {tb}', f'v_lshlrev_b32 {ta}, 4, {ta}',
                f'v_lshrrev_b32 {tb}, 5, {tp}', f'v_lshl_add_u32 {ta}, {tb}, 15, {ta}', f'v_cmp_gt_u32 vcc, 128, {tp}\nv_bfrev_b32 {tb}, 1\nv_cndmask_b32 {dst}, {tb}, {ta}, vcc']

    CS1 = V.alloc(16, 4, 'cs1'); hz = V.alloc(12, 2, 'hz'); vH1o = V.alloc(1, name='h1off')
    hf = ['@barrier']
    hf += [f'v_lshlrev_b32 {hz[8]}, 6, {vH}', f'v_add_u32 {hz[8]}, {L_HRED + 256}, {hz[8]}']
    hf += [f'ds_read_b128 {CS1.t(4*i,4)}, {hz[8]} offset:{16*i}' for i in range(4)]
    for w in range(1, 4):
        hf += [f'ds_read_b128 {HA.t(4*i,4)}, {hz[8]} offset:{w*384+16*i}' for i in range(4)]
        hf += [f'v_pk_add_f32 {CS1.t(2*i,2)}, {CS1.t(2*i,2)}, {HA.t(2*i,2)}' for i in range(8)]
    hf += [f'v_and_b32 {hz[8]}, 1, {vL}', f'v_lshlrev_b32 {hz[8]}, 7, {hz[8]}', f'v_lshrrev_b32 {hz[9]}, 1, {vL}', f'v_lshl_add_u32 {hz[8]}, {hz[9]}, 2, {hz[8]}', f'v_add_u32 {hz[8]}, {L_HRED}, {hz[8]}', f'v_lshlrev_b32 {hz[10]}, 2, {hz[9]}', f'v_add_u32 {hz[10]}, {L_HRED + 256}, {hz[10]}']
    for w in range(4):
        hf += [f'ds_read_b32 {hz[w]}, {hz[8]} offset:{w*384}', f'ds_read_b32 {hz[4+w]}, {hz[10]} offset:{w*384}']
    hf += [f'v_add_f32 {hz[0]}, {hz[0]}, {hz[1]}', f'v_add_f32 {hz[2]}, {hz[2]}, {hz[3]}', f'v_add_f32 {hz[4]}, {hz[4]}, {hz[5]}', f'v_add_f32 {hz[6]}, {hz[6]}, {hz[7]}', f'v_add_f32 {hz[0]}, {hz[0]}, {hz[2]}', f'v_add_f32 {hz[4]}, {hz[4]}, {hz[6]}']
    hf += [f'v_fmac_f32 {hz[0]}, {HNM}, {hz[4]}', f'v_mul_f32 {hz[0]}, {hz[0]}, {HRI}', f'v_cvt_pk_bf16_f32 {hz[0]}, {hz[0]}, {hz[0]}', f'v_lshlrev_b32 {hz[0]}, 16, {hz[0]}', f'v_mov_b32 {hz[1]}, {hz[0]}']
    hf += gelu_pairs(hz.sub(0, 2), 1, hz.sub(2, 2), [hz[0]])
    hf += [f's_bitcmp1_b32 {sJ}, 2\ns_cselect_b32 {sB}, 15, 0\ns_cmp_eq_u32 {sT}, {sB}\ns_cselect_b32 {sB}, 0, -1\nv_and_b32 {hz[0]}, {sB}, {hz[0]}']
    hf += [f's_bitcmp1_b32 {sJ}, 2\ns_cselect_b32 {sB}, 128, -2\ns_add_u32 {sB}, {sB}, {sDEL}\nv_and_b32 {hz[2]}, 1, {vL}\nv_add_u32 {hz[2]}, {sB}, {hz[2]}']
    hf += h1_rowoff(hz[3], hz[2], hz[4], hz[5])
    hf += [f'v_bfe_u32 {hz[4]}, {hz[9]}, 3, 1', f'v_lshl_add_u32 {hz[3]}, {hz[4]}, 10, {hz[3]}', f'v_lshrrev_b32 {hz[4]}, 4, {hz[9]}', f'v_lshl_add_u32 {hz[3]}, {hz[4]}, 9, {hz[3]}', f'v_and_b32 {hz[4]}, 7, {hz[9]}', f'v_lshl_add_u32 {hz[3]}, {hz[4]}, 1, {hz[3]}']
    hf += [f's_cmp_lg_u32 {sW}, 0\ns_cselect_b32 {sB}, 0x80000000, 0\nv_or_b32 {hz[3]}, {sB}, {hz[3]}']
    hf += [lambda k_: ids_check(vID)]
    hf += [lambda k_: stores([f'buffer_store_short {hz[0]}, {hz[3]}, {WS}, {sH1} offen'], tag='sth')]
    hf += [f's_lshl_b32 {sB}, {sW}, 5\ns_add_u32 {sB}, {sB}, {sDEL}\nv_add_u32 {hz[2]}, {sB}, {vTAU}']
    hf += h1_rowoff(vH1o, hz[2], hz[4], hz[5])
    hf += [f'v_lshl_add_u32 {vH1o}, {vH}, 9, {vH1o}']
    stamp('p1_start')

    vW3o = V.at(152, 7, 'w3o')
    w3prep = []
    for n in range(7):
        a_, b_, c_ = hz[8], hz[10], hz[11]
        w3prep += [f'v_lshrrev_b32 {a_}, 4, {vL}', f'v_add_u32 {a_}, {4*n}, {a_}', f'v_mul_u32_u24 {b_}, 37, {a_}', f'v_lshrrev_b32 {b_}, 8, {b_}', f'v_mul_u32_u24 {c_}, 7, {b_}', f'v_sub_u32 {a_}, {a_}, {c_}',
                   f'v_lshlrev_b32 {a_}, 5, {a_}', f'v_and_b32 {c_}, 1, {vL}', f'v_lshl_add_u32 {a_}, {c_}, 4, {a_}',
                   f'v_and_b32 {c_}, 1, {b_}', f'v_lshlrev_b32 {c_}, 2, {c_}', f'v_bfe_u32 {vW3o[n]}, {vL}, 1, 3', f'v_xor_b32 {c_}, {c_}, {vW3o[n]}', f'v_lshl_add_u32 {c_}, {b_}, 3, {c_}',
                   f'v_mul_u32_u24 {c_}, 3584, {c_}', f'v_add_u32 {vW3o[n]}, {c_}, {a_}']
    sW3s = S.alloc(1, name='w3src'); sW3d = S.alloc(1, name='w3dst')
    I(f's_mul_i32 {sW3s}, {sW}, {64*3584}\ns_mul_i32 {sA}, {sJ}, 224\ns_add_u32 {sW3s}, {sW3s}, {sA}\ns_mul_i32 {sW3d}, {sW}, {2*7168}')

    def w3_dma(upper):
        L = []
        for g in range(2):
            for n in range(7):
                L.append(f's_add_u32 m0, {sW3d}, {(L_UP if upper else 0) + g*7168 + n*1024}\ns_add_u32 {sD}, {sW3s}, {(8*upper + g)*32*3584}\nbuffer_load_dwordx4 {vW3o[n]}, {SRD["W3"]}, {sD} offen lds #w3')
        return L

    Q = Quads()
    k.Q = Q

    def wt_load(key, frag):
        def f(k_):
            q = Q.take(key)
            off = frag * 1024
            I(f's_add_u32 {sD}, {sWT}, {off}\nbuffer_load_dwordx4 {q}, {vLN[key[2]]}, {WS}, {sD} offen #wt{key[0]}')
        return f
    w2_loads = [wt_load(('w2', ks, ni), 2 * ks) for ks in range(8) for ni in range(2)]
    c_loads = [wt_load(('c', kc, ni), 16 + 2 * kc) for kc in range(16) for ni in range(2)]
    G6K = [7 * mb + j for mb in range(4) for j in range(4)] + [7 * mb + j for mb in range(4) for j in (4, 5, 6)]
    w4_loads = [wt_load(('w4', ks, ni), 48 + 2 * ks) for ks in G6K for ni in range(2)]
    QA2 = A.at(128, 64, 'qa2'); Q.add(QA2)

    ARE = V.at(172, 16, 'are'); AIM = V.at(188, 16, 'aim'); A3 = V.alloc(16, 4, 'a3')
    jobs = []
    g1 = 0
    ratio = o.get('g1ratio', 4 / 3)
    for ks in range(32):
        jobs.append(('w', ks))
        while g1 < min(2 * (ks + 1), int(ratio * (ks + 1))):
            jobs.append(('re' if g1 % 2 == 0 else 'im', g1 // 2)); g1 += 1
    nfirst = len(jobs)
    while g1 < 64:
        jobs.append(('re' if g1 % 2 == 0 else 'im', g1 // 2)); g1 += 1
    NB = 6

    def wread(i):
        ty, ks = jobs[i]; b = (i % NB) * 4
        if ty == 'w':
            return [f'ds_read_b64_tr_b16 {WF.t(b,2)}, {vW1r} offset:{ks*1024}', f'ds_read_b64_tr_b16 {WF.t(b+2,2)}, {vW1r} offset:{ks*1024+256}']
        return [f'ds_read_b128 {WF.t(b,4)}, {vBr} offset:{ks*32 + (32*BROW if ty == "im" else 0)}']

    def mm(i):
        ty, ks = jobs[i]; b = (i % NB) * 4
        if ty == 'w':
            return f'v_mfma_f32_32x32x16_bf16 {A3}, {WF.t(b,4)}, {XN.t(4*ks,4)}, {A3 if ks else 0}'
        acc = ARE if ty == 're' else AIM
        return f'v_mfma_f32_32x32x16_bf16 {acc}, {XN.t(4*ks,4)}, {WF.t(b,4)}, {acc if ks else 0}'
    AH = 4
    first, second = [], []
    for i in range(AH):
        first += wread(i)
    nxt = PF
    vWTF = V.alloc(1, name='wtflags')
    last_xn = None
    for i in range(len(jobs)):
        tgt = first if i < nfirst else second
        if i + AH < len(jobs):
            tgt += wread(i + AH)
        if jobs[i][0] == 'w' and nxt < 32:
            tgt += xn_load(nxt); nxt += 1
            if nxt == 32:
                last_xn = i
                tgt.append(f'buffer_load_dwordx2 {ST2}, {vST2o}, {WS}, {sST2} offen sc1')
                tgt.append(f'buffer_load_dword {vWTF}, {vFLG}, {WS}, {sWTF} offen sc1')
        tgt.append(mm(i))
    first = merge(first, hf + w3prep, per=o.get('hf_per', 4), start=1)
    pre1 = [lambda k_: (I(f's_mov_b32 {sM[0]}, -1\ns_mov_b32 {sM[1]}, 0'), lazy_check(vWTF, sWTF, 0, sM))] + w2_loads
    if o.get('w3u_p1', 1):
        pre1 += w3_dma(1)
    nanch = len([t for t in first if is_anchor(t)])
    wstart = min(last_xn + o.get('wt_lag', 14), nanch - 1)
    first, rest1 = merge(first, pre1, per=o.get('pre1_per', 1), start=wstart, tail=False)
    k.emit_all(first)
    stamp('g3_done')
    ep = []
    NM2 = V.alloc(2, 2); RI2 = V.alloc(2, 2); GT = V.alloc(16, 2, 'gt'); HP2 = V.alloc(8, 4, 'h1p')

    def st2_check(k_):
        lp = k.newlabel('L_st2'); ld = k.newlabel('L_st2d')
        I(f'v_cmp_ne_u32 vcc, {ST2[1]}, {vTAGV}\ns_mov_b32 {sA}, 0\ns_cbranch_vccnz {lp}')
        k.label(ld)
        k.tail.append(f'{lp}:\n  buffer_load_dwordx2 {ST2}, {vST2o}, {WS}, {sST2} offen sc1\n  s_waitcnt vmcnt(0)\n  v_cmp_ne_u32 vcc, {ST2[1]}, {vTAGV}\n  s_add_u32 {sA}, {sA}, 1\n  s_cmp_gt_u32 {sA}, {SPIN}\n  s_cbranch_scc1 {ld}\n  s_cbranch_vccnz {lp}\n  s_branch {ld}')
    ep.append(st2_check)
    ep += [f'v_lshlrev_b32 {NM2[0]}, 16, {ST2[0]}', f'v_and_b32 {RI2[0]}, {vMASK}, {ST2[0]}', f'v_xor_b32 {NM2[0]}, 0x80000000, {NM2[0]}', f'v_rcp_f32 {RI2[0]}, {RI2[0]}']
    for i in range(8): ep.append(f'v_pk_fma_f32 {A3.t(2*i,2)}, {CS1.t(2*i,2)}, {NM2}, {A3.t(2*i,2)} op_sel_hi:[1,0,1]')
    for i in range(8): ep.append(f'v_pk_mul_f32 {A3.t(2*i,2)}, {A3.t(2*i,2)}, {RI2} op_sel_hi:[1,0]')
    for i in range(8): ep.append(f'v_cvt_pk_bf16_f32 {HP2[i]}, {A3[2*i]}, {A3[2*i+1]}')
    ep += unpack(A3, HP2)
    ep += gelu_pairs(A3, 8, GT, [HP2[i] for i in range(8)])
    ep.append(lambda k_: stores([f'buffer_store_dwordx4 {HP2.t(0,4)}, {vH1o}, {WS}, {sH1} offen', f'buffer_store_dwordx4 {HP2.t(4,4)}, {vH1o}, {WS}, {sH1} offen offset:1024']))
    second, rest1 = merge(second, rest1, per=o.get('pre1_per', 1), tail=False) if not o.get('pre1_late') else (second, rest1)
    k.emit_all(merge(second, ep, every=1, per=o.get('ep_per', 5)))
    stamp('h1_st')

    V.release(A3, CS1, NM2, RI2, GT, ST2, vST2o, vH1o, vW1r, vBr, hz, HA, HNM, HRI, vWTF, vID); A.release(XN, WF)
    S.release(sST2, sH1, sXN, sDEL)

    class V2:
        def __init__(s, a, b): s.r = (a, b)
        def __getitem__(s, i): return s.r[i]
    G = V.alloc(2, 2, 'g')
    I(f'v_mov_b32 {G[0]}, {ARE[0]}\nv_mov_b32 {G[1]}, {AIM[0]}')
    gt = V.alloc(4, 2)
    cur, oth = G, gt.sub(0, 2)
    for r in range(1, 16):
        I(f'v_fma_f32 {oth[0]}, {LAM[0]}, {cur[0]}, {ARE[r]}\nv_fma_f32 {oth[1]}, {LAM[0]}, {cur[1]}, {AIM[r]}')
        I(f'v_fma_f32 {oth[0]}, -{LAM[1]}, {cur[1]}, {oth[0]}\nv_fma_f32 {oth[1]}, {LAM[1]}, {cur[0]}, {oth[1]}')
        cur, oth = oth, cur
    I(f's_lshl_b32 {sA}, {sW}, 9\ns_add_u32 {sA}, {sA}, {L_SEG}\nv_lshl_add_u32 {vt0}, {vL}, 3, {sA}')
    I(f'ds_write_b64 {vt0}, {cur.t(0,2)}')
    publish(1)
    V.release(HP2)
    stamp('h1_pub')
    k.emit_all(rest1)
    k.barrier()
    E = V.alloc(16, 4, 'segs')
    I(f'v_lshlrev_b32 {vt0}, 3, {vL31}\nv_add_u32 {vt0}, {L_SEG}, {vt0}')
    for s in range(8):
        I(f'ds_read_b64 {E.t(2*s,2)}, {vt0} offset:{s*256}')
    CIN = V.alloc(2, 2, 'cin'); P = gt.sub(0, 2); Qq = gt.sub(2, 2)
    I(f's_lshl_b32 {sA}, {sW}, 1\nv_add_u32 {vt0}, {sA}, {vH}')
    I(f'v_mov_b32 {CIN[0]}, 0\nv_mov_b32 {CIN[1]}, 0\nv_mov_b32 {P[0]}, {E[0]}\nv_mov_b32 {P[1]}, {E[1]}')
    for s in range(1, 8):
        I(f'v_cmp_eq_u32 vcc, {s}, {vt0}')
        I(f'v_fma_f32 {Qq[0]}, {L16[0]}, {P[0]}, {E[2*s]}\nv_fma_f32 {Qq[1]}, {L16[0]}, {P[1]}, {E[2*s+1]}')
        I(f'v_cndmask_b32 {CIN[0]}, {CIN[0]}, {P[0]}, vcc\nv_cndmask_b32 {CIN[1]}, {CIN[1]}, {P[1]}, vcc')
        I(f'v_fma_f32 {Qq[0]}, -{L16[1]}, {P[1]}, {Qq[0]}\nv_fma_f32 {Qq[1]}, {L16[1]}, {P[0]}, {Qq[1]}')
        P, Qq = Qq, P
    I(f'v_mov_b32 {E[0]}, {P[0]}\nv_mov_b32 {E[1]}, {vTAGV}\nv_mov_b32 {E[2]}, {P[1]}\nv_mov_b32 {E[3]}, {vTAGV}')
    sSC = S.alloc(1, name='scanbase')
    I(f's_lshl_b32 {sSC}, {sJ}, 9\ns_add_u32 {sSC}, {sSC}, {O_SCAN}\ns_lshl_b32 {sA}, {sT}, 13\ns_add_u32 {sA}, {sA}, {sSC}\nv_lshlrev_b32 {vt0}, 4, {vL31}')
    I(f's_cmp_eq_u32 {sW}, 0\ns_cselect_b64 exec, 0xffffffff, 1')
    if o.get('et_late'):
        pass
    I(f'buffer_store_dwordx4 {E.t(0,4)}, {vt0}, {WS}, {sA} offen sc0 sc1')
    I('s_mov_b64 exec, -1')
    V.release(E, G, gt, L16)
    stamp('scan1')

    sSTG = S.alloc(1, name='stgbase')
    I(f's_mul_i32 {sSTG}, {sW}, {STGW}\ns_add_u32 {sSTG}, {sSTG}, {L_STG}')
    for i in range(1, 4):
        I(f's_xor_b32 {sA}, {sW}, {i}\ns_mul_i32 {sA}, {sA}, {STGW}\ns_add_u32 {sA}, {sA}, {L_STG + (i-1)*4096}\nv_add_u32 {vREDw[i-1]}, {sA}, {vL16}')
    I(f'v_add_u32 {vREDr}, {sSTG}, {vL16}')

    def reduce4(ACC, mid=None):
        k.barrier()
        for i in range(1, 4):
            for q in range(4):
                I(f'ds_write_b128 {vREDw[i-1]}, {ACC[i].t(4*q,4)} offset:{q*1024}')
        if mid:
            mid()
        k.barrier()
        for i in range(3):
            for q in range(4):
                I(f'ds_read_b128 {ACC[i+1].t(4*q,4)}, {vREDr} offset:{i*4096+q*1024}')
        for i in range(3):
            for q in range(8):
                I(f'v_pk_add_f32 {ACC[0].t(2*q,2)}, {ACC[0].t(2*q,2)}, {ACC[i+1].t(2*q,2)}')

    def act_base(dst0, dst1, off, kpt, k0mul):
        for ti, d in ((0, dst0), (1, dst1)):
            I(f's_xor_b32 {sA}, {sT32}, {ti}\ns_lshl_b32 {sB}, {sTH}, 1\ns_add_u32 {sA}, {sA}, {sB}\ns_mul_i32 {sA}, {sA}, {kpt}\ns_mul_i32 {sB}, {sW}, {k0mul}\ns_add_u32 {sA}, {sA}, {sB}\ns_lshl_b32 {sA}, {sA}, 10\ns_add_u32 {sA}, {sA}, {sTB}\ns_add_u32 {d}, {sA}, {off}')

    sB0 = S.alloc(1); sB1 = S.alloc(1)

    def act_load(name, ks, ti, sb0, sb1):
        def f(k_):
            q = Q.take((name, ks, ti))
            sb = sb0 if ti == 0 else sb1
            if ks < 4:
                I(f'buffer_load_dwordx4 {q}, {vL16}, {WS}, {sb} offen offset:{ks*1024} sc1')
            else:
                I(f's_add_u32 {sD}, {sb}, {(ks//4)*4096}\nbuffer_load_dwordx4 {q}, {vL16}, {WS}, {sD} offen offset:{(ks%4)*1024} sc1')
        return f

    def gemm64(ACC, wname, aname, klist, first=True):
        L = []
        for n, ks in enumerate(klist):
            for ti in range(2):
                for ni in range(2):
                    def f(k_, ks=ks, ti=ti, ni=ni, n=n):
                        acc = ACC[2*ti+ni]
                        I(f'v_mfma_f32_32x32x16_bf16 {acc}, {Q[(wname, ks, ni)]}, {Q[(aname, ks, ti)]}, {acc if (n or not first) else 0}')
                        if ni == 1:
                            Q.give((aname, ks, ti))
                        if ti == 1:
                            Q.give((wname, ks, ni))
                    L.append(Anchor(f))
        return L

    vW3r = V.alloc(4, 1, 'w3rd')
    for rd in range(2):
        I(f'v_bfe_u32 {vt0}, {vL}, 2, 2\nv_add_u32 {vt0}, {4*rd}, {vt0}\nv_bfe_u32 {vt1}, {vL}, 4, 1\nv_lshlrev_b32 {vt1}, 2, {vt1}\nv_xor_b32 {vt0}, {vt0}, {vt1}\nv_lshlrev_b32 {vt0}, 5, {vt0}\nv_and_b32 {vt1}, 3, {vL}\nv_lshl_add_u32 {vt0}, {vt1}, 3, {vt0}\nv_lshrrev_b32 {vt1}, 4, {vL}\nv_mul_u32_u24 {vt1}, 1792, {vt1}\nv_add_u32 {vW3r[rd]}, {vt0}, {vt1}')
        I(f'v_add_u32 {vW3r[2+rd]}, {L_UP}, {vW3r[rd]}')
    CS3a = V.at(96, 16, 'cs3a'); CS3b = V.at(160, 12, 'cs3b')
    cs3 = lambda t: CS3a.sub(4*t, 4) if t < 4 else CS3b.sub(4*(t-4), 4)

    QA0 = A.at(0, 128, 'qa0'); QA3 = A.at(192, 64, 'qa3')
    Q.add(QA0.sub(0, 64))
    act_base(sB0, sB1, O_H1, 32, 8)
    I(f's_lshl_b32 {sA}, {sW}, 4\ns_lshl_b64 {sM}, 0xffff, {sA}')
    sOWN = S.alloc(1, name='ownfrag')
    I(f's_lshl_b32 {sA}, {sTH}, 1\ns_add_u32 {sA}, {sA}, {sT32}\ns_lshl_b32 {sA}, {sA}, 5\ns_lshl_b32 {sB}, {sCG}, 2\ns_add_u32 {sA}, {sA}, {sB}\ns_lshl_b32 {sB}, {sN32}, 1\ns_add_u32 {sA}, {sA}, {sB}\ns_lshl_b32 {sA}, {sA}, 10\ns_add_u32 {sOWN}, {sA}, {sTB}')
    poll(1, sM)
    stamp('h1_seen')
    ACC = [V.at(64, 16), V.at(80, 16), V.at(112, 16), V.at(136, 16)]
    for ks in range(8):
        for ti in range(2):
            act_load('h1', ks, ti, sB0, sB1)(k)
    I(f'buffer_load_dwordx4 {XNT.t(0,4)}, {vL16}, {WS}, {sOWN} offen sc1\nbuffer_load_dwordx4 {XNT.t(4,4)}, {vL16}, {WS}, {sOWN} offen offset:1024 sc1')
    if not o.get('w3u_p1', 1):
        k.emit_all(w3_dma(1))
    k.emit_all(w3_dma(0))
    V.release(vW3o); S.release(sW3s, sW3d)
    k.emit_all(gemm64(ACC, 'w2', 'h1', list(range(8))))
    stamp('g4_mfma')
    EG = V.at(208, 32, 'eg'); vEGo = V.alloc(1)
    I(f's_sub_u32 {sA}, {sT}, 1\nv_sub_u32 {vt0}, {sA}, {vH}\nv_lshlrev_b32 {vt0}, 13, {vt0}\nv_lshl_add_u32 {vEGo}, {vL31}, 4, {vt0}')

    def eg_loads(k_=None):
        for i in range(8):
            I(f'v_subrev_u32 {vt1}, {i*16384}, {vEGo}\nbuffer_load_dwordx4 {EG.t(4*i,4)}, {vt1}, {WS}, {sSC} offen sc1')
    reduce4(ACC, mid=eg_loads)
    a0 = ACC[0]; f1 = ACC[1]; tq = ACC[2].sub(0, 8); SQ = ACC[2].sub(8, 2)
    for i in range(8): I(f'v_cvt_pk_bf16_f32 {X1P[i]}, {a0[2*i]}, {a0[2*i+1]}')
    k.emit_all(unpack(a0, X1P)); k.emit_all(unpack(f1, XNT))
    for i in range(8): I(f'v_pk_add_f32 {a0.t(2*i,2)}, {a0.t(2*i,2)}, {f1.t(2*i,2)}')
    for i in range(8): I(f'v_cvt_pk_bf16_f32 {X1P[i]}, {a0[2*i]}, {a0[2*i+1]}')
    I(f's_add_u32 {sC}, {sOWN}, {O_X1}')
    stores([f'buffer_store_dwordx4 {X1P.t(0,4)}, {vL16}, {WS}, {sC} offen', f'buffer_store_dwordx4 {X1P.t(4,4)}, {vL16}, {WS}, {sC} offen offset:1024'])
    k.emit_all(unpack(a0, X1P))
    k.emit_all(sums(a0, SQ, tq)); k.emit_all(xswap(SQ, tq, 32))
    I(f's_lshl_b32 {sA}, {sTH}, 1\ns_add_u32 {sA}, {sA}, {sT32}\ns_lshl_b32 {sA}, {sA}, 12\ns_lshl_b32 {sB}, {sCG}, 9\ns_add_u32 {sA}, {sA}, {sB}\ns_lshl_b32 {sB}, {sN32}, 8\ns_add_u32 {sA}, {sA}, {sB}\ns_add_u32 {sA}, {sA}, {sTB}\ns_add_u32 {sA}, {sA}, {O_ST3}')
    I(f'v_and_b32 {vt0}, 15, {vL}\nv_lshlrev_b32 {vt0}, 4, {vt0}\nv_bfe_u32 {vt1}, {vL}, 4, 1\nv_lshl_add_u32 {vt0}, {vt1}, 3, {vt0}')
    I('s_mov_b64 exec, 0xffffffff')
    stores([f'buffer_store_dwordx2 {SQ}, {vt0}, {WS}, {sA} offen'])
    I('s_mov_b64 exec, -1')
    stamp('x1_st')

    vEX = V.alloc(1); C0 = V.alloc(2, 2); C1 = V.alloc(2, 2)

    def eg_check(lines):
        lines.append(f'v_mov_b32 {vt0}, 0')
        for i in range(8):
            lines.append(f'v_cmp_le_i32 vcc, {i*16384}, {vEGo}\nv_xor_b32 {vt2}, {EG[4*i+1]}, {EG[4*i+3]}\nv_cndmask_b32 {vEX}, 0, {vTAGV}, vcc\nv_xor_b32 {vt1}, {EG[4*i+1]}, {vEX}\nv_or3_b32 {vt0}, {vt0}, {vt1}, {vt2}')
        lines.append(f'v_cmp_ne_u32 vcc, 0, {vt0}')
    L = []; eg_check(L); k.emit_all(L)
    I(f's_mov_b32 {sD}, 0\ns_cbranch_vccnz L_egslow')
    k.label('L_egok')
    sub = Asm(); subI = sub.I
    for i in range(8):
        subI(f'v_subrev_u32 {vt1}, {i*16384}, {vEGo}\nbuffer_load_dwordx4 {EG.t(4*i,4)}, {vt1}, {WS}, {sSC} offen sc1')
    sub.waitcnt(vm=0)
    L = []; eg_check(L); sub.emit_all(L)
    subI(f's_add_u32 {sD}, {sD}, 1\ns_cmp_gt_u32 {sD}, {SPIN}\ns_cbranch_scc1 L_egok\ns_cbranch_vccnz L_egslow\ns_branch L_egok')
    k.tail += ['L_egslow:'] + sub.lines
    publish(2)
    stamp('x1_pub')
    for a in ACC: V.release(a)
    Q.add(QA0.sub(64, 64)); Q.add(QA3)
    npc = o.get('npc', 32)
    k.emit_all(c_loads[:npc])
    I(f'v_mov_b32 {C0[0]}, {EG[28]}\nv_mov_b32 {C0[1]}, {EG[30]}')
    cur, oth = C0, C1
    for i in range(6, -1, -1):
        I(f'v_fma_f32 {oth[0]}, {L256[0]}, {cur[0]}, {EG[4*i]}\nv_fma_f32 {oth[1]}, {L256[0]}, {cur[1]}, {EG[4*i+2]}')
        I(f'v_fma_f32 {oth[0]}, -{L256[1]}, {cur[1]}, {oth[0]}\nv_fma_f32 {oth[1]}, {L256[1]}, {cur[0]}, {oth[1]}')
        cur, oth = oth, cur
    I(f'v_mov_b32 {oth[0]}, {cur[0]}\nv_mov_b32 {oth[1]}, {cur[1]}\nv_permlane32_swap_b32 {oth[0]}, {cur[0]}\nv_permlane32_swap_b32 {oth[1]}, {cur[1]}')
    I(f'v_fmac_f32 {oth[0]}, {L128[0]}, {cur[0]}\nv_fmac_f32 {oth[1]}, {L128[0]}, {cur[1]}\nv_fma_f32 {oth[0]}, -{L128[1]}, {cur[1]}, {oth[0]}\nv_fmac_f32 {oth[1]}, {L128[1]}, {cur[0]}')
    I(f'v_fmac_f32 {CIN[0]}, {LOWN[0]}, {oth[0]}\nv_fmac_f32 {CIN[1]}, {LOWN[0]}, {oth[1]}\nv_fma_f32 {CIN[0]}, -{LOWN[1]}, {oth[1]}, {CIN[0]}\nv_fmac_f32 {CIN[1]}, {LOWN[1]}, {oth[0]}')
    g = CIN; gt = C0
    for r in range(16):
        I(f'v_fma_f32 {gt[0]}, {LAM[0]}, {g[0]}, {ARE[r]}\nv_fma_f32 {gt[1]}, {LAM[0]}, {g[1]}, {AIM[r]}')
        I(f'v_fma_f32 {ARE[r]}, -{LAM[1]}, {g[1]}, {gt[0]}\nv_fma_f32 {AIM[r]}, {LAM[1]}, {g[0]}, {gt[1]}')
        g = V2(ARE[r], AIM[r])
    HR = EG.sub(0, 16); HI = EG.sub(16, 16); PR = ARE.sub(0, 8); PI = ARE.sub(8, 8)
    for r in range(16):
        I(f'v_mul_f32 {HR[r]}, {CF[0]}, {ARE[r]}\nv_mul_f32 {HI[r]}, -{CF[0]}, {AIM[r]}')
    for r in range(16):
        I(f'v_fma_f32 {HR[r]}, -{CF[1]}, {AIM[r]}, {HR[r]}\nv_fma_f32 {HI[r]}, -{CF[1]}, {ARE[r]}, {HI[r]}')
    for i in range(8):
        I(f'v_cvt_pk_bf16_f32 {PR[i]}, {HR[2*i]}, {HR[2*i+1]}\nv_cvt_pk_bf16_f32 {PI[i]}, {HI[2*i]}, {HI[2*i+1]}')
    TRS = 80
    I(f'v_mul_u32_u24 {vt0}, {TRS}, {vL31}\nv_lshl_add_u32 {vt0}, {vH}, 5, {vt0}\nv_add_u32 {vt0}, {sSTG}, {vt0}')
    I(f'ds_write_b128 {vt0}, {PR.t(0,4)}\nds_write_b128 {vt0}, {PR.t(4,4)} offset:16\nds_write_b128 {vt0}, {PI.t(0,4)} offset:{32*TRS}\nds_write_b128 {vt0}, {PI.t(4,4)} offset:{32*TRS+16}')
    I(f'v_bfe_u32 {vt1}, {vL}, 2, 2\nv_lshl_add_u32 {vt1}, {vH}, 3, {vt1}\nv_mul_u32_u24 {vt1}, {TRS}, {vt1}\nv_and_b32 {vt0}, 1, {vL}\nv_lshl_add_u32 {vt1}, {vt0}, 5, {vt1}\nv_bfe_u32 {vt0}, {vL}, 4, 1\nv_lshl_add_u32 {vt1}, {vt0}, 4, {vt1}\nv_bfe_u32 {vt0}, {vL}, 1, 1\nv_lshl_add_u32 {vt1}, {vt0}, 3, {vt1}\nv_add_u32 {vt1}, {sSTG}, {vt1}')
    k.waitcnt(lg=0)
    HF = EG.sub(0, 16)
    for f in range(4):
        for rd in range(2):
            I(f'ds_read_b64_tr_b16 {HF.t(4*f+2*rd,2)}, {vt1} offset:{(16*f + 4*rd)*TRS}')
    I(f's_lshl_b32 {sA}, {sW}, 6\ns_lshl_b32 {sB}, {sJ}, 2\ns_add_u32 {sA}, {sA}, {sB}\ns_lshl_b32 {sA}, {sA}, 10\ns_add_u32 {sA}, {sA}, {sTB}\ns_add_u32 {sA}, {sA}, {O_HS}')
    stores([f'buffer_store_dwordx4 {HF.t(4*f,4)}, {vL16}, {WS}, {sA} offen offset:{f*1024}' for f in range(4)], tag='sths')
    V.release(C0, C1, CIN, ARE, AIM, LAM, CF, L128, L256, LOWN, vEX, vEGo)
    S.release(sSC)
    stamp('hs_st')

    WF = V.at(112, 24, 'wf5')
    vcs = V.alloc(4, 1)
    I(f's_mul_i32 {sA}, {sW}, {2*7168}')
    for i in range(4):
        I(f'v_add_u32 {vcs[i]}, {sA}, {vW3r[i]}')
    cj = [(t, s) for s in range(4) for t in range(7)]
    for i in range(len(cj) + 3):
        if i < len(cj):
            t, s = cj[i]; b = (i % 6) * 4
            for rd in range(2):
                I(f'ds_read_b64_tr_b16 {WF.t(b+2*rd,2)}, {vcs[2*(s>>1)+rd]} offset:{(s&1)*7168 + t*256}')
        if i >= 3:
            t, s = cj[i-3]; b = ((i-3) % 6) * 4
            I(f'v_mfma_f32_16x16x32_bf16 {cs3(t)}, {WF.t(b,4)}, {ONES}, {cs3(t) if s else 0}')
    V.release(vcs, ONES)
    I(f'v_lshrrev_b32 {vt0}, 4, {vL}\nv_lshlrev_b32 {vt0}, 4, {vt0}\nv_add_u32 {vt1}, {sSTG}, {vt0}\nv_add_u32 {vt3}, {L_STG}, {vt0}')
    I('s_mov_b32 exec_lo, 0x00010001\ns_mov_b32 exec_hi, 0x00010001')
    for t in range(7):
        I(f'ds_write_b128 {vt1}, {cs3(t)} offset:{6144 + t*64}')
    I('s_mov_b64 exec, -1')
    publish(3, 'sths')
    V.release(EG)
    k.barrier()
    stamp('cs3')

    I(f's_lshl_b32 {sB}, {sN32}, 1\ns_lshl_b32 {sA}, 0x33333333, {sB}\ns_bitcmp1_b32 {sW}, 1\ns_cselect_b32 {sM[0]}, 0, {sA}\ns_cselect_b32 {sM[1]}, {sA}, 0')
    vFo = V.alloc(1, name='frag16off')
    I(f'v_lshlrev_b32 {vt0}, 10, {vH}\nv_bfe_u32 {vt1}, {vL}, 4, 1\nv_lshl_add_u32 {vt0}, {vt1}, 9, {vt0}\nv_and_b32 {vt1}, 15, {vL}\nv_lshl_add_u32 {vFo}, {vt1}, 4, {vt0}')
    I(f's_lshl_b32 {sB0}, {sW}, 15\ns_add_u32 {sB0}, {sB0}, {sTB}\ns_add_u32 {sB0}, {sB0}, {O_X1}')
    I(f's_lshl_b32 {sB1}, {sW}, 12\ns_add_u32 {sB1}, {sB1}, {sTB}\ns_add_u32 {sB1}, {sB1}, {O_ST3}')
    I(f'v_lshrrev_b32 {vt2}, 4, {vL}\nv_lshlrev_b32 {vt2}, 10, {vt2}\nv_and_b32 {vt1}, 15, {vL}\nv_lshl_add_u32 {vt2}, {vt1}, 4, {vt2}')
    poll(2, sM)
    stamp('x1_seen')
    A5a = V.at(64, 32, 'acc5a'); A5b = V.at(136, 24, 'acc5b')
    a5 = lambda t: A5a.sub(8*t, 8) if t < 4 else A5b.sub(8*(t-4), 8)
    GT = V.at(172, 16, 'gt5'); OP = V.at(188, 8, 'hout'); NM3 = V.at(196, 4, 'nm3'); RI3 = V.at(200, 4, 'ri3')
    SP = GT
    for i in range(4):
        I(f'buffer_load_dwordx4 {SP.t(4*i,4)}, {vt2}, {WS}, {sB1} offen offset:{i*256} sc1')

    def xa_load(s):
        def f(k_):
            for u in range(2):
                q = Q.take(('xa', s, u))
                if s < 2:
                    I(f'buffer_load_dwordx4 {q}, {vFo}, {WS}, {sB0} offen offset:{(s%2)*2048 + u*256} sc1')
                else:
                    I(f's_add_u32 {sD}, {sB0}, {(s//2)*4096}\nbuffer_load_dwordx4 {q}, {vFo}, {WS}, {sD} offen offset:{(s%2)*2048 + u*256} sc1')
        return f
    PF5 = o.get('pf5', 6)
    for s in range(PF5):
        xa_load(s)(k)
    ctmp = V.at(208, 28, 'ctmp')
    for w in range(4):
        for t in range(7):
            I(f'ds_read_b128 {cs3(t) if w == 0 else ctmp.t(4*t,4)}, {vt3} offset:{w*STGW + 6144 + t*64}')
        if w:
            for t in range(7):
                for q in range(2):
                    I(f'v_pk_add_f32 {cs3(t).t(2*q,2)}, {cs3(t).t(2*q,2)}, {ctmp.t(4*t+2*q,2)}')
    V.release(ctmp)
    QV = V.at(208, 48, 'qv'); Q.add(QV)
    tq = OP
    st5 = [f'v_pk_add_f32 {SP.t(0,2)}, {SP.t(0,2)}, {SP.t(4,2)}', f'v_pk_add_f32 {SP.t(2,2)}, {SP.t(2,2)}, {SP.t(6,2)}', f'v_pk_add_f32 {SP.t(8,2)}, {SP.t(8,2)}, {SP.t(12,2)}', f'v_pk_add_f32 {SP.t(10,2)}, {SP.t(10,2)}, {SP.t(14,2)}',
           f'v_pk_add_f32 {SP.t(0,2)}, {SP.t(0,2)}, {SP.t(8,2)}', f'v_pk_add_f32 {SP.t(2,2)}, {SP.t(2,2)}, {SP.t(10,2)}']
    st5 += xswap(SP.sub(0, 4), tq, 16) + xswap(SP.sub(0, 4), tq, 32)
    st5 += zipl(finish_stats(SP.sub(0, 2), NM3[0], RI3[0], None, tq.sub(0, 2)), finish_stats(SP.sub(2, 2), NM3[2], RI3[2], None, tq.sub(2, 2)))

    def w3read(dst, tile, s):
        hi = 2 if s >= 8 else 0
        off = (s % 8) * 7168 + tile * 256
        return [f'ds_read_b64_tr_b16 {dst.t(2*rd,2)}, {vW3r[hi+rd]} offset:{off}' for rd in range(2)]
    j5 = [(t, s) for s in range(16) for t in range(4)] + [(t, s) for s in range(16) for t in (4, 5, 6)]
    AH = 4
    pass1, pass2 = [], []
    for i in range(AH):
        pass1 += w3read(WF.sub((i % 6) * 4, 4), *j5[i])
    nxt = PF5
    for i, (t, s) in enumerate(j5):
        tgt = pass1 if i < 64 else pass2
        if i + AH < len(j5):
            tgt += w3read(WF.sub(((i + AH) % 6) * 4, 4), *j5[i + AH])
        if t == 0 and nxt < 16:
            tgt.append(xa_load(nxt)); nxt += 1
        for u in range(2):
            def f(k_, i=i, t=t, s=s, u=u):
                acc = a5(t).t(4*u, 4)
                I(f'v_mfma_f32_16x16x32_bf16 {acc}, {WF.t((i % 6)*4, 4)}, {Q[("xa", s, u)]}, {acc if s else 0}')
                if t == 6:
                    Q.give(('xa', s, u))
            tgt.append(Anchor(f))
    sH = S.alloc(1, name='hbase')
    I(f's_mul_i32 {sH}, {sW}, 112\ns_mul_i32 {sA}, {sJ}, 7\ns_add_u32 {sH}, {sH}, {sA}\ns_lshl_b32 {sH}, {sH}, 10\ns_add_u32 {sH}, {sH}, {sTB}\ns_add_u32 {sH}, {sH}, {O_H}')

    def ep5(tiles):
        L = []
        for t in tiles:
            for u in range(2):
                for q in range(2):
                    r = a5(t).t(4*u+2*q, 2)
                    L.append(f'v_pk_fma_f32 {r}, {cs3(t).t(2*q,2)}, {NM3.t(2*u,2)}, {r} op_sel_hi:[1,0,1]')
        for t in tiles:
            for u in range(2):
                for q in range(2):
                    r = a5(t).t(4*u+2*q, 2)
                    L.append(f'v_pk_mul_f32 {r}, {r}, {RI3.t(2*u,2)} op_sel_hi:[1,0]')
        base = a5(tiles[0])
        Z = Reg('v', base.b, 8 * len(tiles))
        n = Z.n // 2
        for i in range(n): L.append(f'v_cvt_pk_bf16_f32 {GT[i]}, {Z[2*i]}, {Z[2*i+1]}')
        L += unpack(Z, GT.sub(0, n))
        if len(tiles) == 2:
            outs = [OP[4*u + 2*ti + q] for ti in range(2) for u in range(2) for q in range(2)]
        else:
            outs = [OP[2*u + q] for u in range(2) for q in range(2)]
        L += gelu_pairs(Z, n, GT, outs)
        return L

    def st5pair(P_):
        return lambda k_: (I(f's_add_u32 {sC}, {sH}, {P_*2048}'), stores([f'buffer_store_dwordx4 {OP.t(4*u,4)}, {vFo}, {WS}, {sC} offen offset:{u*256}' for u in range(2)], tag='sth'))
    epA = ep5([0, 1]) + [st5pair(0)] + ep5([2, 3]) + [st5pair(1)]
    epB = ep5([4, 5]) + [st5pair(2)] + ep5([6])
    epB += [f'v_lshlrev_b32 {vt0}, 9, {vH}', f'v_and_b32 {vt1}, 15, {vL}', f'v_lshl_add_u32 {vt0}, {vt1}, 4, {vt0}', f'v_bfe_u32 {vt1}, {vL}, 4, 1', f'v_lshl_add_u32 {vt0}, {vt1}, 3, {vt0}']
    epB += [lambda k_: (I(f's_add_u32 {sC}, {sH}, 6144'), stores([f'buffer_store_dwordx2 {OP.t(2*u,2)}, {vt0}, {WS}, {sC} offen offset:{u*256}' for u in range(2)], tag='sth'))]
    pass1 = merge(pass1, st5, per=1, start=4)
    pre5 = c_loads[npc:] + w4_loads[:12]
    pass1 = merge(pass1, pre5, per=o.get('pre5_per', 0.5), start=o.get('pre5_start', 90))
    k.emit_all(pass1)
    stamp('g5_p1')
    sHS0 = S.alloc(1); sHS1 = S.alloc(1); sM2 = S.alloc(2, 2); vHSF = V.alloc(1)
    I(f's_lshl_b32 {sB}, {sTH}, 1\ns_lshl_b32 {sA}, 0x3333, {sB}\ns_lshl_b32 {sC}, {sW}, 4\ns_mov_b32 {sM2[0]}, {sA}\ns_mov_b32 {sM2[1]}, 0\ns_lshl_b64 {sM2}, {sM2}, {sC}')
    act_base(sHS0, sHS1, O_HS, 64, 16)
    I(f'buffer_load_dword {vHSF}, {vFLG}, {WS}, {sFL} offen offset:{3*256} sc1')
    hs_loads = [act_load('hs', kc, ti, sHS0, sHS1) for kc in range(16) for ti in range(2)]
    pass2 = merge(pass2, [lambda k_: lazy_check(vHSF, sFL, 3*256, sM2)] + hs_loads, every=3, per=1, start=3)
    pass2 = merge(pass2, epA, per=o.get('epa_per', 2.2), start=3)
    k.emit_all(pass2)
    publish(4, 'sth')
    stamp('g5_p2')
    V.release(WF, vW3r, A5a, CS3a, vHSF)

    ACC2 = [V.at(64, 16), V.at(80, 16), V.at(96, 16), V.at(112, 16)]
    XT = V.alloc(8, 4, 'xtile'); DS = V.alloc(8, 4, 'dskip')
    sROW = S.alloc(1, name='tilerow'); sCOL = S.alloc(1, name='tilecol')
    I(f's_lshl_b32 {sROW}, {sT}, 7\ns_lshl_b32 {sA}, {sTH}, 6\ns_add_u32 {sROW}, {sROW}, {sA}\ns_lshl_b32 {sA}, {sT32}, 5\ns_add_u32 {sROW}, {sROW}, {sA}')
    I(f's_lshl_b32 {sCOL}, {sCG}, 6\ns_lshl_b32 {sA}, {sN32}, 5\ns_add_u32 {sCOL}, {sCOL}, {sA}')
    g2 = gemm64(ACC2, 'c', 'hs', list(range(16)))
    g2 = merge(g2, epB + [lambda k_: publish(5, 'sth')], per=o.get('epb_per', 4), start=0)
    nw4 = o.get('w4_g2_start', 24)
    g2, w4rest = merge(g2, w4_loads[12:], per=1, start=nw4, tail=False)
    k.emit_all(g2)
    stamp('g2_mfma')
    V.release(A5b, CS3b, GT, OP, NM3, RI3, vFo)
    S.release(sH, sHS0, sHS1)
    k.emit_all(w4rest)
    I(f'v_lshlrev_b32 {vt0}, 10, {vTAU}\nv_lshl_add_u32 {vt0}, {vH}, 4, {vt0}')
    I(f's_lshl_b32 {sA}, {sROW}, 10\ns_lshl_b32 {sB}, {sCOL}, 1\ns_add_u32 {sA}, {sA}, {sB}')
    I(f'buffer_load_dwordx4 {XT.t(0,4)}, {vt0}, {SRD["X"]}, {sA} offen\nbuffer_load_dwordx4 {XT.t(4,4)}, {vt0}, {SRD["X"]}, {sA} offen offset:32')
    I(f'v_lshlrev_b32 {vt1}, 4, {vH}')
    I(f'buffer_load_dwordx4 {DS.t(0,4)}, {vt1}, {SRD["DSK"]}, {sB} offen\nbuffer_load_dwordx4 {DS.t(4,4)}, {vt1}, {SRD["DSK"]}, {sB} offen offset:32')
    act_base(sB0, sB1, O_H, 112, 28)
    QV2 = V.at(144, 64, 'qv2'); Q.add(QV2)
    h_loads = [act_load('h', ks, ti, sB0, sB1) for ks in G6K for ti in range(2)]
    poll(4, sM2)
    stamp('ha_seen')
    nh0 = min(len(Q.free), 32)
    k.emit_all(h_loads[:nh0])
    reduce4(ACC2)
    I(f's_cmp_lg_u32 s2, 255\ns_cbranch_scc1 L_noep\ns_cmp_lg_u32 {sW}, 0\ns_cbranch_scc1 L_noep\ns_mov_b32 {sA}, {O_EPOCH}\ns_mov_b64 exec, 1')
    k.raw(f'  buffer_store_dword {vTAGV}, {vZERO}, {WS}, {sA} offen sc0 sc1\n  s_waitcnt vmcnt(0)\n  s_mov_b64 exec, -1')
    k.label('L_noep')
    SS = ACC2[0]
    f1 = ACC2[1]; f2 = ACC2[2]; pp = ACC2[3].sub(0, 8)
    k.emit_all(unpack(f1, XNT)); k.emit_all(unpack(f2, DS))
    for i in range(8): I(f'v_pk_mul_f32 {f1.t(2*i,2)}, {f1.t(2*i,2)}, {f2.t(2*i,2)}')
    for i in range(8): I(f'v_cvt_pk_bf16_f32 {pp[i]}, {f1[2*i]}, {f1[2*i+1]}')
    k.emit_all(unpack(f1, pp))
    for i in range(8): I(f'v_pk_add_f32 {SS.t(2*i,2)}, {SS.t(2*i,2)}, {f1.t(2*i,2)}')
    V.release(DS, XNT)
    stamp('g2')

    A6x = V.at(128, 16, 'acc6x')
    ACC6 = [ACC2[1], ACC2[2], ACC2[3], A6x]
    g6 = gemm64(ACC6, 'w4', 'h', G6K)
    assert nh0 <= 32
    vHBF = V.alloc(1)
    rest = h_loads[nh0:32] + [f'buffer_load_dword {vHBF}, {vFLG}, {WS}, {sFL} offen offset:{5*256} sc1', lambda k_: lazy_check(vHBF, sFL, 5*256, sM2)] + h_loads[32:]
    g6 = merge(g6, rest, every=2, per=o.get('h_per', 1.5), start=2)
    k.emit_all(g6)
    stamp('g6_mfma')
    reduce4(ACC6)
    a0 = ACC6[0]; f1 = ACC6[1]; e_ = ACC6[2]; pp = ACC6[3].sub(0, 8); NL = ACC6[3].sub(8, 2)
    I(f'v_mov_b32 {NL[0]}, {hx(-LOG2E)}')
    for i in range(8): I(f'v_cvt_pk_bf16_f32 {pp[i]}, {a0[2*i]}, {a0[2*i+1]}')
    k.emit_all(unpack(a0, pp)); k.emit_all(unpack(f1, X1P))
    for i in range(8): I(f'v_pk_add_f32 {a0.t(2*i,2)}, {a0.t(2*i,2)}, {f1.t(2*i,2)}')
    for i in range(8): I(f'v_cvt_pk_bf16_f32 {pp[i]}, {a0[2*i]}, {a0[2*i+1]}')
    k.emit_all(unpack(a0, pp))
    for i in range(8): I(f'v_pk_mul_f32 {e_.t(2*i,2)}, {a0.t(2*i,2)}, {NL} op_sel_hi:[1,0]')
    for i in range(16): I(f'v_exp_f32 {e_[i]}, {e_[i]}')
    for i in range(8): I(f'v_pk_add_f32 {e_.t(2*i,2)}, {e_.t(2*i,2)}, {gONE} op_sel_hi:[1,0]')
    for i in range(16): I(f'v_rcp_f32 {e_[i]}, {e_[i]}')
    for i in range(8): I(f'v_pk_mul_f32 {a0.t(2*i,2)}, {a0.t(2*i,2)}, {e_.t(2*i,2)}')
    for i in range(8): I(f'v_cvt_pk_bf16_f32 {pp[i]}, {a0[2*i]}, {a0[2*i+1]}')
    k.emit_all(unpack(a0, pp)); k.emit_all(unpack(f1, XT))
    for i in range(8): I(f'v_pk_fma_f32 {a0.t(2*i,2)}, {a0.t(2*i,2)}, {SS.t(2*i,2)}, {f1.t(2*i,2)}')
    I(f'v_lshlrev_b32 {vt0}, 11, {vTAU}\nv_lshl_add_u32 {vt0}, {vH}, 5, {vt0}\ns_lshl_b32 {sA}, {sROW}, 11\ns_lshl_b32 {sB}, {sCOL}, 2\ns_add_u32 {sA}, {sA}, {sB}')
    for q in range(4):
        I(f'buffer_store_dwordx4 {a0.t(4*q,4)}, {vt0}, {SRD["OUT"]}, {sA} offen offset:{(q>>1)*64 + (q&1)*16}')
    stamp('end')
    if o['stamps']:
        i = nstamp[0]
        I(f'v_writelane_b32 {c.vSTP}, {c.STP[2 * ((i - 1) & 1)]}, {i - 1}')
        I(f's_lshl_b32 {sA}, s2, 2\ns_add_u32 {sA}, {sA}, {sW}\ns_lshl_b32 {sA}, {sA}, 8\ns_add_u32 {sA}, {sA}, {O_DBG}')
        I(f'buffer_store_dword {c.vSTP}, {vFLG}, {WS}, {sA} offen')
    k.label('L_end')
    k.raw('  s_endpgm')
    return k.lines + k.tail, k


from gen import layout

if __name__ == '__main__':
    import json
    opts = json.loads(sys.argv[2]) if len(sys.argv) > 2 else {}
    body, k = gen(opts)
    txt, size = layout(body, k)
    open(sys.argv[1], 'w').write(txt)
    print('code bytes', size, 'vpeak', k.V.peak, 'apeak', k.A.peak, 'speak', k.S.peak, k.stat)
    open(sys.argv[1] + '.names', 'w').write(','.join(k.stampnames))
```

```python
import sys, struct, math
sys.path.insert(0, 'work')
from asmb import *

KNAME = 'recurrent_scan__ssm_conv_s5__mixer_s_mlp__prompt_kernel'
HDR = open('recurrent_scan__ssm_conv_s5__mixer_s_mlp__prompt.s.ref').read().split('; @launch')[0]

def f2u(x):
    return struct.unpack('<I', struct.pack('<f', x))[0]
def hx(x):
    return '0x%08x' % f2u(x)

TS = 0x120000
O_XN, O_H1, O_X1, O_HS, O_H = 0x0, 0x20000, 0x40000, 0x60000, 0xA0000
O_ST2, O_ST3, O_FLG, O_IDS = 0x110000, 0x111000, 0x118000, 0x119000
O_SCAN = 0x1400000
O_EPOCH = 0x1480000
O_WTF = 0x14C0000
O_WT = 0x1500000
WTS = 104 * 1024
O_DBG = 0x1900000
L_BB, BROW = 0, 1040
L_W1 = 66560
L_MISC = 99328
L_STX = L_MISC
L_HALO = L_MISC + 1280
L_HRED = L_MISC + 5376
L_UP = 106496
L_STG = 57344
STGW = 12288
L_SEG = L_HALO
LDS_BYTES = 163840
SPIN = 50000

LOG2E = 1.4426950408889634
GC0 = -2.0 * math.sqrt(2.0 / math.pi) * LOG2E
GC1 = GC0 * 0.044715


class Ctx:
    pass


def gen(opts=None):
    o = dict(stamps=False, stop=None)
    o.update(opts or {})
    k = Asm()
    I = k.I
    V, A, S = k.V, k.A, k.S
    k.raw(HDR.rstrip('\n'))
    k.raw(f'; @launch grid=(256,1,1) block=(256,1,1) lds={LDS_BYTES}')
    k.raw('.amdgcn_target "amdgcn-amd-amdhsa--gfx950"\n.text\n.globl %s\n.p2align 12\n.type %s,@function\n%s:' % (KNAME, KNAME, KNAME))

    KA = S.at(16, 16, 'ka0'); KB = S.at(32, 16, 'ka1'); KW = S.at(48, 2, 'kaws')
    names = ['X', 'BRE', 'BIM', 'CRE', 'CIM', 'W1', 'W2', 'W3', 'W4', 'OUT', 'WS', 'DSK']
    SRD = {n: S.at(52 + 4 * i, 4, n) for i, n in enumerate(names)}
    sT, sJ, sW, sTB, sTAG, sSLOW = [S.alloc(1, name=n) for n in ('T', 'J', 'W', 'TB', 'TAG', 'SLOW')]
    sA, sB, sC, sD = [S.alloc(1, name=f'tmp{i}') for i in range(4)]
    sXCC = S.alloc(1, name='xcc')
    sM = S.at(50, 2, 'mask')
    sEP = S.alloc(1, name='epoch')

    nstamp = [0]
    c = Ctx(); c.STP = None; c.vSTP = None

    def stamp(name):
        if o['stamps']:
            i = nstamp[0]; nstamp[0] += 1
            if i:
                I(f'v_writelane_b32 {c.vSTP}, {c.STP[2 * ((i - 1) & 1)]}, {i - 1}')
            I(f's_memtime {c.STP.t(2 * (i & 1), 2)}')
            k.stampnames.append(name)
    k.stampnames = []

    I('s_cmp_ge_u32 s2, 256')
    I('s_cbranch_scc1 L_end')
    I(f's_load_dwordx16 {KA}, s[0:1], 0')
    I(f's_load_dwordx16 {KB}, s[0:1], 64')
    I(f's_load_dwordx2 {KW}, s[0:1], 128')
    I(f's_getreg_b32 {sXCC}, hwreg(HW_REG_XCC_ID)')
    I(f's_and_b32 {sXCC}, {sXCC}, 15')
    vL = V.alloc(1, name='lane'); vt0 = V.alloc(1); vt1 = V.alloc(1); vt2 = V.alloc(1); vt3 = V.alloc(1)
    I(f'v_and_b32 {vL}, 63, v0')
    I(f'v_lshrrev_b32 {vt0}, 6, v0')
    I(f'v_readfirstlane_b32 {sW}, {vt0}')
    I(f's_and_b32 {sT}, s2, 7\ns_lshl_b32 {sT}, {sT}, 1\ns_lshr_b32 {sA}, s2, 7\ns_add_u32 {sT}, {sT}, {sA}')
    I(f's_lshr_b32 {sJ}, s2, 3\ns_and_b32 {sJ}, {sJ}, 15')
    I(f's_mul_i32 {sTB}, {sT}, {TS}')
    vL31 = V.alloc(1, name='l31'); vH = V.alloc(1, name='h'); vL16 = V.alloc(1, name='lane*16')
    vTAU = V.alloc(1, name='tau'); vMASK = V.alloc(1, name='hi16mask'); vTAGV = V.alloc(1, name='tagv'); vZERO = V.alloc(1, name='zero')
    vREDw = V.alloc(3, 1, 'redw'); vREDr = V.alloc(1, name='redr'); vFLG = V.alloc(1, name='flagoff'); vLN = V.alloc(2, 1, 'lane16^nt')
    GK = V.alloc(6, 2, 'gk')
    if o['stamps']:
        c.vSTP = V.alloc(1, name='stamps')
    X1P = V.alloc(8, 4, 'x1p'); XNT = V.alloc(8, 4, 'xnt')
    vP8 = V.alloc(1, name='p8'); vQ8 = V.alloc(1, name='q8')
    I(f'v_and_b32 {vP8}, 7, {vL}\nv_lshrrev_b32 {vQ8}, 3, {vL}\nv_and_b32 {vL31}, 31, {vL}\nv_lshrrev_b32 {vH}, 5, {vL}\nv_lshlrev_b32 {vL16}, 4, {vL}')
    vXo = V.alloc(1); vHo = V.alloc(1)
    I(f'v_lshrrev_b32 {vt0}, 2, {vP8}\nv_lshlrev_b32 {vt0}, 4, {vt0}\nv_and_b32 {vt1}, 3, {vP8}\nv_add_u32 {vt0}, {vt0}, {vt1}\nv_lshlrev_b32 {vt0}, 10, {vt0}')
    I(f'v_lshl_add_u32 {vXo}, {vQ8}, 4, {vt0}')
    I(f'v_and_b32 {vt1}, 1, {vP8}\nv_lshlrev_b32 {vt1}, 10, {vt1}\nv_lshl_add_u32 {vHo}, {vQ8}, 4, {vt1}')
    I(f's_lshl_b32 {sA}, {sT}, 7\ns_lshr_b32 {sB}, {sJ}, 2\ns_lshl_b32 {sB}, {sB}, 5\ns_add_u32 {sA}, {sA}, {sB}\ns_and_b32 {sB}, {sJ}, 3\ns_lshl_b32 {sB}, {sB}, 2\ns_add_u32 {sA}, {sA}, {sB}\ns_lshl_b32 {sA}, {sA}, 10\ns_lshl_b32 {sB}, {sW}, 8\ns_add_u32 {sA}, {sA}, {sB}')
    I(f's_bitcmp1_b32 {sJ}, 2\ns_cselect_b32 {sC}, 128, -2\ns_lshl_b32 {sD}, {sT}, 7\ns_add_u32 {sC}, {sC}, {sD}\ns_lshl_b32 {sC}, {sC}, 10\ns_add_u32 {sC}, {sC}, {sB}')
    I(f's_mov_b32 {sD}, {O_EPOCH}')

    def srd(name, lo, size):
        r = SRD[name]
        I(f's_mov_b32 {r[0]}, {lo[0]}\ns_and_b32 {r[1]}, {lo[1]}, 0xffff\ns_mov_b32 {r[2]}, {size}\ns_mov_b32 {r[3]}, 0x20000')
    srd('X', KA.sub(0, 2), 0x200000)
    I(f's_load_dword {sEP}, {KW}, {sD}')
    XP = V.alloc(8, 4, 'xp'); HP = V.alloc(8, 4, 'hp')
    I(f'buffer_load_dwordx4 {XP.t(0,4)}, {vXo}, {SRD["X"]}, {sA} offen')
    I(f'buffer_load_dwordx4 {XP.t(4,4)}, {vXo}, {SRD["X"]}, {sA} offen offset:128')
    I(f'buffer_load_dwordx4 {HP.t(0,4)}, {vHo}, {SRD["X"]}, {sC} offen')
    I(f'buffer_load_dwordx4 {HP.t(4,4)}, {vHo}, {SRD["X"]}, {sC} offen offset:128')
    V.release(vXo, vHo)
    srd('W1', KB.sub(4, 2), 0x80000)
    vW1o = V.alloc(1, name='w1o')
    I(f'v_lshrrev_b32 {vt0}, 2, {vL}\nv_lshlrev_b32 {vt0}, 10, {vt0}\nv_and_b32 {vt1}, 3, {vL}\nv_lshl_add_u32 {vW1o}, {vt1}, 4, {vt0}')
    I(f's_lshl_b32 {sA}, {sW}, 17\ns_lshl_b32 {sB}, {sJ}, 6\ns_add_u32 {sA}, {sA}, {sB}\ns_lshl_b32 {sB}, {sW}, 13\ns_add_u32 m0, {sB}, {L_W1}')
    for i in range(8):
        I(f'buffer_load_dwordx4 {vW1o}, {SRD["W1"]}, {sA} offen lds #wdma')
        if i < 7:
            I(f's_add_u32 {sA}, {sA}, 16384\ns_add_u32 m0, m0, 1024')
    srd('WS', KW, 0x10000000)
    srd('BRE', KA.sub(6, 2), 0x80000); srd('BIM', KA.sub(8, 2), 0x80000)
    srd('W2', KB.sub(6, 2), 0x80000)
    srd('CRE', KA.sub(10, 2), 0x80000); srd('CIM', KA.sub(12, 2), 0x80000)
    srd('W3', KB.sub(8, 2), 1835008); srd('W4', KB.sub(10, 2), 1835008)
    srd('OUT', KB.sub(12, 2), 0x400000)
    srd('DSK', KB.sub(0, 2), 1024)
    WS = SRD['WS']
    S.release(KA.sub(6, 8), KB, KW)
    vLre = V.alloc(1); vLim = V.alloc(1); vLdt = V.alloc(1)
    I(f's_lshl_b32 {sA}, {sJ}, 6\nv_lshl_add_u32 {vt0}, {vL31}, 1, {sA}')
    I(f'global_load_ushort {vLre}, {vt0}, {KA.t(2,2)}\nglobal_load_ushort {vLim}, {vt0}, {KA.t(4,2)}\nglobal_load_ushort {vLdt}, {vt0}, {KA.t(14,2)}')
    vJUNK = V.alloc(1)
    I(f's_getpc_b64 {KA.t(0,2)}')
    k.label('L_pc')
    I(f's_lshr_b32 {sA}, s2, 3\ns_lshl_b32 {sA}, {sA}, 11')
    I(f'v_lshl_add_u32 {vt0}, v0, 3, {sA}\nv_min_u32 {vt0}, L_codeend-L_pc-4, {vt0}\nglobal_load_dword {vJUNK}, {vt0}, {KA.t(0,2)}')
    S.release(KA.sub(0, 6), KA.sub(14, 2))
    if o['stamps']:
        c.STP = S.alloc(4, 2, 'stamps')
    stamp('start')
    if o.get('dbg') is not None:
        c.RT = S.alloc(2, 2, 'rt0')
        I(f's_memrealtime {c.RT}')
    sTH, sCG, sN32, sT32 = [S.alloc(1, name=n) for n in ('th', 'cg', 'n32', 't32')]
    I(f's_lshr_b32 {sTH}, {sJ}, 3\ns_and_b32 {sCG}, {sJ}, 7\ns_and_b32 {sN32}, {sW}, 1\ns_lshr_b32 {sT32}, {sW}, 1')

    sPC, sPW, sPI, sPD = [S.alloc(1, name=n) for n in ('pcg', 'pw', 'pi', 'pdst')]
    I(f's_lshr_b32 {sPC}, {sJ}, 1\ns_and_b32 {sPW}, {sJ}, 1\ns_lshl_b32 {sPW}, {sPW}, 1\ns_and_b32 {sA}, {sT}, 1\ns_add_u32 {sPW}, {sPW}, {sA}\ns_lshr_b32 {sPI}, {sT}, 1')
    I(f's_lshl_b32 {sA}, {sPC}, 2\ns_add_u32 {sA}, {sA}, {sPW}\ns_mul_i32 {sPD}, {sA}, {WTS}\ns_add_u32 {sPD}, {sPD}, {O_WT}')
    CQ = V.alloc(4, 4, 'cpiece')
    I(f'v_and_b32 {vt0}, 0x13, {vL}\nv_bfe_u32 {vt1}, {vL}, 2, 1\nv_lshl_add_u32 {vt0}, {vt1}, 3, {vt0}\nv_bfe_u32 {vt1}, {vL}, 3, 1\nv_lshl_add_u32 {vt0}, {vt1}, 2, {vt0}\nv_lshlrev_b32 {vt0}, 10, {vt0}\nv_lshl_add_u32 {vt0}, {vH}, 4, {vt0}')
    I(f's_lshl_b32 {sA}, {sPC}, 16\ns_lshl_b32 {sB}, {sN32}, 15\ns_add_u32 {sA}, {sA}, {sB}\ns_lshl_b32 {sB}, {sPW}, 8\ns_add_u32 {sA}, {sA}, {sB}\ns_lshr_b32 {sB}, {sPI}, 1\ns_lshl_b32 {sB}, {sB}, 6\ns_add_u32 {sA}, {sA}, {sB}\ns_lshl_b32 {sB}, {sT32}, 5\ns_add_u32 {sA}, {sA}, {sB}')
    I(f's_bitcmp1_b32 {sPI}, 0\ns_cbranch_scc1 L_cim')
    k.raw(f'  buffer_load_dwordx4 {CQ}, {vt0}, {SRD["CRE"]}, {sA} offen\n  s_branch L_cdone\nL_cim:')
    I(f'buffer_load_dwordx4 {CQ}, {vt0}, {SRD["CIM"]}, {sA} offen #craw')
    k.label('L_cdone')
    I(f's_mul_i32 {sA}, {sPW}, 448\ns_lshr_b32 {sB}, {sPI}, 1\ns_mul_i32 {sB}, {sB}, 112\ns_add_u32 {sA}, {sA}, {sB}\ns_lshl_b32 {sB}, {sW}, 5\ns_add_u32 {sA}, {sA}, {sB}\ns_lshl_b32 {sA}, {sA}, 10\ns_lshl_b32 {sB}, {sPC}, 7\ns_add_u32 {sA}, {sA}, {sB}\ns_and_b32 {sC}, {sPI}, 1\ns_lshl_b32 {sC}, {sC}, 6\ns_add_u32 {sA}, {sA}, {sC}')
    I(f's_mul_i32 {sC}, {sW}, 3072\ns_add_u32 m0, {sC}, {L_UP}')
    I(f'buffer_load_dwordx4 {vW1o}, {SRD["W4"]}, {sA} offen lds #praw')
    I(f's_add_u32 m0, m0, 1024\ns_cmp_eq_u32 {sW}, 3\ns_cbranch_scc1 L_pw3')
    k.raw(f'  s_add_u32 {sA}, {sA}, 16384\n  buffer_load_dwordx4 {vW1o}, {SRD["W4"]}, {sA} offen lds\n  buffer_load_dword {vJUNK}, {vL16}, {SRD["W4"]}, {sA} offen\n  s_branch L_pdone\nL_pw3:')
    I(f's_lshl_b32 {sA}, {sPW}, 17\ns_lshl_b32 {sC}, {sPI}, 14\ns_add_u32 {sA}, {sA}, {sC}\ns_add_u32 {sA}, {sA}, {sB}')
    I(f'buffer_load_dwordx4 {vW1o}, {SRD["W2"]}, {sA} offen lds #praw\ns_add_u32 m0, m0, 1024\ns_add_u32 {sA}, {sA}, 64')
    I(f'buffer_load_dwordx4 {vW1o}, {SRD["W2"]}, {sA} offen lds #praw')
    k.label('L_pdone')
    k.fence(1)

    sBs = S.alloc(1, name='bsrc'); sBd = S.alloc(1, name='bdst')
    I(f's_lshl_b32 {sBs}, {sJ}, 15\ns_lshl_b32 {sA}, {sW}, 13\ns_add_u32 {sBs}, {sBs}, {sA}\ns_mul_i32 {sBd}, {sW}, {8*BROW}')

    def bdma(i):
        nm = 'BRE' if i < 8 else 'BIM'
        r = i % 8
        return [f's_add_u32 m0, {sBd}, {L_BB + (32 if i >= 8 else 0) * BROW + r * BROW}\ns_add_u32 {sD}, {sBs}, {r*1024}\nbuffer_load_dwordx4 {vL16}, {SRD[nm]}, {sD} offen lds #wdma']
    NB1 = o.get('nb1', 6)
    for i in range(NB1):
        k.emit_all(bdma(i))

    I('s_mov_b64 exec, 0')
    for w in range(4):
        I(f's_cmp_eq_u32 {sW}, {w}\ns_cbranch_scc1 L_stub{w}')
    k.label('L_stubret')
    I('s_mov_b64 exec, -1')
    stamp('stubs')

    I(f'v_mov_b32 {vMASK}, 0xffff0000\nv_mov_b32 {vZERO}, 0\nv_lshlrev_b32 {vFLG}, 2, {vL}')
    I(f'v_mov_b32 {GK[0]}, {hx(GC1)}\nv_mov_b32 {GK[2]}, {hx(GC0)}\nv_mov_b32 {GK[4]}, 1.0')
    gC1, gC0, gONE = GK.t(0, 2), GK.t(2, 2), GK.t(4, 2)
    I(f'v_bfe_u32 {vt0}, {vL31}, 2, 1\nv_lshlrev_b32 {vt0}, 4, {vt0}\nv_lshrrev_b32 {vt1}, 3, {vL31}\nv_lshl_add_u32 {vt0}, {vt1}, 2, {vt0}\nv_and_b32 {vt1}, 3, {vL31}\nv_add_u32 {vTAU}, {vt0}, {vt1}')
    for ni in range(2):
        I(f's_xor_b32 {sA}, {sN32}, {ni}\ns_lshl_b32 {sA}, {sA}, 10\nv_add_u32 {vLN[ni]}, {sA}, {vL16}')
    vTRI = V.alloc(1, name='tr_inner')
    I(f'v_bfe_u32 {vt0}, {vL}, 2, 2\nv_lshlrev_b32 {vt0}, 6, {vt0}\nv_bfe_u32 {vt1}, {vL}, 4, 1\nv_lshl_add_u32 {vt0}, {vt1}, 5, {vt0}\nv_and_b32 {vt1}, 1, {vL}\nv_lshl_add_u32 {vt0}, {vt1}, 4, {vt0}\nv_bfe_u32 {vt1}, {vL}, 1, 1\nv_lshl_add_u32 {vTRI}, {vt1}, 3, {vt0}')
    sFL = S.alloc(1, name='flagbase'); sMYF = S.alloc(1, name='myflag')
    I(f's_add_u32 {sFL}, {sTB}, {O_FLG}\ns_lshl_b32 {sMYF}, {sJ}, 4\ns_lshl_b32 {sA}, {sW}, 2\ns_add_u32 {sMYF}, {sMYF}, {sA}\ns_add_u32 {sMYF}, {sMYF}, {sFL}')
    vSTXw = V.alloc(1); vSTXr = V.alloc(1)
    I(f's_lshl_b32 {sA}, {sW}, 4\ns_add_u32 {sA}, {sA}, {L_STX}\nv_lshl_add_u32 {vSTXw}, {vP8}, 6, {sA}\nv_lshlrev_b32 {vSTXr}, 6, {vP8}\nv_add_u32 {vSTXr}, {L_STX}, {vSTXr}')
    vSo = V.alloc(1)
    I(f'v_lshrrev_b32 {vt0}, 1, {vQ8}\nv_lshlrev_b32 {vt0}, 10, {vt0}\nv_and_b32 {vt1}, 1, {vQ8}\nv_lshl_add_u32 {vt0}, {vt1}, 9, {vt0}\nv_lshl_add_u32 {vSo}, {vP8}, 4, {vt0}')
    sXS = S.alloc(2, 1, 'xnst')
    I(f's_lshr_b32 {sA}, {sJ}, 2\ns_lshl_b32 {sA}, {sA}, 15\ns_lshl_b32 {sB}, {sW}, 13\ns_add_u32 {sA}, {sA}, {sB}\ns_and_b32 {sB}, {sJ}, 3\ns_lshl_b32 {sB}, {sB}, 7\ns_add_u32 {sA}, {sA}, {sB}\ns_add_u32 {sA}, {sA}, {sTB}\ns_add_u32 {sXS[1]}, {sA}, {O_XN + 4096}\ns_add_u32 {sXS[0]}, {sA}, {O_XN}')
    I(f's_add_u32 {sTAG}, {sEP}, 16\ns_and_b32 {sTAG}, {sTAG}, -16\nv_mov_b32 {vTAGV}, {sTAG}')
    I(f's_or_b32 {sA}, {sTAG}, {sXCC}\nv_mov_b32 {vt0}, {sA}\ns_lshl_b32 {sB}, {sJ}, 2\ns_add_u32 {sB}, {sB}, {sTB}\ns_add_u32 {sB}, {sB}, {O_IDS}\ns_mov_b64 exec, 1')
    I(f'buffer_store_dword {vt0}, {vZERO}, {WS}, {sB} offen\ns_mov_b64 exec, -1')
    stamp('tag')

    def unpack(dst, src):
        L = []
        for i in range(src.n):
            L.append(f'v_lshlrev_b32 {dst[2*i]}, 16, {src[i]}')
            L.append(f'v_and_b32 {dst[2*i+1]}, {vMASK}, {src[i]}')
        return L

    def sums(F, SQ, t):
        n = F.n // 2
        L = [f'v_pk_add_f32 {t.t(0,2)}, {F.t(0,2)}, {F.t(2,2)}', f'v_pk_mul_f32 {t.t(2,2)}, {F.t(0,2)}, {F.t(0,2)}', f'v_pk_fma_f32 {t.t(2,2)}, {F.t(2,2)}, {F.t(2,2)}, {t.t(2,2)}']
        for i in range(2, n):
            L.append(f'v_pk_add_f32 {t.t(0,2)}, {t.t(0,2)}, {F.t(2*i,2)}')
            L.append(f'v_pk_fma_f32 {t.t(2,2)}, {F.t(2*i,2)}, {F.t(2*i,2)}, {t.t(2,2)}')
        L.append(f'v_add_f32 {SQ[0]}, {t[0]}, {t[1]}')
        L.append(f'v_add_f32 {SQ[1]}, {t[2]}, {t[3]}')
        return L

    def xswap(SQ, t, which):
        n = SQ.n
        return ([f'v_mov_b32 {t[i]}, {SQ[i]}' for i in range(n)] + [f'v_permlane{which}_swap_b32 {SQ[i]}, {t[i]}' for i in range(n)]
                + [f'v_add_f32 {SQ[i]}, {SQ[i]}, {t[i]}' for i in range(n)])

    def finish_stats(SQ, NM, RI, PK, t, n=512):
        L = [f'v_mul_f32 {SQ[0]}, {hx(1.0/n)}, {SQ[0]}', f'v_mul_f32 {SQ[1]}, {hx(1.0/n)}, {SQ[1]}',
             f'v_fma_f32 {SQ[1]}, -{SQ[0]}, {SQ[0]}, {SQ[1]}', f'v_max_f32 {SQ[1]}, 0, {SQ[1]}',
             f'v_cvt_pk_bf16_f32 {t[0]}, {SQ[0]}, {SQ[1]}',
             f'v_and_b32 {t[1]}, {vMASK}, {t[0]}', f'v_add_f32 {t[1]}, {hx(1e-5)}, {t[1]}', f'v_cvt_pk_bf16_f32 {t[1]}, {t[1]}, {t[1]}',
             f'v_and_b32 {t[1]}, {vMASK}, {t[1]}', f'v_sqrt_f32 {t[1]}, {t[1]}', f'v_cvt_pk_bf16_f32 {t[1]}, {t[1]}, {t[1]}', f'v_and_b32 {t[1]}, {vMASK}, {t[1]}',
             f'v_rcp_f32 {RI}, {t[1]}', f'v_lshlrev_b32 {NM}, 16, {t[0]}']
        if PK is not None:
            L.append(f'v_lshrrev_b32 {t[0]}, 16, {NM}')
            L.append(f'v_or_b32 {PK}, {t[0]}, {t[1]}')
        L.append(f'v_xor_b32 {NM}, 0x80000000, {NM}')
        return L

    def zipl(a, b):
        out = []
        for i in range(max(len(a), len(b))):
            if i < len(a): out.append(a[i])
            if i < len(b): out.append(b[i])
        return out

    def row_stats2(F, F2, SQ, t, area, mid=None):
        k.emit_all(zipl(sums(F, SQ.sub(0, 2), t.sub(0, 4)), sums(F2, SQ.sub(2, 2), t.sub(4, 4))))
        for i in range(4):
            I(f'v_add_f32_dpp {SQ[i]}, {SQ[i]}, {SQ[i]} row_ror:8 row_mask:0xf bank_mask:0xf')
        k.emit_all(xswap(SQ, t, 16)); k.emit_all(xswap(SQ, t, 32))
        I(f's_mov_b64 exec, 0xff\nds_write_b128 {vSTXw}, {SQ} offset:{area*512}\ns_mov_b64 exec, -1')
        if mid:
            mid()
        k.barrier()
        for i in range(4):
            I(f'ds_read_b128 {t.t(4*i,4)}, {vSTXr} offset:{area*512+16*i}')
        I(f'v_pk_add_f32 {t.t(0,2)}, {t.t(0,2)}, {t.t(4,2)}\nv_pk_add_f32 {t.t(8,2)}, {t.t(8,2)}, {t.t(12,2)}\nv_pk_add_f32 {t.t(2,2)}, {t.t(2,2)}, {t.t(6,2)}\nv_pk_add_f32 {t.t(10,2)}, {t.t(10,2)}, {t.t(14,2)}')
        I(f'v_pk_add_f32 {SQ.t(0,2)}, {t.t(0,2)}, {t.t(8,2)}\nv_pk_add_f32 {SQ.t(2,2)}, {t.t(2,2)}, {t.t(10,2)}')

    def normalize(F, P, NM, RI):
        nm = f'v[{NM.b}:{NM.b+1}]'; ri = f'v[{RI.b}:{RI.b+1}]'
        for i in range(8):
            I(f'v_pk_add_f32 {F.t(2*i,2)}, {F.t(2*i,2)}, {nm} op_sel_hi:[1,0]')
        for i in range(8):
            I(f'v_cvt_pk_bf16_f32 {P[i]}, {F[2*i]}, {F[2*i+1]}')
        k.emit_all(unpack(F, P))
        for i in range(8):
            I(f'v_pk_mul_f32 {F.t(2*i,2)}, {F.t(2*i,2)}, {ri} op_sel_hi:[1,0]')
        for i in range(8):
            I(f'v_cvt_pk_bf16_f32 {P[i]}, {F[2*i]}, {F[2*i+1]}')

    def stores(L, tag='st'):
        ls = k.newlabel('L_slow'); lr = k.newlabel('L_sret')
        I(f's_cmp_lg_u32 {sSLOW}, 0')
        mark = len(k.lines)
        for t in L:
            I(t + f' #{tag}')
        body = k.lines[mark:]
        del k.lines[mark:]
        pre = []
        while body and not body[0].lstrip().startswith('buffer_store'):
            pre.append(body.pop(0))
        k.lines += pre
        k.lines.append(f'  s_cbranch_scc1 {ls}')
        k.lines += body
        k.lines.append(lr + ':')
        k.tail.append(ls + ':')
        for b in body:
            k.tail.append(b + ' sc0 sc1' if b.lstrip().startswith('buffer_store') else b)
        k.tail.append(f'  s_branch {lr}')

    def publish(phase, tag='st'):
        k.wait_vm_tag(tag)
        I('s_mov_b64 exec, 1')
        stores([f'buffer_store_dword {vTAGV}, {vZERO}, {WS}, {sMYF} offen offset:{phase*256}'], tag='flag')
        I('s_mov_b64 exec, -1')

    def poll_at(sbase, off, mask, voff=None):
        lp = k.newlabel('L_poll'); ld = k.newlabel('L_pdone')
        I(f's_mov_b32 {sA}, 0')
        k.fence(1)
        k.label(lp)
        k.raw(f'  buffer_load_dword {vt0}, {voff or vFLG}, {WS}, {sbase} offen offset:{off} sc1\n  s_waitcnt vmcnt(0)\n  v_cmp_ne_u32 vcc, {vt0}, {vTAGV}\n  s_add_u32 {sA}, {sA}, 1\n  s_cmp_gt_u32 {sA}, {SPIN}\n  s_cbranch_scc1 {ld}\n  s_and_b64 vcc, vcc, {mask}\n  s_cbranch_scc1 {lp}')
        k.label(ld)
        k.vm = []
        k.pos += 6

    def poll(phase, mask):
        poll_at(sFL, phase * 256, mask)

    def lazy_check(vdst, sbase, off, mask):
        lo = k.newlabel('L_lz'); lr = k.newlabel('L_lzr')
        I(f'v_cmp_ne_u32 vcc, {vdst}, {vTAGV}\ns_and_b64 vcc, vcc, {mask}\ns_cbranch_scc1 {lo}')
        k.label(lr)
        k.tail.append(f'{lo}:\n  s_mov_b32 {sA}, 0\n{lo}_p:\n  buffer_load_dword {vdst}, {vFLG}, {WS}, {sbase} offen offset:{off} sc1\n  s_waitcnt vmcnt(0)\n  v_cmp_ne_u32 vcc, {vdst}, {vTAGV}\n  s_add_u32 {sA}, {sA}, 1\n  s_cmp_gt_u32 {sA}, {SPIN}\n  s_cbranch_scc1 {lr}\n  s_and_b64 vcc, vcc, {mask}\n  s_cbranch_scc1 {lo}_p\n  s_branch {lr}')

    def ids_issue(dst):
        I(f's_add_u32 {sB}, {sTB}, {O_IDS}\nv_and_b32 {vt2}, 60, {vFLG}\nbuffer_load_dword {dst}, {vt2}, {WS}, {sB} offen sc1 #ids')

    def ids_check(src):
        I(f's_or_b32 {sB}, {sTAG}, {sXCC}\nv_cmp_ne_u32 vcc, {sB}, {src}\ns_cmp_lg_u64 vcc, 0\ns_cselect_b32 {sSLOW}, 1, 0')
        if o.get('force_slow'):
            I(f's_mov_b32 {sSLOW}, 1')

    F = V.alloc(16, 2, 'F'); F2 = V.alloc(16, 2, 'F2'); SQ = V.alloc(4, 4, 'SQ'); t16 = V.alloc(16, 4, 't16')
    NM = V.alloc(2, 2, 'nm'); RI = V.alloc(2, 2, 'ri'); PK = V.alloc(2, 2, 'pk'); vID = V.alloc(1, name='ids')
    k.emit_all(unpack(F, XP))
    stamp('x_in')
    k.emit_all(unpack(F2, HP))
    row_stats2(F, F2, SQ, t16, 0)
    k.emit_all(finish_stats(SQ.sub(0, 2), NM[0], RI[0], None, t16))
    normalize(F, XP, NM, RI)
    xn_st = [f'buffer_store_dwordx4 {XP.t(0,4)}, {vSo}, {WS}, {sXS[0]} offen', f'buffer_store_dwordx4 {XP.t(4,4)}, {vSo}, {WS}, {sXS[1]} offen']
    for t in xn_st:
        I(t + ' #st')
    ids_issue(vID)
    stamp('xn_st')
    PT = V.alloc(12, 4, 'pt')
    I(f's_lshr_b32 {sA}, {sPI}, 1\ns_lshl_b32 {sA}, {sA}, 2\ns_and_b32 {sB}, {sPI}, 1\ns_lshl_b32 {sC}, {sB}, 1\ns_add_u32 {sA}, {sA}, {sC}\ns_add_u32 {sA}, {sA}, {sT32}\ns_lshl_b32 {sA}, {sA}, 1\ns_add_u32 {sA}, {sA}, {sN32}\ns_lshl_b32 {sA}, {sA}, 10\ns_add_u32 {sA}, {sA}, {sPD}')
    I(f's_add_u32 {sA}, {sA}, {16*1024}\nbuffer_store_dwordx4 {CQ}, {vL16}, {WS}, {sA} offen sc0 sc1 #wt')
    stamp('c_st')
    I(f's_lshr_b32 {sA}, {sPI}, 1\ns_mul_i32 {sA}, {sA}, 7\ns_lshl_b32 {sC}, {sW}, 1\ns_add_u32 {sA}, {sA}, {sC}\ns_lshl_b32 {sA}, {sA}, 1\ns_add_u32 {sA}, {sA}, {sB}\ns_lshl_b32 {sA}, {sA}, 10\ns_add_u32 {sA}, {sA}, {sPD}\ns_add_u32 {sA}, {sA}, {48*1024}')
    I(f's_mul_i32 {sC}, {sW}, 3072\ns_add_u32 {sC}, {sC}, {L_UP}\nv_add_u32 {vt1}, {sC}, {vTRI}')
    k.wait_vm_tag('praw')
    stamp('praw')
    I(f's_cmp_eq_u32 {sW}, 3\ns_cbranch_scc1 L_pt3')
    k.raw(f'  v_lshl_add_u32 {vt1}, {vH}, 8, {vt1}')
    for s in range(2):
        for rd in range(2):
            k.raw(f'  ds_read_b64_tr_b16 {PT.t(4*s+2*rd,2)}, {vt1} offset:{rd*1024 + s*512}')
    k.raw(f'  s_waitcnt lgkmcnt(0)\n  buffer_store_dwordx4 {PT.t(0,4)}, {vL16}, {WS}, {sA} offen sc0 sc1\n  buffer_store_dwordx4 {PT.t(4,4)}, {vL16}, {WS}, {sA} offen offset:2048 sc0 sc1\n  buffer_store_dwordx4 {PT.t(4,4)}, {vL16}, {WS}, {sA} offen offset:2048 sc0 sc1\n  s_branch L_ptd\nL_pt3:')
    I(f'v_lshl_add_u32 {vt1}, {vH}, 9, {vt1}')
    for b in range(3):
        for rd in range(2):
            I(f'ds_read_b64_tr_b16 {PT.t(4*b+2*rd,2)}, {vt1} offset:{b*1024 + rd*256}')
    I(f's_lshl_b32 {sC}, {sPI}, 11\ns_add_u32 {sC}, {sC}, {sPD}')
    k.waitcnt(lg=0)
    I(f'buffer_store_dwordx4 {PT.t(0,4)}, {vL16}, {WS}, {sA} offen sc0 sc1 #wt')
    I(f'buffer_store_dwordx4 {PT.t(4,4)}, {vL16}, {WS}, {sC} offen sc0 sc1 #wt\nbuffer_store_dwordx4 {PT.t(8,4)}, {vL16}, {WS}, {sC} offen offset:1024 sc0 sc1 #wt')
    k.label('L_ptd')
    k.fence(2)
    stamp('pt_st')
    for i in range(NB1, 16):
        k.emit_all(bdma(i))
    S.release(sBs, sBd)
    stamp('b_iss')
    V.release(vW1o, CQ, vJUNK)
    k.emit_all(finish_stats(SQ.sub(2, 2), NM[0], RI[0], None, t16))
    normalize(F2, HP, NM, RI)
    V.release(PT)
    I(f's_lshl_b32 {sA}, {sW}, 10\ns_add_u32 {sA}, {sA}, {L_HALO}\nv_and_b32 {vt0}, 1, {vP8}\nv_lshlrev_b32 {vt0}, 4, {vt0}\nv_lshl_add_u32 {vt0}, {vQ8}, 6, {vt0}\nv_add_u32 {vt0}, {sA}, {vt0}')
    I(f'ds_write_b128 {vt0}, {HP.t(0,4)}\nds_write_b128 {vt0}, {HP.t(4,4)} offset:512')
    ONES = V.at(204, 4, 'ones')
    for i in range(4):
        I(f'v_mov_b32 {ONES[i]}, 0x3f803f80')
    I(f'v_lshlrev_b32 {vt1}, 6, {vL}\nv_add_u32 {vt1}, {L_HALO + 32}, {vt1}\nds_write_b128 {vt1}, {ONES}')
    stamp('halo_n')
    ids_check(vID)
    I(f's_cmp_lg_u32 {sSLOW}, 0\ns_cbranch_scc1 L_xnslow\ns_mov_b64 exec, 1')
    I(f'buffer_store_dword {vTAGV}, {vZERO}, {WS}, {sMYF} offen #flag')
    k.label('L_xnret')
    I('s_mov_b64 exec, -1')
    k.tail.append('L_xnslow:\n' + ''.join(f'  {t} sc0 sc1\n' for t in xn_st) + f'  s_waitcnt vmcnt(0)\n  s_mov_b64 exec, 1\n  buffer_store_dword {vTAGV}, {vZERO}, {WS}, {sMYF} offen sc0 sc1\n  s_branch L_xnret')
    stamp('xn_pub')
    k.emit_all(zipl(unpack(F, XP), unpack(F2, HP)))
    row_stats2(F, F2, SQ, t16, 1)
    k.emit_all(finish_stats(SQ.sub(0, 2), NM[0], RI[0], PK[0], t16))
    I(f'v_mov_b32 {PK[1]}, {vTAGV}')
    I(f's_lshl_b32 {sA}, {sJ}, 6\ns_add_u32 {sA}, {sA}, {sTB}\ns_add_u32 {sA}, {sA}, {O_ST2}\nv_lshlrev_b32 {vt0}, 3, {vP8}')
    I(f's_cmp_eq_u32 {sW}, 0\ns_cselect_b64 exec, 0xff, 1')
    stores([f'buffer_store_dwordx2 {PK}, {vt0}, {WS}, {sA} offen'], tag='st2')
    I('s_mov_b64 exec, -1')
    HNM = V.alloc(1, name='hnm'); HRI = V.alloc(1, name='hri')
    k.emit_all(finish_stats(SQ.sub(2, 2), HNM[0], HRI[0], None, t16))
    V.release(F, F2, SQ, NM, RI, PK, XP, HP, vSo, vSTXw, vSTXr, t16, vP8, vQ8)
    S.release(sXS)

    LAM = V.alloc(2, 2, 'lam'); CF = V.alloc(2, 2, 'coef2'); L16 = V.alloc(2, 2, 'lam16'); L128 = V.alloc(2, 2, 'lam128'); LOWN = V.alloc(2, 2, 'lown'); L256 = V.alloc(2, 2, 'lam256')
    T = V.alloc(8, 2, 'ctmp')
    I(f'v_lshlrev_b32 {vLre}, 16, {vLre}\nv_lshlrev_b32 {vLim}, 16, {vLim}\nv_lshlrev_b32 {vLdt}, 16, {vLdt}')
    I(f'v_mul_f32 {T[0]}, {hx(LOG2E)}, {vLdt}\nv_exp_f32 {T[0]}, {T[0]}\nv_cvt_pk_bf16_f32 {T[0]}, {T[0]}, {T[0]}\nv_lshlrev_b32 {T[0]}, 16, {T[0]}')
    I(f'v_mul_f32 {T[1]}, {T[0]}, {vLre}\nv_mul_f32 {T[2]}, {T[0]}, {vLim}')
    I(f'v_mul_f32 {T[1]}, {hx(LOG2E)}, {T[1]}\nv_exp_f32 {T[1]}, {T[1]}')
    I(f'v_mul_f32 {T[2]}, {hx(1.0 / (2 * math.pi))}, {T[2]}\nv_rndne_f32 {T[3]}, {T[2]}\nv_sub_f32 {T[2]}, {T[2]}, {T[3]}')
    I(f'v_cos_f32 {T[3]}, {T[2]}\nv_sin_f32 {T[4]}, {T[2]}')
    I(f'v_mul_f32 {LAM[0]}, {T[1]}, {T[3]}\nv_mul_f32 {LAM[1]}, {T[1]}, {T[4]}')
    I(f'v_add_f32 {T[0]}, -1.0, {LAM[0]}')
    I(f'v_mul_f32 {T[1]}, {vLre}, {vLre}\nv_fmac_f32 {T[1]}, {vLim}, {vLim}\nv_rcp_f32 {T[1]}, {T[1]}\nv_add_f32 {T[1]}, {T[1]}, {T[1]}')
    I(f'v_mul_f32 {T[2]}, {T[0]}, {vLre}\nv_fmac_f32 {T[2]}, {LAM[1]}, {vLim}\nv_mul_f32 {CF[0]}, {T[2]}, {T[1]}')
    I(f'v_mul_f32 {T[3]}, {LAM[1]}, {vLre}\nv_fma_f32 {T[3]}, -{T[0]}, {vLim}, {T[3]}\nv_mul_f32 {CF[1]}, {T[3]}, {T[1]}')

    def csq(d, s):
        I(f'v_mul_f32 {d[0]}, {s[1]}, {s[1]}\nv_mul_f32 {d[1]}, {s[0]}, {s[1]}\nv_fma_f32 {d[0]}, {s[0]}, {s[0]}, -{d[0]}\nv_add_f32 {d[1]}, {d[1]}, {d[1]}')

    def cmul(d, a, b):
        I(f'v_mul_f32 {d[0]}, {a[1]}, {b[1]}\nv_mul_f32 {d[1]}, {a[0]}, {b[1]}\nv_fma_f32 {d[0]}, {a[0]}, {b[0]}, -{d[0]}\nv_fmac_f32 {d[1]}, {a[1]}, {b[0]}')
    Ta, Tb, Tc, Td = T.sub(0, 2), T.sub(2, 2), T.sub(4, 2), T.sub(6, 2)
    csq(Ta, LAM); csq(Tb, Ta); csq(Ta, Tb); csq(L16, Ta)
    csq(Ta, L16); csq(Tb, Ta); csq(L128, Tb); csq(L256, L128)
    I(f'v_cmp_eq_u32 vcc, 1, {vH}\nv_mov_b32 {Tc[0]}, 1.0\nv_mov_b32 {Tc[1]}, 0\nv_cndmask_b32 {Tc[0]}, {Tc[0]}, {L16[0]}, vcc\nv_cndmask_b32 {Tc[1]}, {Tc[1]}, {L16[1]}, vcc')
    I(f's_bitcmp1_b32 {sW}, 0\ns_cselect_b64 vcc, -1, 0')
    I(f'v_mov_b32 {Td[0]}, 1.0\nv_mov_b32 {Td[1]}, 0\nv_cndmask_b32 {Ta[0]}, {Td[0]}, {Ta[0]}, vcc\nv_cndmask_b32 {Ta[1]}, {Td[1]}, {Ta[1]}, vcc')
    I(f's_bitcmp1_b32 {sW}, 1\ns_cselect_b64 vcc, -1, 0')
    I(f'v_cndmask_b32 {Tb[0]}, {Td[0]}, {Tb[0]}, vcc\nv_cndmask_b32 {Tb[1]}, {Td[1]}, {Tb[1]}, vcc')
    cmul(Td, Tc, Ta); cmul(LOWN, Td, Tb)
    V.release(T, vLre, vLim, vLdt)
    vW1r = V.alloc(1, name='w1rd')
    I(f'v_lshl_add_u32 {vW1r}, {vH}, 9, {vTRI}\nv_add_u32 {vW1r}, {L_W1}, {vW1r}')
    vBr = V.alloc(1, name='brd')
    I(f'v_mul_u32_u24 {vBr}, {BROW}, {vL31}\nv_lshl_add_u32 {vBr}, {vH}, 4, {vBr}')
    V.release(vTRI)
    stamp('p0_done')

    sWTF = S.alloc(1, name='wtf')
    I(f's_lshl_b32 {sA}, {sPC}, 2\ns_add_u32 {sA}, {sA}, {sPW}\ns_lshl_b32 {sA}, {sA}, 7\ns_lshl_b32 {sB}, {sPI}, 4\ns_add_u32 {sA}, {sA}, {sB}\ns_lshl_b32 {sB}, {sW}, 2\ns_add_u32 {sA}, {sA}, {sB}\ns_add_u32 {sA}, {sA}, {O_WTF}\ns_mov_b64 exec, 1')
    k.wait_vm_tag('wt')
    stamp('wt_done')
    I(f'buffer_store_dword {vTAGV}, {vZERO}, {WS}, {sA} offen sc0 sc1\ns_mov_b64 exec, -1')
    I(f's_lshl_b32 {sA}, {sW}, 4\ns_lshl_b64 {sM}, 0xffff, {sA}')
    poll(0, sM)
    stamp('xn_seen')
    XN = A.at(0, 128, 'XN')
    sXN = S.alloc(1, name='xnbase')
    I(f's_lshl_b32 {sXN}, {sW}, 15\ns_add_u32 {sXN}, {sXN}, {sTB}')

    def xn_load(ks):
        L = []
        if ks % 4 == 0 and ks:
            L.append(f's_add_u32 {sXN}, {sXN}, 4096')
        L.append(f'buffer_load_dwordx4 {XN.t(4*ks,4)}, {vL16}, {WS}, {sXN} offen offset:{(ks%4)*1024} sc1')
        return L
    PF = o.get('pf1', 10)
    for ks in range(PF):
        k.emit_all(xn_load(ks))
    S.release(sPC, sPW, sPI, sPD)
    sWT = S.alloc(1, name='wtbase')
    I(f's_lshl_b32 {sA}, {sCG}, 2\ns_add_u32 {sA}, {sA}, {sW}\ns_lshl_b32 {sWTF}, {sA}, 7\ns_add_u32 {sWTF}, {sWTF}, {O_WTF}\ns_mul_i32 {sWT}, {sA}, {WTS}\ns_add_u32 {sWT}, {sWT}, {O_WT}')
    ST2 = V.alloc(2, 2, 'st2')
    sST2 = S.alloc(1); vST2o = V.alloc(1)
    I(f's_lshl_b32 {sA}, {sW}, 8\ns_add_u32 {sA}, {sA}, {sTB}\ns_add_u32 {sST2}, {sA}, {O_ST2}\nv_lshlrev_b32 {vST2o}, 3, {vL31}')
    k.barrier()
    ids_issue(vID)

    HA = V.alloc(16, 4, 'hacc'); WF = A.at(192, 24, 'wf')
    I(f'v_min_u32 {vt0}, 2, {vL31}\nv_lshlrev_b32 {vt0}, 4, {vt0}\nv_lshl_add_u32 {vt0}, {vH}, 6, {vt0}\ns_lshl_b32 {sB}, {sW}, 10\ns_add_u32 {sB}, {sB}, {L_HALO}\nv_add_u32 {vt0}, {sB}, {vt0}')
    I(f's_lshl_b32 {sB}, {sW}, 13\nv_add_u32 {vt1}, {sB}, {vW1r}')
    for i in range(8):
        b = (i % 3) * 8
        I(f'ds_read_b64_tr_b16 {WF.t(b,2)}, {vt1} offset:{i*1024}\nds_read_b64_tr_b16 {WF.t(b+2,2)}, {vt1} offset:{i*1024+256}\nds_read_b128 {WF.t(b+4,4)}, {vt0} offset:{i*128}')
        if i >= 2:
            j = i - 2; bb = (j % 3) * 8
            I(f'v_mfma_f32_32x32x16_bf16 {HA}, {WF.t(bb,4)}, {WF.t(bb+4,4)}, {HA if j else 0}')
    for j in (6, 7):
        bb = (j % 3) * 8
        I(f'v_mfma_f32_32x32x16_bf16 {HA}, {WF.t(bb,4)}, {WF.t(bb+4,4)}, {HA}')
    sDEL = S.alloc(1, name='delta'); sH1 = S.alloc(1, name='h1base')
    I(f's_lshr_b32 {sA}, {sJ}, 3\ns_add_u32 {sDEL}, {sA}, 1\ns_sub_u32 {sB}, 0, {sDEL}\ns_bitcmp1_b32 {sJ}, 2\ns_cselect_b32 {sDEL}, {sB}, {sDEL}')
    I(f's_lshl_b32 {sH1}, {sJ}, 11\ns_add_u32 {sH1}, {sH1}, {sTB}\ns_add_u32 {sH1}, {sH1}, {O_H1}')
    I(f's_mul_i32 {sB}, {sW}, 384\ns_add_u32 {sB}, {sB}, {L_HRED}\nv_lshlrev_b32 {vt0}, 7, {vL31}\nv_lshl_add_u32 {vt0}, {vH}, 6, {vt0}\nv_add_u32 {vt0}, {sB}, {vt0}')
    I('s_mov_b32 exec_lo, 7\ns_mov_b32 exec_hi, 7')
    for i in range(4):
        I(f'ds_write_b128 {vt0}, {HA.t(4*i,4)} offset:{16*i}')
    I('s_mov_b64 exec, -1')

    def gelu_pairs(Z, n, t, outs):
        L = []
        P = lambda R, i: R.t(2 * i, 2)
        for i in range(n): L.append(f'v_pk_mul_f32 {P(t,i)}, {P(Z,i)}, {P(Z,i)}')
        for i in range(n): L.append(f'v_pk_fma_f32 {P(t,i)}, {P(t,i)}, {gC1}, {gC0} op_sel_hi:[1,0,0]')
        for i in range(n): L.append(f'v_pk_mul_f32 {P(t,i)}, {P(t,i)}, {P(Z,i)}')
        for i in range(2 * n): L.append(f'v_exp_f32 {t[i]}, {t[i]}')
        for i in range(n): L.append(f'v_pk_add_f32 {P(t,i)}, {P(t,i)}, {gONE} op_sel_hi:[1,0]')
        for i in range(2 * n): L.append(f'v_rcp_f32 {t[i]}, {t[i]}')
        for i in range(n): L.append(f'v_pk_mul_f32 {P(t,i)}, {P(t,i)}, {P(Z,i)}')
        for i in range(n): L.append(f'v_cvt_pk_bf16_f32 {outs[i]}, {t[2*i]}, {t[2*i+1]}')
        return L

    def h1_rowoff(dst, tp, ta, tb):
        return [f'v_bfe_u32 {ta}, {tp}, 2, 2', f'v_lshlrev_b32 {ta}, 3, {ta}', f'v_bfe_u32 {tb}, {tp}, 4, 1', f'v_lshl_add_u32 {ta}, {tb}, 2, {ta}', f'v_and_b32 {tb}, 3, {tp}', f'v_add_u32 {ta}, {ta}, {tb}', f'v_lshlrev_b32 {ta}, 4, {ta}',
                f'v_lshrrev_b32 {tb}, 5, {tp}', f'v_lshl_add_u32 {ta}, {tb}, 15, {ta}', f'v_cmp_gt_u32 vcc, 128, {tp}\nv_bfrev_b32 {tb}, 1\nv_cndmask_b32 {dst}, {tb}, {ta}, vcc']

    CS1 = V.alloc(16, 4, 'cs1'); hz = V.alloc(12, 2, 'hz'); vH1o = V.alloc(1, name='h1off')
    hf = ['@barrier']
    hf += [f'v_lshlrev_b32 {hz[8]}, 6, {vH}', f'v_add_u32 {hz[8]}, {L_HRED + 256}, {hz[8]}']
    hf += [f'ds_read_b128 {CS1.t(4*i,4)}, {hz[8]} offset:{16*i}' for i in range(4)]
    for w in range(1, 4):
        hf += [f'ds_read_b128 {HA.t(4*i,4)}, {hz[8]} offset:{w*384+16*i}' for i in range(4)]
        hf += [f'v_pk_add_f32 {CS1.t(2*i,2)}, {CS1.t(2*i,2)}, {HA.t(2*i,2)}' for i in range(8)]
    hf += [f'v_and_b32 {hz[8]}, 1, {vL}', f'v_lshlrev_b32 {hz[8]}, 7, {hz[8]}', f'v_lshrrev_b32 {hz[9]}, 1, {vL}', f'v_lshl_add_u32 {hz[8]}, {hz[9]}, 2, {hz[8]}', f'v_add_u32 {hz[8]}, {L_HRED}, {hz[8]}', f'v_lshlrev_b32 {hz[10]}, 2, {hz[9]}', f'v_add_u32 {hz[10]}, {L_HRED + 256}, {hz[10]}']
    for w in range(4):
        hf += [f'ds_read_b32 {hz[w]}, {hz[8]} offset:{w*384}', f'ds_read_b32 {hz[4+w]}, {hz[10]} offset:{w*384}']
    hf += [f'v_add_f32 {hz[0]}, {hz[0]}, {hz[1]}', f'v_add_f32 {hz[2]}, {hz[2]}, {hz[3]}', f'v_add_f32 {hz[4]}, {hz[4]}, {hz[5]}', f'v_add_f32 {hz[6]}, {hz[6]}, {hz[7]}', f'v_add_f32 {hz[0]}, {hz[0]}, {hz[2]}', f'v_add_f32 {hz[4]}, {hz[4]}, {hz[6]}']
    hf += [f'v_fmac_f32 {hz[0]}, {HNM}, {hz[4]}', f'v_mul_f32 {hz[0]}, {hz[0]}, {HRI}', f'v_cvt_pk_bf16_f32 {hz[0]}, {hz[0]}, {hz[0]}', f'v_lshlrev_b32 {hz[0]}, 16, {hz[0]}', f'v_mov_b32 {hz[1]}, {hz[0]}']
    hf += gelu_pairs(hz.sub(0, 2), 1, hz.sub(2, 2), [hz[0]])
    hf += [f's_bitcmp1_b32 {sJ}, 2\ns_cselect_b32 {sB}, 15, 0\ns_cmp_eq_u32 {sT}, {sB}\ns_cselect_b32 {sB}, 0, -1\nv_and_b32 {hz[0]}, {sB}, {hz[0]}']
    hf += [f's_bitcmp1_b32 {sJ}, 2\ns_cselect_b32 {sB}, 128, -2\ns_add_u32 {sB}, {sB}, {sDEL}\nv_and_b32 {hz[2]}, 1, {vL}\nv_add_u32 {hz[2]}, {sB}, {hz[2]}']
    hf += h1_rowoff(hz[3], hz[2], hz[4], hz[5])
    hf += [f'v_bfe_u32 {hz[4]}, {hz[9]}, 3, 1', f'v_lshl_add_u32 {hz[3]}, {hz[4]}, 10, {hz[3]}', f'v_lshrrev_b32 {hz[4]}, 4, {hz[9]}', f'v_lshl_add_u32 {hz[3]}, {hz[4]}, 9, {hz[3]}', f'v_and_b32 {hz[4]}, 7, {hz[9]}', f'v_lshl_add_u32 {hz[3]}, {hz[4]}, 1, {hz[3]}']
    hf += [f's_cmp_lg_u32 {sW}, 0\ns_cselect_b32 {sB}, 0x80000000, 0\nv_or_b32 {hz[3]}, {sB}, {hz[3]}']
    hf += [lambda k_: ids_check(vID)]
    hf += [lambda k_: stores([f'buffer_store_short {hz[0]}, {hz[3]}, {WS}, {sH1} offen'], tag='sth')]
    hf += [f's_lshl_b32 {sB}, {sW}, 5\ns_add_u32 {sB}, {sB}, {sDEL}\nv_add_u32 {hz[2]}, {sB}, {vTAU}']
    hf += h1_rowoff(vH1o, hz[2], hz[4], hz[5])
    hf += [f'v_lshl_add_u32 {vH1o}, {vH}, 9, {vH1o}']
    stamp('p1_start')

    vW3o = V.at(152, 7, 'w3o')
    w3prep = []
    for n in range(7):
        a_, b_, c_ = hz[8], hz[10], hz[11]
        w3prep += [f'v_lshrrev_b32 {a_}, 4, {vL}', f'v_add_u32 {a_}, {4*n}, {a_}', f'v_mul_u32_u24 {b_}, 37, {a_}', f'v_lshrrev_b32 {b_}, 8, {b_}', f'v_mul_u32_u24 {c_}, 7, {b_}', f'v_sub_u32 {a_}, {a_}, {c_}',
                   f'v_lshlrev_b32 {a_}, 5, {a_}', f'v_and_b32 {c_}, 1, {vL}', f'v_lshl_add_u32 {a_}, {c_}, 4, {a_}',
                   f'v_and_b32 {c_}, 1, {b_}', f'v_lshlrev_b32 {c_}, 2, {c_}', f'v_bfe_u32 {vW3o[n]}, {vL}, 1, 3', f'v_xor_b32 {c_}, {c_}, {vW3o[n]}', f'v_lshl_add_u32 {c_}, {b_}, 3, {c_}',
                   f'v_mul_u32_u24 {c_}, 3584, {c_}', f'v_add_u32 {vW3o[n]}, {c_}, {a_}']
    sW3s = S.alloc(1, name='w3src'); sW3d = S.alloc(1, name='w3dst')
    I(f's_mul_i32 {sW3s}, {sW}, {64*3584}\ns_mul_i32 {sA}, {sJ}, 224\ns_add_u32 {sW3s}, {sW3s}, {sA}\ns_mul_i32 {sW3d}, {sW}, {2*7168}')

    def w3_dma(upper):
        L = []
        for g in range(2):
            for n in range(7):
                L.append(f's_add_u32 m0, {sW3d}, {(L_UP if upper else 0) + g*7168 + n*1024}\ns_add_u32 {sD}, {sW3s}, {(8*upper + g)*32*3584}\nbuffer_load_dwordx4 {vW3o[n]}, {SRD["W3"]}, {sD} offen lds #w3')
        return L

    Q = Quads()
    k.Q = Q

    def wt_load(key, frag):
        def f(k_):
            q = Q.take(key)
            off = frag * 1024
            I(f's_add_u32 {sD}, {sWT}, {off}\nbuffer_load_dwordx4 {q}, {vLN[key[2]]}, {WS}, {sD} offen #wt{key[0]}')
        return f
    w2_loads = [wt_load(('w2', ks, ni), 2 * ks) for ks in range(8) for ni in range(2)]
    c_loads = [wt_load(('c', kc, ni), 16 + 2 * kc) for kc in range(16) for ni in range(2)]
    G6K = [7 * mb + j for mb in range(4) for j in range(4)] + [7 * mb + j for mb in range(4) for j in (4, 5, 6)]
    w4_loads = [wt_load(('w4', ks, ni), 48 + 2 * ks) for ks in G6K for ni in range(2)]
    QA2 = A.at(128, 64, 'qa2'); Q.add(QA2)

    ARE = V.at(172, 16, 'are'); AIM = V.at(188, 16, 'aim'); A3 = V.alloc(16, 4, 'a3')
    jobs = []
    g1 = 0
    ratio = o.get('g1ratio', 4 / 3)
    for ks in range(32):
        jobs.append(('w', ks))
        while g1 < min(2 * (ks + 1), int(ratio * (ks + 1))):
            jobs.append(('re' if g1 % 2 == 0 else 'im', g1 // 2)); g1 += 1
    nfirst = len(jobs)
    while g1 < 64:
        jobs.append(('re' if g1 % 2 == 0 else 'im', g1 // 2)); g1 += 1
    NB = 6

    def wread(i):
        ty, ks = jobs[i]; b = (i % NB) * 4
        if ty == 'w':
            return [f'ds_read_b64_tr_b16 {WF.t(b,2)}, {vW1r} offset:{ks*1024}', f'ds_read_b64_tr_b16 {WF.t(b+2,2)}, {vW1r} offset:{ks*1024+256}']
        return [f'ds_read_b128 {WF.t(b,4)}, {vBr} offset:{ks*32 + (32*BROW if ty == "im" else 0)}']

    def mm(i):
        ty, ks = jobs[i]; b = (i % NB) * 4
        if ty == 'w':
            return f'v_mfma_f32_32x32x16_bf16 {A3}, {WF.t(b,4)}, {XN.t(4*ks,4)}, {A3 if ks else 0}'
        acc = ARE if ty == 're' else AIM
        return f'v_mfma_f32_32x32x16_bf16 {acc}, {XN.t(4*ks,4)}, {WF.t(b,4)}, {acc if ks else 0}'
    AH = 4
    first, second = [], []
    for i in range(AH):
        first += wread(i)
    nxt = PF
    vWTF = V.alloc(1, name='wtflags')
    last_xn = None
    for i in range(len(jobs)):
        tgt = first if i < nfirst else second
        if i + AH < len(jobs):
            tgt += wread(i + AH)
        if jobs[i][0] == 'w' and nxt < 32:
            tgt += xn_load(nxt); nxt += 1
            if nxt == 32:
                last_xn = i
                tgt.append(f'buffer_load_dwordx2 {ST2}, {vST2o}, {WS}, {sST2} offen sc1')
                tgt.append(f'buffer_load_dword {vWTF}, {vFLG}, {WS}, {sWTF} offen sc1')
        tgt.append(mm(i))
    first = merge(first, hf + w3prep, per=o.get('hf_per', 4), start=1)
    pre1 = [lambda k_: (I(f's_mov_b32 {sM[0]}, -1\ns_mov_b32 {sM[1]}, 0'), lazy_check(vWTF, sWTF, 0, sM))] + w2_loads
    if o.get('w3u_p1', 1):
        pre1 += w3_dma(1)
    nanch = len([t for t in first if is_anchor(t)])
    wstart = min(last_xn + o.get('wt_lag', 14), nanch - 1)
    first, rest1 = merge(first, pre1, per=o.get('pre1_per', 1), start=wstart, tail=False)
    k.emit_all(first)
    stamp('g3_done')
    ep = []
    NM2 = V.alloc(2, 2); RI2 = V.alloc(2, 2); GT = V.alloc(16, 2, 'gt'); HP2 = V.alloc(8, 4, 'h1p')

    def st2_check(k_):
        lp = k.newlabel('L_st2'); ld = k.newlabel('L_st2d')
        I(f'v_cmp_ne_u32 vcc, {ST2[1]}, {vTAGV}\ns_mov_b32 {sA}, 0\ns_cbranch_vccnz {lp}')
        k.label(ld)
        k.tail.append(f'{lp}:\n  buffer_load_dwordx2 {ST2}, {vST2o}, {WS}, {sST2} offen sc1\n  s_waitcnt vmcnt(0)\n  v_cmp_ne_u32 vcc, {ST2[1]}, {vTAGV}\n  s_add_u32 {sA}, {sA}, 1\n  s_cmp_gt_u32 {sA}, {SPIN}\n  s_cbranch_scc1 {ld}\n  s_cbranch_vccnz {lp}\n  s_branch {ld}')
    ep.append(st2_check)
    ep += [f'v_lshlrev_b32 {NM2[0]}, 16, {ST2[0]}', f'v_and_b32 {RI2[0]}, {vMASK}, {ST2[0]}', f'v_xor_b32 {NM2[0]}, 0x80000000, {NM2[0]}', f'v_rcp_f32 {RI2[0]}, {RI2[0]}']
    for i in range(8): ep.append(f'v_pk_fma_f32 {A3.t(2*i,2)}, {CS1.t(2*i,2)}, {NM2}, {A3.t(2*i,2)} op_sel_hi:[1,0,1]')
    for i in range(8): ep.append(f'v_pk_mul_f32 {A3.t(2*i,2)}, {A3.t(2*i,2)}, {RI2} op_sel_hi:[1,0]')
    for i in range(8): ep.append(f'v_cvt_pk_bf16_f32 {HP2[i]}, {A3[2*i]}, {A3[2*i+1]}')
    ep += unpack(A3, HP2)
    ep += gelu_pairs(A3, 8, GT, [HP2[i] for i in range(8)])
    ep.append(lambda k_: stores([f'buffer_store_dwordx4 {HP2.t(0,4)}, {vH1o}, {WS}, {sH1} offen', f'buffer_store_dwordx4 {HP2.t(4,4)}, {vH1o}, {WS}, {sH1} offen offset:1024']))
    second, rest1 = merge(second, rest1, per=o.get('pre1_per', 1), tail=False) if not o.get('pre1_late') else (second, rest1)
    k.emit_all(merge(second, ep, every=1, per=o.get('ep_per', 5)))
    stamp('h1_st')

    V.release(A3, CS1, NM2, RI2, GT, ST2, vST2o, vH1o, vW1r, vBr, hz, HA, HNM, HRI, vWTF, vID); A.release(XN, WF)
    S.release(sST2, sH1, sXN, sDEL)

    class V2:
        def __init__(s, a, b): s.r = (a, b)
        def __getitem__(s, i): return s.r[i]
    G = V.alloc(2, 2, 'g')
    I(f'v_mov_b32 {G[0]}, {ARE[0]}\nv_mov_b32 {G[1]}, {AIM[0]}')
    gt = V.alloc(4, 2)
    cur, oth = G, gt.sub(0, 2)
    for r in range(1, 16):
        I(f'v_fma_f32 {oth[0]}, {LAM[0]}, {cur[0]}, {ARE[r]}\nv_fma_f32 {oth[1]}, {LAM[0]}, {cur[1]}, {AIM[r]}')
        I(f'v_fma_f32 {oth[0]}, -{LAM[1]}, {cur[1]}, {oth[0]}\nv_fma_f32 {oth[1]}, {LAM[1]}, {cur[0]}, {oth[1]}')
        cur, oth = oth, cur
    I(f's_lshl_b32 {sA}, {sW}, 9\ns_add_u32 {sA}, {sA}, {L_SEG}\nv_lshl_add_u32 {vt0}, {vL}, 3, {sA}')
    I(f'ds_write_b64 {vt0}, {cur.t(0,2)}')
    publish(1)
    V.release(HP2)
    stamp('h1_pub')
    k.emit_all(rest1)
    k.barrier()
    E = V.alloc(16, 4, 'segs')
    I(f'v_lshlrev_b32 {vt0}, 3, {vL31}\nv_add_u32 {vt0}, {L_SEG}, {vt0}')
    for s in range(8):
        I(f'ds_read_b64 {E.t(2*s,2)}, {vt0} offset:{s*256}')
    CIN = V.alloc(2, 2, 'cin'); P = gt.sub(0, 2); Qq = gt.sub(2, 2)
    I(f's_lshl_b32 {sA}, {sW}, 1\nv_add_u32 {vt0}, {sA}, {vH}')
    I(f'v_mov_b32 {CIN[0]}, 0\nv_mov_b32 {CIN[1]}, 0\nv_mov_b32 {P[0]}, {E[0]}\nv_mov_b32 {P[1]}, {E[1]}')
    for s in range(1, 8):
        I(f'v_cmp_eq_u32 vcc, {s}, {vt0}')
        I(f'v_fma_f32 {Qq[0]}, {L16[0]}, {P[0]}, {E[2*s]}\nv_fma_f32 {Qq[1]}, {L16[0]}, {P[1]}, {E[2*s+1]}')
        I(f'v_cndmask_b32 {CIN[0]}, {CIN[0]}, {P[0]}, vcc\nv_cndmask_b32 {CIN[1]}, {CIN[1]}, {P[1]}, vcc')
        I(f'v_fma_f32 {Qq[0]}, -{L16[1]}, {P[1]}, {Qq[0]}\nv_fma_f32 {Qq[1]}, {L16[1]}, {P[0]}, {Qq[1]}')
        P, Qq = Qq, P
    I(f'v_mov_b32 {E[0]}, {P[0]}\nv_mov_b32 {E[1]}, {vTAGV}\nv_mov_b32 {E[2]}, {P[1]}\nv_mov_b32 {E[3]}, {vTAGV}')
    sSC = S.alloc(1, name='scanbase')
    I(f's_lshl_b32 {sSC}, {sJ}, 9\ns_add_u32 {sSC}, {sSC}, {O_SCAN}\ns_lshl_b32 {sA}, {sT}, 13\ns_add_u32 {sA}, {sA}, {sSC}\nv_lshlrev_b32 {vt0}, 4, {vL31}')
    I(f's_cmp_eq_u32 {sW}, 0\ns_cselect_b64 exec, 0xffffffff, 1')
    if o.get('et_late'):
        pass
    I(f'buffer_store_dwordx4 {E.t(0,4)}, {vt0}, {WS}, {sA} offen sc0 sc1')
    I('s_mov_b64 exec, -1')
    V.release(E, G, gt, L16)
    stamp('scan1')

    sSTG = S.alloc(1, name='stgbase')
    I(f's_mul_i32 {sSTG}, {sW}, {STGW}\ns_add_u32 {sSTG}, {sSTG}, {L_STG}')
    for i in range(1, 4):
        I(f's_xor_b32 {sA}, {sW}, {i}\ns_mul_i32 {sA}, {sA}, {STGW}\ns_add_u32 {sA}, {sA}, {L_STG + (i-1)*4096}\nv_add_u32 {vREDw[i-1]}, {sA}, {vL16}')
    I(f'v_add_u32 {vREDr}, {sSTG}, {vL16}')

    def reduce4(ACC, mid=None):
        k.barrier()
        for i in range(1, 4):
            for q in range(4):
                I(f'ds_write_b128 {vREDw[i-1]}, {ACC[i].t(4*q,4)} offset:{q*1024}')
        if mid:
            mid()
        k.barrier()
        for i in range(3):
            for q in range(4):
                I(f'ds_read_b128 {ACC[i+1].t(4*q,4)}, {vREDr} offset:{i*4096+q*1024}')
        for i in range(3):
            for q in range(8):
                I(f'v_pk_add_f32 {ACC[0].t(2*q,2)}, {ACC[0].t(2*q,2)}, {ACC[i+1].t(2*q,2)}')

    def act_base(dst0, dst1, off, kpt, k0mul):
        for ti, d in ((0, dst0), (1, dst1)):
            I(f's_xor_b32 {sA}, {sT32}, {ti}\ns_lshl_b32 {sB}, {sTH}, 1\ns_add_u32 {sA}, {sA}, {sB}\ns_mul_i32 {sA}, {sA}, {kpt}\ns_mul_i32 {sB}, {sW}, {k0mul}\ns_add_u32 {sA}, {sA}, {sB}\ns_lshl_b32 {sA}, {sA}, 10\ns_add_u32 {sA}, {sA}, {sTB}\ns_add_u32 {d}, {sA}, {off}')

    sB0 = S.alloc(1); sB1 = S.alloc(1)

    def act_load(name, ks, ti, sb0, sb1):
        def f(k_):
            q = Q.take((name, ks, ti))
            sb = sb0 if ti == 0 else sb1
            if ks < 4:
                I(f'buffer_load_dwordx4 {q}, {vL16}, {WS}, {sb} offen offset:{ks*1024} sc1')
            else:
                I(f's_add_u32 {sD}, {sb}, {(ks//4)*4096}\nbuffer_load_dwordx4 {q}, {vL16}, {WS}, {sD} offen offset:{(ks%4)*1024} sc1')
        return f

    def gemm64(ACC, wname, aname, klist, first=True):
        L = []
        for n, ks in enumerate(klist):
            for ti in range(2):
                for ni in range(2):
                    def f(k_, ks=ks, ti=ti, ni=ni, n=n):
                        acc = ACC[2*ti+ni]
                        I(f'v_mfma_f32_32x32x16_bf16 {acc}, {Q[(wname, ks, ni)]}, {Q[(aname, ks, ti)]}, {acc if (n or not first) else 0}')
                        if ni == 1:
                            Q.give((aname, ks, ti))
                        if ti == 1:
                            Q.give((wname, ks, ni))
                    L.append(Anchor(f))
        return L

    vW3r = V.alloc(4, 1, 'w3rd')
    for rd in range(2):
        I(f'v_bfe_u32 {vt0}, {vL}, 2, 2\nv_add_u32 {vt0}, {4*rd}, {vt0}\nv_bfe_u32 {vt1}, {vL}, 4, 1\nv_lshlrev_b32 {vt1}, 2, {vt1}\nv_xor_b32 {vt0}, {vt0}, {vt1}\nv_lshlrev_b32 {vt0}, 5, {vt0}\nv_and_b32 {vt1}, 3, {vL}\nv_lshl_add_u32 {vt0}, {vt1}, 3, {vt0}\nv_lshrrev_b32 {vt1}, 4, {vL}\nv_mul_u32_u24 {vt1}, 1792, {vt1}\nv_add_u32 {vW3r[rd]}, {vt0}, {vt1}')
        I(f'v_add_u32 {vW3r[2+rd]}, {L_UP}, {vW3r[rd]}')
    CS3a = V.at(96, 16, 'cs3a'); CS3b = V.at(160, 12, 'cs3b')
    cs3 = lambda t: CS3a.sub(4*t, 4) if t < 4 else CS3b.sub(4*(t-4), 4)

    QA0 = A.at(0, 128, 'qa0'); QA3 = A.at(192, 64, 'qa3')
    Q.add(QA0.sub(0, 64))
    act_base(sB0, sB1, O_H1, 32, 8)
    I(f's_lshl_b32 {sA}, {sW}, 4\ns_lshl_b64 {sM}, 0xffff, {sA}')
    sOWN = S.alloc(1, name='ownfrag')
    I(f's_lshl_b32 {sA}, {sTH}, 1\ns_add_u32 {sA}, {sA}, {sT32}\ns_lshl_b32 {sA}, {sA}, 5\ns_lshl_b32 {sB}, {sCG}, 2\ns_add_u32 {sA}, {sA}, {sB}\ns_lshl_b32 {sB}, {sN32}, 1\ns_add_u32 {sA}, {sA}, {sB}\ns_lshl_b32 {sA}, {sA}, 10\ns_add_u32 {sOWN}, {sA}, {sTB}')
    poll(1, sM)
    stamp('h1_seen')
    ACC = [V.at(64, 16), V.at(80, 16), V.at(112, 16), V.at(136, 16)]
    for ks in range(8):
        for ti in range(2):
            act_load('h1', ks, ti, sB0, sB1)(k)
    I(f'buffer_load_dwordx4 {XNT.t(0,4)}, {vL16}, {WS}, {sOWN} offen sc1\nbuffer_load_dwordx4 {XNT.t(4,4)}, {vL16}, {WS}, {sOWN} offen offset:1024 sc1')
    if not o.get('w3u_p1', 1):
        k.emit_all(w3_dma(1))
    k.emit_all(w3_dma(0))
    V.release(vW3o); S.release(sW3s, sW3d)
    k.emit_all(gemm64(ACC, 'w2', 'h1', list(range(8))))
    stamp('g4_mfma')
    EG = V.at(208, 32, 'eg'); vEGo = V.alloc(1)
    I(f's_sub_u32 {sA}, {sT}, 1\nv_sub_u32 {vt0}, {sA}, {vH}\nv_lshlrev_b32 {vt0}, 13, {vt0}\nv_lshl_add_u32 {vEGo}, {vL31}, 4, {vt0}')

    def eg_loads(k_=None):
        for i in range(8):
            I(f'v_subrev_u32 {vt1}, {i*16384}, {vEGo}\nbuffer_load_dwordx4 {EG.t(4*i,4)}, {vt1}, {WS}, {sSC} offen sc1')
    reduce4(ACC, mid=eg_loads)
    a0 = ACC[0]; f1 = ACC[1]; tq = ACC[2].sub(0, 8); SQ = ACC[2].sub(8, 2)
    for i in range(8): I(f'v_cvt_pk_bf16_f32 {X1P[i]}, {a0[2*i]}, {a0[2*i+1]}')
    k.emit_all(unpack(a0, X1P)); k.emit_all(unpack(f1, XNT))
    for i in range(8): I(f'v_pk_add_f32 {a0.t(2*i,2)}, {a0.t(2*i,2)}, {f1.t(2*i,2)}')
    for i in range(8): I(f'v_cvt_pk_bf16_f32 {X1P[i]}, {a0[2*i]}, {a0[2*i+1]}')
    I(f's_add_u32 {sC}, {sOWN}, {O_X1}')
    stores([f'buffer_store_dwordx4 {X1P.t(0,4)}, {vL16}, {WS}, {sC} offen', f'buffer_store_dwordx4 {X1P.t(4,4)}, {vL16}, {WS}, {sC} offen offset:1024'])
    k.emit_all(unpack(a0, X1P))
    k.emit_all(sums(a0, SQ, tq)); k.emit_all(xswap(SQ, tq, 32))
    I(f's_lshl_b32 {sA}, {sTH}, 1\ns_add_u32 {sA}, {sA}, {sT32}\ns_lshl_b32 {sA}, {sA}, 12\ns_lshl_b32 {sB}, {sCG}, 9\ns_add_u32 {sA}, {sA}, {sB}\ns_lshl_b32 {sB}, {sN32}, 8\ns_add_u32 {sA}, {sA}, {sB}\ns_add_u32 {sA}, {sA}, {sTB}\ns_add_u32 {sA}, {sA}, {O_ST3}')
    I(f'v_and_b32 {vt0}, 15, {vL}\nv_lshlrev_b32 {vt0}, 4, {vt0}\nv_bfe_u32 {vt1}, {vL}, 4, 1\nv_lshl_add_u32 {vt0}, {vt1}, 3, {vt0}')
    I('s_mov_b64 exec, 0xffffffff')
    stores([f'buffer_store_dwordx2 {SQ}, {vt0}, {WS}, {sA} offen'])
    I('s_mov_b64 exec, -1')
    stamp('x1_st')

    vEX = V.alloc(1); C0 = V.alloc(2, 2); C1 = V.alloc(2, 2)

    def eg_check(lines):
        lines.append(f'v_mov_b32 {vt0}, 0')
        for i in range(8):
            lines.append(f'v_cmp_le_i32 vcc, {i*16384}, {vEGo}\nv_xor_b32 {vt2}, {EG[4*i+1]}, {EG[4*i+3]}\nv_cndmask_b32 {vEX}, 0, {vTAGV}, vcc\nv_xor_b32 {vt1}, {EG[4*i+1]}, {vEX}\nv_or3_b32 {vt0}, {vt0}, {vt1}, {vt2}')
        lines.append(f'v_cmp_ne_u32 vcc, 0, {vt0}')
    L = []; eg_check(L); k.emit_all(L)
    I(f's_mov_b32 {sD}, 0\ns_cbranch_vccnz L_egslow')
    k.label('L_egok')
    sub = Asm(); subI = sub.I
    for i in range(8):
        subI(f'v_subrev_u32 {vt1}, {i*16384}, {vEGo}\nbuffer_load_dwordx4 {EG.t(4*i,4)}, {vt1}, {WS}, {sSC} offen sc1')
    sub.waitcnt(vm=0)
    L = []; eg_check(L); sub.emit_all(L)
    subI(f's_add_u32 {sD}, {sD}, 1\ns_cmp_gt_u32 {sD}, {SPIN}\ns_cbranch_scc1 L_egok\ns_cbranch_vccnz L_egslow\ns_branch L_egok')
    k.tail += ['L_egslow:'] + sub.lines
    publish(2)
    stamp('x1_pub')
    for a in ACC: V.release(a)
    Q.add(QA0.sub(64, 64)); Q.add(QA3)
    npc = o.get('npc', 32)
    k.emit_all(c_loads[:npc])
    I(f'v_mov_b32 {C0[0]}, {EG[28]}\nv_mov_b32 {C0[1]}, {EG[30]}')
    cur, oth = C0, C1
    for i in range(6, -1, -1):
        I(f'v_fma_f32 {oth[0]}, {L256[0]}, {cur[0]}, {EG[4*i]}\nv_fma_f32 {oth[1]}, {L256[0]}, {cur[1]}, {EG[4*i+2]}')
        I(f'v_fma_f32 {oth[0]}, -{L256[1]}, {cur[1]}, {oth[0]}\nv_fma_f32 {oth[1]}, {L256[1]}, {cur[0]}, {oth[1]}')
        cur, oth = oth, cur
    I(f'v_mov_b32 {oth[0]}, {cur[0]}\nv_mov_b32 {oth[1]}, {cur[1]}\nv_permlane32_swap_b32 {oth[0]}, {cur[0]}\nv_permlane32_swap_b32 {oth[1]}, {cur[1]}')
    I(f'v_fmac_f32 {oth[0]}, {L128[0]}, {cur[0]}\nv_fmac_f32 {oth[1]}, {L128[0]}, {cur[1]}\nv_fma_f32 {oth[0]}, -{L128[1]}, {cur[1]}, {oth[0]}\nv_fmac_f32 {oth[1]}, {L128[1]}, {cur[0]}')
    I(f'v_fmac_f32 {CIN[0]}, {LOWN[0]}, {oth[0]}\nv_fmac_f32 {CIN[1]}, {LOWN[0]}, {oth[1]}\nv_fma_f32 {CIN[0]}, -{LOWN[1]}, {oth[1]}, {CIN[0]}\nv_fmac_f32 {CIN[1]}, {LOWN[1]}, {oth[0]}')
    g = CIN; gt = C0
    for r in range(16):
        I(f'v_fma_f32 {gt[0]}, {LAM[0]}, {g[0]}, {ARE[r]}\nv_fma_f32 {gt[1]}, {LAM[0]}, {g[1]}, {AIM[r]}')
        I(f'v_fma_f32 {ARE[r]}, -{LAM[1]}, {g[1]}, {gt[0]}\nv_fma_f32 {AIM[r]}, {LAM[1]}, {g[0]}, {gt[1]}')
        g = V2(ARE[r], AIM[r])
    HR = EG.sub(0, 16); HI = EG.sub(16, 16); PR = ARE.sub(0, 8); PI = ARE.sub(8, 8)
    for r in range(16):
        I(f'v_mul_f32 {HR[r]}, {CF[0]}, {ARE[r]}\nv_mul_f32 {HI[r]}, -{CF[0]}, {AIM[r]}')
    for r in range(16):
        I(f'v_fma_f32 {HR[r]}, -{CF[1]}, {AIM[r]}, {HR[r]}\nv_fma_f32 {HI[r]}, -{CF[1]}, {ARE[r]}, {HI[r]}')
    for i in range(8):
        I(f'v_cvt_pk_bf16_f32 {PR[i]}, {HR[2*i]}, {HR[2*i+1]}\nv_cvt_pk_bf16_f32 {PI[i]}, {HI[2*i]}, {HI[2*i+1]}')
    TRS = 80
    I(f'v_mul_u32_u24 {vt0}, {TRS}, {vL31}\nv_lshl_add_u32 {vt0}, {vH}, 5, {vt0}\nv_add_u32 {vt0}, {sSTG}, {vt0}')
    I(f'ds_write_b128 {vt0}, {PR.t(0,4)}\nds_write_b128 {vt0}, {PR.t(4,4)} offset:16\nds_write_b128 {vt0}, {PI.t(0,4)} offset:{32*TRS}\nds_write_b128 {vt0}, {PI.t(4,4)} offset:{32*TRS+16}')
    I(f'v_bfe_u32 {vt1}, {vL}, 2, 2\nv_lshl_add_u32 {vt1}, {vH}, 3, {vt1}\nv_mul_u32_u24 {vt1}, {TRS}, {vt1}\nv_and_b32 {vt0}, 1, {vL}\nv_lshl_add_u32 {vt1}, {vt0}, 5, {vt1}\nv_bfe_u32 {vt0}, {vL}, 4, 1\nv_lshl_add_u32 {vt1}, {vt0}, 4, {vt1}\nv_bfe_u32 {vt0}, {vL}, 1, 1\nv_lshl_add_u32 {vt1}, {vt0}, 3, {vt1}\nv_add_u32 {vt1}, {sSTG}, {vt1}')
    k.waitcnt(lg=0)
    HF = EG.sub(0, 16)
    for f in range(4):
        for rd in range(2):
            I(f'ds_read_b64_tr_b16 {HF.t(4*f+2*rd,2)}, {vt1} offset:{(16*f + 4*rd)*TRS}')
    I(f's_lshl_b32 {sA}, {sW}, 6\ns_lshl_b32 {sB}, {sJ}, 2\ns_add_u32 {sA}, {sA}, {sB}\ns_lshl_b32 {sA}, {sA}, 10\ns_add_u32 {sA}, {sA}, {sTB}\ns_add_u32 {sA}, {sA}, {O_HS}')
    stores([f'buffer_store_dwordx4 {HF.t(4*f,4)}, {vL16}, {WS}, {sA} offen offset:{f*1024}' for f in range(4)], tag='sths')
    V.release(C0, C1, CIN, ARE, AIM, LAM, CF, L128, L256, LOWN, vEX, vEGo)
    S.release(sSC)
    stamp('hs_st')

    WF = V.at(112, 24, 'wf5')
    vcs = V.alloc(4, 1)
    I(f's_mul_i32 {sA}, {sW}, {2*7168}')
    for i in range(4):
        I(f'v_add_u32 {vcs[i]}, {sA}, {vW3r[i]}')
    cj = [(t, s) for s in range(4) for t in range(7)]
    for i in range(len(cj) + 3):
        if i < len(cj):
            t, s = cj[i]; b = (i % 6) * 4
            for rd in range(2):
                I(f'ds_read_b64_tr_b16 {WF.t(b+2*rd,2)}, {vcs[2*(s>>1)+rd]} offset:{(s&1)*7168 + t*256}')
        if i >= 3:
            t, s = cj[i-3]; b = ((i-3) % 6) * 4
            I(f'v_mfma_f32_16x16x32_bf16 {cs3(t)}, {WF.t(b,4)}, {ONES}, {cs3(t) if s else 0}')
    V.release(vcs, ONES)
    I(f'v_lshrrev_b32 {vt0}, 4, {vL}\nv_lshlrev_b32 {vt0}, 4, {vt0}\nv_add_u32 {vt1}, {sSTG}, {vt0}\nv_add_u32 {vt3}, {L_STG}, {vt0}')
    I('s_mov_b32 exec_lo, 0x00010001\ns_mov_b32 exec_hi, 0x00010001')
    for t in range(7):
        I(f'ds_write_b128 {vt1}, {cs3(t)} offset:{6144 + t*64}')
    I('s_mov_b64 exec, -1')
    publish(3, 'sths')
    V.release(EG)
    k.barrier()
    stamp('cs3')

    I(f's_lshl_b32 {sB}, {sN32}, 1\ns_lshl_b32 {sA}, 0x33333333, {sB}\ns_bitcmp1_b32 {sW}, 1\ns_cselect_b32 {sM[0]}, 0, {sA}\ns_cselect_b32 {sM[1]}, {sA}, 0')
    vFo = V.alloc(1, name='frag16off')
    I(f'v_lshlrev_b32 {vt0}, 10, {vH}\nv_bfe_u32 {vt1}, {vL}, 4, 1\nv_lshl_add_u32 {vt0}, {vt1}, 9, {vt0}\nv_and_b32 {vt1}, 15, {vL}\nv_lshl_add_u32 {vFo}, {vt1}, 4, {vt0}')
    I(f's_lshl_b32 {sB0}, {sW}, 15\ns_add_u32 {sB0}, {sB0}, {sTB}\ns_add_u32 {sB0}, {sB0}, {O_X1}')
    I(f's_lshl_b32 {sB1}, {sW}, 12\ns_add_u32 {sB1}, {sB1}, {sTB}\ns_add_u32 {sB1}, {sB1}, {O_ST3}')
    I(f'v_lshrrev_b32 {vt2}, 4, {vL}\nv_lshlrev_b32 {vt2}, 10, {vt2}\nv_and_b32 {vt1}, 15, {vL}\nv_lshl_add_u32 {vt2}, {vt1}, 4, {vt2}')
    poll(2, sM)
    stamp('x1_seen')
    A5a = V.at(64, 32, 'acc5a'); A5b = V.at(136, 24, 'acc5b')
    a5 = lambda t: A5a.sub(8*t, 8) if t < 4 else A5b.sub(8*(t-4), 8)
    GT = V.at(172, 16, 'gt5'); OP = V.at(188, 8, 'hout'); NM3 = V.at(196, 4, 'nm3'); RI3 = V.at(200, 4, 'ri3')
    SP = GT
    for i in range(4):
        I(f'buffer_load_dwordx4 {SP.t(4*i,4)}, {vt2}, {WS}, {sB1} offen offset:{i*256} sc1')

    def xa_load(s):
        def f(k_):
            for u in range(2):
                q = Q.take(('xa', s, u))
                if s < 2:
                    I(f'buffer_load_dwordx4 {q}, {vFo}, {WS}, {sB0} offen offset:{(s%2)*2048 + u*256} sc1')
                else:
                    I(f's_add_u32 {sD}, {sB0}, {(s//2)*4096}\nbuffer_load_dwordx4 {q}, {vFo}, {WS}, {sD} offen offset:{(s%2)*2048 + u*256} sc1')
        return f
    PF5 = o.get('pf5', 6)
    for s in range(PF5):
        xa_load(s)(k)
    ctmp = V.at(208, 28, 'ctmp')
    for w in range(4):
        for t in range(7):
            I(f'ds_read_b128 {cs3(t) if w == 0 else ctmp.t(4*t,4)}, {vt3} offset:{w*STGW + 6144 + t*64}')
        if w:
            for t in range(7):
                for q in range(2):
                    I(f'v_pk_add_f32 {cs3(t).t(2*q,2)}, {cs3(t).t(2*q,2)}, {ctmp.t(4*t+2*q,2)}')
    V.release(ctmp)
    QV = V.at(208, 48, 'qv'); Q.add(QV)
    tq = OP
    st5 = [f'v_pk_add_f32 {SP.t(0,2)}, {SP.t(0,2)}, {SP.t(4,2)}', f'v_pk_add_f32 {SP.t(2,2)}, {SP.t(2,2)}, {SP.t(6,2)}', f'v_pk_add_f32 {SP.t(8,2)}, {SP.t(8,2)}, {SP.t(12,2)}', f'v_pk_add_f32 {SP.t(10,2)}, {SP.t(10,2)}, {SP.t(14,2)}',
           f'v_pk_add_f32 {SP.t(0,2)}, {SP.t(0,2)}, {SP.t(8,2)}', f'v_pk_add_f32 {SP.t(2,2)}, {SP.t(2,2)}, {SP.t(10,2)}']
    st5 += xswap(SP.sub(0, 4), tq, 16) + xswap(SP.sub(0, 4), tq, 32)
    st5 += zipl(finish_stats(SP.sub(0, 2), NM3[0], RI3[0], None, tq.sub(0, 2)), finish_stats(SP.sub(2, 2), NM3[2], RI3[2], None, tq.sub(2, 2)))

    def w3read(dst, tile, s):
        hi = 2 if s >= 8 else 0
        off = (s % 8) * 7168 + tile * 256
        return [f'ds_read_b64_tr_b16 {dst.t(2*rd,2)}, {vW3r[hi+rd]} offset:{off}' for rd in range(2)]
    j5 = [(t, s) for s in range(16) for t in range(4)] + [(t, s) for s in range(16) for t in (4, 5, 6)]
    AH = 4
    pass1, pass2 = [], []
    for i in range(AH):
        pass1 += w3read(WF.sub((i % 6) * 4, 4), *j5[i])
    nxt = PF5
    for i, (t, s) in enumerate(j5):
        tgt = pass1 if i < 64 else pass2
        if i + AH < len(j5):
            tgt += w3read(WF.sub(((i + AH) % 6) * 4, 4), *j5[i + AH])
        if t == 0 and nxt < 16:
            tgt.append(xa_load(nxt)); nxt += 1
        for u in range(2):
            def f(k_, i=i, t=t, s=s, u=u):
                acc = a5(t).t(4*u, 4)
                I(f'v_mfma_f32_16x16x32_bf16 {acc}, {WF.t((i % 6)*4, 4)}, {Q[("xa", s, u)]}, {acc if s else 0}')
                if t == 6:
                    Q.give(('xa', s, u))
            tgt.append(Anchor(f))
    sH = S.alloc(1, name='hbase')
    I(f's_mul_i32 {sH}, {sW}, 112\ns_mul_i32 {sA}, {sJ}, 7\ns_add_u32 {sH}, {sH}, {sA}\ns_lshl_b32 {sH}, {sH}, 10\ns_add_u32 {sH}, {sH}, {sTB}\ns_add_u32 {sH}, {sH}, {O_H}')

    def ep5(tiles):
        L = []
        for t in tiles:
            for u in range(2):
                for q in range(2):
                    r = a5(t).t(4*u+2*q, 2)
                    L.append(f'v_pk_fma_f32 {r}, {cs3(t).t(2*q,2)}, {NM3.t(2*u,2)}, {r} op_sel_hi:[1,0,1]')
        for t in tiles:
            for u in range(2):
                for q in range(2):
                    r = a5(t).t(4*u+2*q, 2)
                    L.append(f'v_pk_mul_f32 {r}, {r}, {RI3.t(2*u,2)} op_sel_hi:[1,0]')
        base = a5(tiles[0])
        Z = Reg('v', base.b, 8 * len(tiles))
        n = Z.n // 2
        for i in range(n): L.append(f'v_cvt_pk_bf16_f32 {GT[i]}, {Z[2*i]}, {Z[2*i+1]}')
        L += unpack(Z, GT.sub(0, n))
        if len(tiles) == 2:
            outs = [OP[4*u + 2*ti + q] for ti in range(2) for u in range(2) for q in range(2)]
        else:
            outs = [OP[2*u + q] for u in range(2) for q in range(2)]
        L += gelu_pairs(Z, n, GT, outs)
        return L

    def st5pair(P_):
        return lambda k_: (I(f's_add_u32 {sC}, {sH}, {P_*2048}'), stores([f'buffer_store_dwordx4 {OP.t(4*u,4)}, {vFo}, {WS}, {sC} offen offset:{u*256}' for u in range(2)], tag='sth'))
    epA = ep5([0, 1]) + [st5pair(0)] + ep5([2, 3]) + [st5pair(1)]
    epB = ep5([4, 5]) + [st5pair(2)] + ep5([6])
    epB += [f'v_lshlrev_b32 {vt0}, 9, {vH}', f'v_and_b32 {vt1}, 15, {vL}', f'v_lshl_add_u32 {vt0}, {vt1}, 4, {vt0}', f'v_bfe_u32 {vt1}, {vL}, 4, 1', f'v_lshl_add_u32 {vt0}, {vt1}, 3, {vt0}']
    epB += [lambda k_: (I(f's_add_u32 {sC}, {sH}, 6144'), stores([f'buffer_store_dwordx2 {OP.t(2*u,2)}, {vt0}, {WS}, {sC} offen offset:{u*256}' for u in range(2)], tag='sth'))]
    pass1 = merge(pass1, st5, per=1, start=4)
    pre5 = c_loads[npc:] + w4_loads[:12]
    pass1 = merge(pass1, pre5, per=o.get('pre5_per', 0.5), start=o.get('pre5_start', 90))
    k.emit_all(pass1)
    stamp('g5_p1')
    sHS0 = S.alloc(1); sHS1 = S.alloc(1); sM2 = S.alloc(2, 2); vHSF = V.alloc(1)
    I(f's_lshl_b32 {sB}, {sTH}, 1\ns_lshl_b32 {sA}, 0x3333, {sB}\ns_lshl_b32 {sC}, {sW}, 4\ns_mov_b32 {sM2[0]}, {sA}\ns_mov_b32 {sM2[1]}, 0\ns_lshl_b64 {sM2}, {sM2}, {sC}')
    act_base(sHS0, sHS1, O_HS, 64, 16)
    I(f'buffer_load_dword {vHSF}, {vFLG}, {WS}, {sFL} offen offset:{3*256} sc1')
    hs_loads = [act_load('hs', kc, ti, sHS0, sHS1) for kc in range(16) for ti in range(2)]
    pass2 = merge(pass2, [lambda k_: lazy_check(vHSF, sFL, 3*256, sM2)] + hs_loads, every=3, per=1, start=3)
    pass2 = merge(pass2, epA, per=o.get('epa_per', 2.2), start=3)
    k.emit_all(pass2)
    publish(4, 'sth')
    stamp('g5_p2')
    V.release(WF, vW3r, A5a, CS3a, vHSF)

    ACC2 = [V.at(64, 16), V.at(80, 16), V.at(96, 16), V.at(112, 16)]
    XT = V.alloc(8, 4, 'xtile'); DS = V.alloc(8, 4, 'dskip')
    sROW = S.alloc(1, name='tilerow'); sCOL = S.alloc(1, name='tilecol')
    I(f's_lshl_b32 {sROW}, {sT}, 7\ns_lshl_b32 {sA}, {sTH}, 6\ns_add_u32 {sROW}, {sROW}, {sA}\ns_lshl_b32 {sA}, {sT32}, 5\ns_add_u32 {sROW}, {sROW}, {sA}')
    I(f's_lshl_b32 {sCOL}, {sCG}, 6\ns_lshl_b32 {sA}, {sN32}, 5\ns_add_u32 {sCOL}, {sCOL}, {sA}')
    g2 = gemm64(ACC2, 'c', 'hs', list(range(16)))
    g2 = merge(g2, epB + [lambda k_: publish(5, 'sth')], per=o.get('epb_per', 4), start=0)
    nw4 = o.get('w4_g2_start', 24)
    g2, w4rest = merge(g2, w4_loads[12:], per=1, start=nw4, tail=False)
    k.emit_all(g2)
    stamp('g2_mfma')
    V.release(A5b, CS3b, GT, OP, NM3, RI3, vFo)
    S.release(sH, sHS0, sHS1)
    k.emit_all(w4rest)
    I(f'v_lshlrev_b32 {vt0}, 10, {vTAU}\nv_lshl_add_u32 {vt0}, {vH}, 4, {vt0}')
    I(f's_lshl_b32 {sA}, {sROW}, 10\ns_lshl_b32 {sB}, {sCOL}, 1\ns_add_u32 {sA}, {sA}, {sB}')
    I(f'buffer_load_dwordx4 {XT.t(0,4)}, {vt0}, {SRD["X"]}, {sA} offen\nbuffer_load_dwordx4 {XT.t(4,4)}, {vt0}, {SRD["X"]}, {sA} offen offset:32')
    I(f'v_lshlrev_b32 {vt1}, 4, {vH}')
    I(f'buffer_load_dwordx4 {DS.t(0,4)}, {vt1}, {SRD["DSK"]}, {sB} offen\nbuffer_load_dwordx4 {DS.t(4,4)}, {vt1}, {SRD["DSK"]}, {sB} offen offset:32')
    act_base(sB0, sB1, O_H, 112, 28)
    QV2 = V.at(144, 64, 'qv2'); Q.add(QV2)
    h_loads = [act_load('h', ks, ti, sB0, sB1) for ks in G6K for ti in range(2)]
    poll(4, sM2)
    stamp('ha_seen')
    nh0 = min(len(Q.free), 32)
    k.emit_all(h_loads[:nh0])
    reduce4(ACC2)
    I(f's_cmp_lg_u32 s2, 255\ns_cbranch_scc1 L_noep\ns_cmp_lg_u32 {sW}, 0\ns_cbranch_scc1 L_noep\ns_mov_b32 {sA}, {O_EPOCH}\ns_mov_b64 exec, 1')
    k.raw(f'  buffer_store_dword {vTAGV}, {vZERO}, {WS}, {sA} offen sc0 sc1\n  s_waitcnt vmcnt(0)\n  s_mov_b64 exec, -1')
    k.label('L_noep')
    SS = ACC2[0]
    f1 = ACC2[1]; f2 = ACC2[2]; pp = ACC2[3].sub(0, 8)
    k.emit_all(unpack(f1, XNT)); k.emit_all(unpack(f2, DS))
    for i in range(8): I(f'v_pk_mul_f32 {f1.t(2*i,2)}, {f1.t(2*i,2)}, {f2.t(2*i,2)}')
    for i in range(8): I(f'v_cvt_pk_bf16_f32 {pp[i]}, {f1[2*i]}, {f1[2*i+1]}')
    k.emit_all(unpack(f1, pp))
    for i in range(8): I(f'v_pk_add_f32 {SS.t(2*i,2)}, {SS.t(2*i,2)}, {f1.t(2*i,2)}')
    V.release(DS, XNT)
    stamp('g2')

    A6x = V.at(128, 16, 'acc6x')
    ACC6 = [ACC2[1], ACC2[2], ACC2[3], A6x]
    g6 = gemm64(ACC6, 'w4', 'h', G6K)
    assert nh0 <= 32
    vHBF = V.alloc(1)
    rest = h_loads[nh0:32] + [f'buffer_load_dword {vHBF}, {vFLG}, {WS}, {sFL} offen offset:{5*256} sc1', lambda k_: lazy_check(vHBF, sFL, 5*256, sM2)] + h_loads[32:]
    g6 = merge(g6, rest, every=2, per=o.get('h_per', 1.5), start=2)
    k.emit_all(g6)
    stamp('g6_mfma')
    reduce4(ACC6)
    a0 = ACC6[0]; f1 = ACC6[1]; e_ = ACC6[2]; pp = ACC6[3].sub(0, 8); NL = ACC6[3].sub(8, 2)
    I(f'v_mov_b32 {NL[0]}, {hx(-LOG2E)}')
    for i in range(8): I(f'v_cvt_pk_bf16_f32 {pp[i]}, {a0[2*i]}, {a0[2*i+1]}')
    k.emit_all(unpack(a0, pp)); k.emit_all(unpack(f1, X1P))
    for i in range(8): I(f'v_pk_add_f32 {a0.t(2*i,2)}, {a0.t(2*i,2)}, {f1.t(2*i,2)}')
    for i in range(8): I(f'v_cvt_pk_bf16_f32 {pp[i]}, {a0[2*i]}, {a0[2*i+1]}')
    k.emit_all(unpack(a0, pp))
    for i in range(8): I(f'v_pk_mul_f32 {e_.t(2*i,2)}, {a0.t(2*i,2)}, {NL} op_sel_hi:[1,0]')
    for i in range(16): I(f'v_exp_f32 {e_[i]}, {e_[i]}')
    for i in range(8): I(f'v_pk_add_f32 {e_.t(2*i,2)}, {e_.t(2*i,2)}, {gONE} op_sel_hi:[1,0]')
    for i in range(16): I(f'v_rcp_f32 {e_[i]}, {e_[i]}')
    for i in range(8): I(f'v_pk_mul_f32 {a0.t(2*i,2)}, {a0.t(2*i,2)}, {e_.t(2*i,2)}')
    for i in range(8): I(f'v_cvt_pk_bf16_f32 {pp[i]}, {a0[2*i]}, {a0[2*i+1]}')
    k.emit_all(unpack(a0, pp)); k.emit_all(unpack(f1, XT))
    for i in range(8): I(f'v_pk_fma_f32 {a0.t(2*i,2)}, {a0.t(2*i,2)}, {SS.t(2*i,2)}, {f1.t(2*i,2)}')
    I(f'v_lshlrev_b32 {vt0}, 11, {vTAU}\nv_lshl_add_u32 {vt0}, {vH}, 5, {vt0}\ns_lshl_b32 {sA}, {sROW}, 11\ns_lshl_b32 {sB}, {sCOL}, 2\ns_add_u32 {sA}, {sA}, {sB}')
    for q in range(4):
        I(f'buffer_store_dwordx4 {a0.t(4*q,4)}, {vt0}, {SRD["OUT"]}, {sA} offen offset:{(q>>1)*64 + (q&1)*16}')
    stamp('end')
    if o['stamps']:
        i = nstamp[0]
        I(f'v_writelane_b32 {c.vSTP}, {c.STP[2 * ((i - 1) & 1)]}, {i - 1}')
        I(f's_lshl_b32 {sA}, s2, 2\ns_add_u32 {sA}, {sA}, {sW}\ns_lshl_b32 {sA}, {sA}, 8\ns_add_u32 {sA}, {sA}, {O_DBG}')
        I(f'buffer_store_dword {c.vSTP}, {vFLG}, {WS}, {sA} offen')
        if o.get('dbg') is not None:
            sel = o.get('dbgsel') or ['stubs', 'x_in', 'xn_pub', 'xn_seen', 'p1_start', 'h1_pub', 'h1_seen', 'x1_pub', 'x1_seen', 'g5_p2', 'g2_mfma', 'ha_seen', 'g6_mfma', 'end']
            R2 = S.alloc(2, 2); DP = S.alloc(2, 2)
            I(f's_cmp_lg_u32 s2, {o["dbg"]}\ns_cbranch_scc1 L_end\ns_cmp_lg_u32 {sW}, 0\ns_cbranch_scc1 L_end')
            I(f's_memrealtime {R2}\ns_load_dwordx2 {DP}, s[0:1], 120\nv_mov_b32 {vt0}, 0\nv_readlane_b32 {sB}, {c.vSTP}, 0')
            for j, n in enumerate(sel):
                I(f'v_readlane_b32 {sA}, {c.vSTP}, {k.stampnames.index(n)}\ns_sub_u32 {sA}, {sA}, {sB}\nv_writelane_b32 {vt0}, {sA}, {j}')
            I(f's_sub_u32 {sA}, {R2[0]}, {c.RT[0]}\nv_writelane_b32 {vt0}, {sA}, 14\nv_writelane_b32 {vt0}, {sSLOW}, 15')
            I(f'global_store_dword {vFLG}, {vt0}, {DP}')
    k.label('L_end')
    k.raw('  s_endpgm')
    return k.lines + k.tail, k


from gen import layout

if __name__ == '__main__':
    import json
    opts = json.loads(sys.argv[2]) if len(sys.argv) > 2 else {}
    body, k = gen(opts)
    txt, size = layout(body, k)
    open(sys.argv[1], 'w').write(txt)
    print('code bytes', size, 'vpeak', k.V.peak, 'apeak', k.A.peak, 'speak', k.S.peak, k.stat)
    open(sys.argv[1] + '.names', 'w').write(','.join(k.stampnames))
```

```python
import sys, struct, math
sys.path.insert(0, 'work')
from asmb import *

KNAME = 'recurrent_scan__ssm_conv_s5__mixer_s_mlp__prompt_kernel'
HDR = open('recurrent_scan__ssm_conv_s5__mixer_s_mlp__prompt.s.ref').read().split('; @launch')[0]

def f2u(x):
    return struct.unpack('<I', struct.pack('<f', x))[0]
def hx(x):
    return '0x%08x' % f2u(x)

TS = 0x120000
O_XN, O_H1, O_X1, O_HS, O_H = 0x0, 0x20000, 0x40000, 0x60000, 0xA0000
O_ST2, O_ST3, O_FLG, O_IDS = 0x110000, 0x111000, 0x118000, 0x119000
O_SCAN = 0x1400000
O_EPOCH = 0x1480000
O_WTF = 0x14C0000
O_WT = 0x1500000
WTS = 104 * 1024
O_DBG = 0x1900000
L_BB, BROW = 0, 1040
L_W1 = 66560
L_MISC = 99328
L_STX = L_MISC
L_HALO = L_MISC + 1280
L_HRED = L_MISC + 5376
L_UP = 106496
L_STG = 57344
STGW = 12288
L_SEG = L_HALO
LDS_BYTES = 163840
SPIN = 50000

LOG2E = 1.4426950408889634
GC0 = -2.0 * math.sqrt(2.0 / math.pi) * LOG2E
GC1 = GC0 * 0.044715


class Ctx:
    pass


def gen(opts=None):
    o = dict(stamps=False, stop=None)
    o.update(opts or {})
    k = Asm()
    I = k.I
    V, A, S = k.V, k.A, k.S
    k.raw(HDR.rstrip('\n'))
    k.raw(f'; @launch grid=(256,1,1) block=(256,1,1) lds={LDS_BYTES}')
    k.raw('.amdgcn_target "amdgcn-amd-amdhsa--gfx950"\n.text\n.globl %s\n.p2align 12\n.type %s,@function\n%s:' % (KNAME, KNAME, KNAME))

    KA = S.at(16, 16, 'ka0'); KB = S.at(32, 16, 'ka1'); KW = S.at(48, 2, 'kaws')
    names = ['X', 'BRE', 'BIM', 'CRE', 'CIM', 'W1', 'W2', 'W3', 'W4', 'OUT', 'WS', 'DSK']
    SRD = {n: S.at(52 + 4 * i, 4, n) for i, n in enumerate(names)}
    sT, sJ, sW, sTB, sTAG, sSLOW = [S.alloc(1, name=n) for n in ('T', 'J', 'W', 'TB', 'TAG', 'SLOW')]
    sA, sB, sC, sD = [S.alloc(1, name=f'tmp{i}') for i in range(4)]
    sXCC = S.alloc(1, name='xcc')
    sM = S.at(50, 2, 'mask')
    sEP = S.alloc(1, name='epoch')

    nstamp = [0]
    c = Ctx(); c.STP = None; c.vSTP = None

    c.pend = []; c.flip = 0

    def stamp_flush():
        for pr, i in c.pend:
            I(f'v_writelane_b32 {c.vSTP}, {pr[0]}, {i}')
        c.pend = []

    def stamp(name, pair=None):
        if o['stamps']:
            i = nstamp[0]; nstamp[0] += 1
            if pair is None:
                stamp_flush()
                pair = c.STP[c.flip]; c.flip ^= 1
            I(f's_memtime {pair}')
            c.pend.append((pair, i))
            k.stampnames.append(name)
    k.stampnames = []

    I('s_cmp_ge_u32 s2, 256')
    I('s_cbranch_scc1 L_end')
    if o['stamps']:
        c.STP = [None, None]; c.S0 = S.at(100, 2, 'stamp0')
    stamp('start', c.S0 if o['stamps'] else None)
    I(f's_load_dwordx16 {KA}, s[0:1], 0')
    I(f's_load_dwordx16 {KB}, s[0:1], 64')
    I(f's_load_dwordx2 {KW}, s[0:1], 128')
    vJUNK = V.at(65, 1, 'junk')
    I(f's_getpc_b64 {sM}')
    k.label('L_pc')
    I(f's_lshr_b32 {sA}, s2, 3\ns_lshl_b32 {sA}, {sA}, 11')
    I(f'v_lshl_add_u32 {vJUNK}, v0, 3, {sA}\nv_min_u32 {vJUNK}, L_codeend-L_pc-4, {vJUNK}\nglobal_load_dword {vJUNK}, {vJUNK}, {sM}')
    I(f's_getreg_b32 {sXCC}, hwreg(HW_REG_XCC_ID)')
    I(f's_and_b32 {sXCC}, {sXCC}, 15')
    vL = V.alloc(1, name='lane'); vt0 = V.alloc(1); vt1 = V.alloc(1); vt2 = V.alloc(1); vt3 = V.alloc(1)
    I(f'v_and_b32 {vL}, 63, v0')
    I(f'v_lshrrev_b32 {vt0}, 6, v0')
    I(f'v_readfirstlane_b32 {sW}, {vt0}')
    I(f's_and_b32 {sT}, s2, 7\ns_lshl_b32 {sT}, {sT}, 1\ns_lshr_b32 {sA}, s2, 7\ns_add_u32 {sT}, {sT}, {sA}')
    I(f's_lshr_b32 {sJ}, s2, 3\ns_and_b32 {sJ}, {sJ}, 15')
    I(f's_mul_i32 {sTB}, {sT}, {TS}')
    vL31 = V.alloc(1, name='l31'); vH = V.alloc(1, name='h'); vL16 = V.alloc(1, name='lane*16')
    vTAU = V.alloc(1, name='tau'); vMASK = V.alloc(1, name='hi16mask'); vTAGV = V.alloc(1, name='tagv'); vZERO = V.alloc(1, name='zero')
    vREDw = V.alloc(3, 1, 'redw'); vREDr = V.alloc(1, name='redr'); vFLG = V.alloc(1, name='flagoff'); vLN = V.alloc(2, 1, 'lane16^nt')
    GK = V.alloc(6, 2, 'gk')
    if o['stamps']:
        c.vSTP = V.alloc(1, name='stamps')
    X1P = V.alloc(8, 4, 'x1p'); XNT = V.alloc(8, 4, 'xnt')
    vP8 = V.alloc(1, name='p8'); vQ8 = V.alloc(1, name='q8')
    I(f'v_and_b32 {vP8}, 7, {vL}\nv_lshrrev_b32 {vQ8}, 3, {vL}\nv_and_b32 {vL31}, 31, {vL}\nv_lshrrev_b32 {vH}, 5, {vL}\nv_lshlrev_b32 {vL16}, 4, {vL}')
    vXo = V.alloc(1); vHo = V.alloc(1)
    I(f'v_lshrrev_b32 {vt0}, 2, {vP8}\nv_lshlrev_b32 {vt0}, 4, {vt0}\nv_and_b32 {vt1}, 3, {vP8}\nv_add_u32 {vt0}, {vt0}, {vt1}\nv_lshlrev_b32 {vt0}, 10, {vt0}')
    I(f'v_lshl_add_u32 {vXo}, {vQ8}, 4, {vt0}')
    I(f'v_and_b32 {vt1}, 1, {vP8}\nv_lshlrev_b32 {vt1}, 10, {vt1}\nv_lshl_add_u32 {vHo}, {vQ8}, 4, {vt1}')
    I(f's_lshl_b32 {sA}, {sT}, 7\ns_lshr_b32 {sB}, {sJ}, 2\ns_lshl_b32 {sB}, {sB}, 5\ns_add_u32 {sA}, {sA}, {sB}\ns_and_b32 {sB}, {sJ}, 3\ns_lshl_b32 {sB}, {sB}, 2\ns_add_u32 {sA}, {sA}, {sB}\ns_lshl_b32 {sA}, {sA}, 10\ns_lshl_b32 {sB}, {sW}, 8\ns_add_u32 {sA}, {sA}, {sB}')
    I(f's_bitcmp1_b32 {sJ}, 2\ns_cselect_b32 {sC}, 128, -2\ns_lshl_b32 {sD}, {sT}, 7\ns_add_u32 {sC}, {sC}, {sD}\ns_lshl_b32 {sC}, {sC}, 10\ns_add_u32 {sC}, {sC}, {sB}')
    I(f'v_add_u32 {vXo}, {sA}, {vXo}\nv_add_u32 {vHo}, {sC}, {vHo}')
    vW1o = V.alloc(1, name='w1o'); vCo = V.alloc(1); vP4o = V.alloc(1); vP2o = V.alloc(1)
    PW, PI = 'vcc_lo', 'vcc_hi'
    I(f'v_lshrrev_b32 {vt0}, 2, {vL}\nv_lshlrev_b32 {vt0}, 10, {vt0}\nv_and_b32 {vt1}, 3, {vL}\nv_lshl_add_u32 {vW1o}, {vt1}, 4, {vt0}')
    I(f's_and_b32 {PW}, {sJ}, 1\ns_lshl_b32 {PW}, {PW}, 1\ns_and_b32 {sA}, {sT}, 1\ns_add_u32 {PW}, {PW}, {sA}\ns_lshr_b32 {PI}, {sT}, 1\ns_lshr_b32 {sD}, {sJ}, 1')
    I(f'v_and_b32 {vt0}, 0x13, {vL}\nv_bfe_u32 {vt1}, {vL}, 2, 1\nv_lshl_add_u32 {vt0}, {vt1}, 3, {vt0}\nv_bfe_u32 {vt1}, {vL}, 3, 1\nv_lshl_add_u32 {vt0}, {vt1}, 2, {vt0}\nv_lshlrev_b32 {vt0}, 10, {vt0}\nv_lshl_add_u32 {vt0}, {vH}, 4, {vt0}')
    I(f's_lshl_b32 {sA}, {sD}, 16\ns_and_b32 {sB}, {sW}, 1\ns_lshl_b32 {sB}, {sB}, 15\ns_add_u32 {sA}, {sA}, {sB}\ns_lshl_b32 {sB}, {PW}, 8\ns_add_u32 {sA}, {sA}, {sB}\ns_lshr_b32 {sB}, {PI}, 1\ns_lshl_b32 {sB}, {sB}, 6\ns_add_u32 {sA}, {sA}, {sB}\ns_lshr_b32 {sB}, {sW}, 1\ns_lshl_b32 {sB}, {sB}, 5\ns_add_u32 {sA}, {sA}, {sB}\nv_add_u32 {vCo}, {sA}, {vt0}')
    I(f's_mul_i32 {sA}, {PW}, 448\ns_lshr_b32 {sB}, {PI}, 1\ns_mul_i32 {sB}, {sB}, 112\ns_add_u32 {sA}, {sA}, {sB}\ns_lshl_b32 {sB}, {sW}, 5\ns_add_u32 {sA}, {sA}, {sB}\ns_lshl_b32 {sA}, {sA}, 10\ns_lshl_b32 {sB}, {sD}, 7\ns_add_u32 {sA}, {sA}, {sB}\ns_and_b32 {sC}, {PI}, 1\ns_lshl_b32 {sC}, {sC}, 6\ns_add_u32 {sA}, {sA}, {sC}\nv_add_u32 {vP4o}, {sA}, {vW1o}')
    I(f's_lshl_b32 {sA}, {PW}, 17\ns_lshl_b32 {sC}, {PI}, 14\ns_add_u32 {sA}, {sA}, {sC}\ns_add_u32 {sA}, {sA}, {sB}\nv_add_u32 {vP2o}, {sA}, {vW1o}')
    I(f's_lshl_b32 {sA}, {sW}, 17\ns_lshl_b32 {sB}, {sJ}, 6\ns_add_u32 {sA}, {sA}, {sB}\nv_add_u32 {vW1o}, {sA}, {vW1o}')
    I(f's_mul_i32 {sC}, {sW}, 3072\ns_add_u32 m0, {sC}, {L_UP}\ns_mov_b32 {sD}, {O_EPOCH}\ns_movk_i32 {sA}, 16384\ns_movk_i32 {sB}, 64')

    def srd(name, lo, size):
        r = SRD[name]
        I(f's_mov_b32 {r[0]}, {lo[0]}\ns_and_b32 {r[1]}, {lo[1]}, 0xffff\ns_mov_b32 {r[2]}, {size}\ns_mov_b32 {r[3]}, 0x20000')
    srd('X', KA.sub(0, 2), 0x200000)
    I(f's_load_dword {sEP}, {KW}, {sD}')
    stamp('ka', sM)
    XP = V.alloc(8, 4, 'xp'); HP = V.alloc(8, 4, 'hp')
    I(f'buffer_load_dwordx4 {XP.t(0,4)}, {vXo}, {SRD["X"]}, 0 offen')
    I(f'buffer_load_dwordx4 {XP.t(4,4)}, {vXo}, {SRD["X"]}, 0 offen offset:128')
    I(f'buffer_load_dwordx4 {HP.t(0,4)}, {vHo}, {SRD["X"]}, 0 offen')
    I(f'buffer_load_dwordx4 {HP.t(4,4)}, {vHo}, {SRD["X"]}, 0 offen offset:128')
    V.release(vXo, vHo)
    srd('W4', KB.sub(10, 2), 1835008)
    I(f'buffer_load_dwordx4 {vP4o}, {SRD["W4"]}, 0 offen lds #praw')
    srd('W2', KB.sub(6, 2), 0x80000)
    I(f's_add_u32 m0, m0, 1024\ns_cmp_eq_u32 {sW}, 3\ns_cbranch_scc1 L_pw3')
    k.raw(f'  buffer_load_dwordx4 {vP4o}, {SRD["W4"]}, {sA} offen lds\n  s_branch L_pdone\nL_pw3:')
    k.raw(f'  buffer_load_dwordx4 {vP2o}, {SRD["W2"]}, 0 offen lds')
    I(f's_add_u32 m0, m0, 1024')
    I(f'buffer_load_dwordx4 {vP2o}, {SRD["W2"]}, {sB} offen lds #praw')
    k.label('L_pdone')
    k.fence(1)
    CQ = V.alloc(4, 4, 'cpiece')
    srd('CRE', KA.sub(10, 2), 0x80000); srd('CIM', KA.sub(12, 2), 0x80000)
    I(f's_bitcmp1_b32 {PI}, 0\ns_cbranch_scc1 L_cim')
    k.raw(f'  buffer_load_dwordx4 {CQ}, {vCo}, {SRD["CRE"]}, 0 offen\n  s_branch L_cdone\nL_cim:')
    I(f'buffer_load_dwordx4 {CQ}, {vCo}, {SRD["CIM"]}, 0 offen #craw')
    k.label('L_cdone')
    V.release(vCo, vP4o, vP2o)
    srd('W1', KB.sub(4, 2), 0x80000)
    I(f's_mov_b32 {sA}, 0\ns_lshl_b32 {sB}, {sW}, 13\ns_add_u32 m0, {sB}, {L_W1}')
    for i in range(8):
        I(f'buffer_load_dwordx4 {vW1o}, {SRD["W1"]}, {sA} offen lds #wdma')
        if i < 7:
            I(f's_add_u32 {sA}, {sA}, 16384\ns_add_u32 m0, m0, 1024')
    srd('WS', KW, 0x10000000)
    srd('BRE', KA.sub(6, 2), 0x80000); srd('BIM', KA.sub(8, 2), 0x80000)
    srd('W3', KB.sub(8, 2), 1835008)
    srd('OUT', KB.sub(12, 2), 0x400000)
    srd('DSK', KB.sub(0, 2), 1024)
    WS = SRD['WS']
    S.release(KA.sub(6, 8), KB, KW)
    sPW, sPI = [S.alloc(1, name=n) for n in ('pw', 'pi')]
    I(f's_mov_b32 {sPW}, {PW}\ns_mov_b32 {sPI}, {PI}')
    vLre = V.alloc(1); vLim = V.alloc(1); vLdt = V.alloc(1)
    I(f's_lshl_b32 {sA}, {sJ}, 6\nv_lshl_add_u32 {vt0}, {vL31}, 1, {sA}')
    I(f'global_load_ushort {vLre}, {vt0}, {KA.t(2,2)}\nglobal_load_ushort {vLim}, {vt0}, {KA.t(4,2)}\nglobal_load_ushort {vLdt}, {vt0}, {KA.t(14,2)}')
    S.release(KA.sub(0, 6), KA.sub(14, 2))
    if o['stamps']:
        c.STP = [S.alloc(2, 2, 'stamps'), S.alloc(2, 2, 'stamps')]
        c.E = [S.alloc(2, 2) for _ in range(3)]
    stamp('w1_iss', c.E[0] if o['stamps'] else None)
    if o.get('dbg') is not None:
        c.RT = S.alloc(2, 2, 'rt0')
        I(f's_memrealtime {c.RT}')
    sTH, sCG, sN32, sT32 = [S.alloc(1, name=n) for n in ('th', 'cg', 'n32', 't32')]
    I(f's_lshr_b32 {sTH}, {sJ}, 3\ns_and_b32 {sCG}, {sJ}, 7\ns_and_b32 {sN32}, {sW}, 1\ns_lshr_b32 {sT32}, {sW}, 1')
    sPC, sPD = [S.alloc(1, name=n) for n in ('pcg', 'pdst')]
    I(f's_lshr_b32 {sPC}, {sJ}, 1\ns_lshl_b32 {sA}, {sPC}, 2\ns_add_u32 {sA}, {sA}, {sPW}\ns_mul_i32 {sPD}, {sA}, {WTS}\ns_add_u32 {sPD}, {sPD}, {O_WT}')

    sBs = S.alloc(1, name='bsrc'); sBd = S.alloc(1, name='bdst')
    I(f's_lshl_b32 {sBs}, {sJ}, 15\ns_lshl_b32 {sA}, {sW}, 13\ns_add_u32 {sBs}, {sBs}, {sA}\ns_mul_i32 {sBd}, {sW}, {8*BROW}')

    def bdma(i):
        nm = 'BRE' if i < 8 else 'BIM'
        r = i % 8
        return [f's_add_u32 m0, {sBd}, {L_BB + (32 if i >= 8 else 0) * BROW + r * BROW}\ns_add_u32 {sD}, {sBs}, {r*1024}\nbuffer_load_dwordx4 {vL16}, {SRD[nm]}, {sD} offen lds #wdma']
    NB1 = o.get('nb1', 6)
    for i in range(NB1):
        k.emit_all(bdma(i))

    stamp('b1_iss', c.E[1] if o['stamps'] else None)
    I(f'v_mov_b32 {vZERO}, 0\ns_add_u32 {sTAG}, {sEP}, 16\ns_and_b32 {sTAG}, {sTAG}, -16\nv_mov_b32 {vTAGV}, {sTAG}')
    I(f's_or_b32 {sA}, {sTAG}, {sXCC}\nv_mov_b32 {vt0}, {sA}\ns_lshl_b32 {sB}, {sJ}, 2\ns_add_u32 {sB}, {sB}, {sTB}\ns_add_u32 {sB}, {sB}, {O_IDS}\ns_mov_b64 exec, 1')
    I(f'buffer_store_dword {vt0}, {vZERO}, {WS}, {sB} offen sc0 sc1')
    stamp('tag')
    I('s_mov_b64 exec, 0')
    for w in range(4):
        I(f's_cmp_eq_u32 {sW}, {w}\ns_cbranch_scc1 L_stub{w}')
    k.label('L_stubret')
    I('s_mov_b64 exec, -1')
    stamp('stubs')

    I(f'v_mov_b32 {vMASK}, 0xffff0000\nv_lshlrev_b32 {vFLG}, 2, {vL}')
    I(f'v_mov_b32 {GK[0]}, {hx(GC1)}\nv_mov_b32 {GK[2]}, {hx(GC0)}\nv_mov_b32 {GK[4]}, 1.0')
    gC1, gC0, gONE = GK.t(0, 2), GK.t(2, 2), GK.t(4, 2)
    I(f'v_bfe_u32 {vt0}, {vL31}, 2, 1\nv_lshlrev_b32 {vt0}, 4, {vt0}\nv_lshrrev_b32 {vt1}, 3, {vL31}\nv_lshl_add_u32 {vt0}, {vt1}, 2, {vt0}\nv_and_b32 {vt1}, 3, {vL31}\nv_add_u32 {vTAU}, {vt0}, {vt1}')
    for ni in range(2):
        I(f's_xor_b32 {sA}, {sN32}, {ni}\ns_lshl_b32 {sA}, {sA}, 10\nv_add_u32 {vLN[ni]}, {sA}, {vL16}')
    vTRI = V.alloc(1, name='tr_inner')
    I(f'v_bfe_u32 {vt0}, {vL}, 2, 2\nv_lshlrev_b32 {vt0}, 6, {vt0}\nv_bfe_u32 {vt1}, {vL}, 4, 1\nv_lshl_add_u32 {vt0}, {vt1}, 5, {vt0}\nv_and_b32 {vt1}, 1, {vL}\nv_lshl_add_u32 {vt0}, {vt1}, 4, {vt0}\nv_bfe_u32 {vt1}, {vL}, 1, 1\nv_lshl_add_u32 {vTRI}, {vt1}, 3, {vt0}')
    sFL = S.alloc(1, name='flagbase'); sMYF = S.alloc(1, name='myflag')
    I(f's_add_u32 {sFL}, {sTB}, {O_FLG}\ns_lshl_b32 {sMYF}, {sJ}, 4\ns_lshl_b32 {sA}, {sW}, 2\ns_add_u32 {sMYF}, {sMYF}, {sA}\ns_add_u32 {sMYF}, {sMYF}, {sFL}')
    vSTXw = V.alloc(1); vSTXr = V.alloc(1)
    I(f's_lshl_b32 {sA}, {sW}, 4\ns_add_u32 {sA}, {sA}, {L_STX}\nv_lshl_add_u32 {vSTXw}, {vP8}, 6, {sA}\nv_lshlrev_b32 {vSTXr}, 6, {vP8}\nv_add_u32 {vSTXr}, {L_STX}, {vSTXr}')
    vSo = V.alloc(1)
    I(f'v_lshrrev_b32 {vt0}, 1, {vQ8}\nv_lshlrev_b32 {vt0}, 10, {vt0}\nv_and_b32 {vt1}, 1, {vQ8}\nv_lshl_add_u32 {vt0}, {vt1}, 9, {vt0}\nv_lshl_add_u32 {vSo}, {vP8}, 4, {vt0}')
    sXS = S.alloc(2, 1, 'xnst')
    I(f's_lshr_b32 {sA}, {sJ}, 2\ns_lshl_b32 {sA}, {sA}, 15\ns_lshl_b32 {sB}, {sW}, 13\ns_add_u32 {sA}, {sA}, {sB}\ns_and_b32 {sB}, {sJ}, 3\ns_lshl_b32 {sB}, {sB}, 7\ns_add_u32 {sA}, {sA}, {sB}\ns_add_u32 {sA}, {sA}, {sTB}\ns_add_u32 {sXS[1]}, {sA}, {O_XN + 4096}\ns_add_u32 {sXS[0]}, {sA}, {O_XN}')

    def fine(L, n, name):
        if not o.get('fine'):
            return L
        out = [lambda k_: stamp(name + '_go')]; a = 0
        for t in L:
            out.append(t)
            if is_anchor(t):
                a += 1
                if a == 1 or a % n == 0:
                    out.append(lambda k_, a=a: stamp(f'{name}_{a}'))
        return out

    def unpack(dst, src):
        L = []
        for i in range(src.n):
            L.append(f'v_lshlrev_b32 {dst[2*i]}, 16, {src[i]}')
            L.append(f'v_and_b32 {dst[2*i+1]}, {vMASK}, {src[i]}')
        return L

    def sums(F, SQ, t):
        n = F.n // 2
        L = [f'v_pk_add_f32 {t.t(0,2)}, {F.t(0,2)}, {F.t(2,2)}', f'v_pk_mul_f32 {t.t(2,2)}, {F.t(0,2)}, {F.t(0,2)}', f'v_pk_fma_f32 {t.t(2,2)}, {F.t(2,2)}, {F.t(2,2)}, {t.t(2,2)}']
        for i in range(2, n):
            L.append(f'v_pk_add_f32 {t.t(0,2)}, {t.t(0,2)}, {F.t(2*i,2)}')
            L.append(f'v_pk_fma_f32 {t.t(2,2)}, {F.t(2*i,2)}, {F.t(2*i,2)}, {t.t(2,2)}')
        L.append(f'v_add_f32 {SQ[0]}, {t[0]}, {t[1]}')
        L.append(f'v_add_f32 {SQ[1]}, {t[2]}, {t[3]}')
        return L

    def xswap(SQ, t, which):
        n = SQ.n
        return ([f'v_mov_b32 {t[i]}, {SQ[i]}' for i in range(n)] + [f'v_permlane{which}_swap_b32 {SQ[i]}, {t[i]}' for i in range(n)]
                + [f'v_add_f32 {SQ[i]}, {SQ[i]}, {t[i]}' for i in range(n)])

    def finish_stats(SQ, NM, RI, PK, t, n=512):
        L = [f'v_mul_f32 {SQ[0]}, {hx(1.0/n)}, {SQ[0]}', f'v_mul_f32 {SQ[1]}, {hx(1.0/n)}, {SQ[1]}',
             f'v_fma_f32 {SQ[1]}, -{SQ[0]}, {SQ[0]}, {SQ[1]}', f'v_max_f32 {SQ[1]}, 0, {SQ[1]}',
             f'v_cvt_pk_bf16_f32 {t[0]}, {SQ[0]}, {SQ[1]}',
             f'v_and_b32 {t[1]}, {vMASK}, {t[0]}', f'v_add_f32 {t[1]}, {hx(1e-5)}, {t[1]}', f'v_cvt_pk_bf16_f32 {t[1]}, {t[1]}, {t[1]}',
             f'v_and_b32 {t[1]}, {vMASK}, {t[1]}', f'v_sqrt_f32 {t[1]}, {t[1]}', f'v_cvt_pk_bf16_f32 {t[1]}, {t[1]}, {t[1]}', f'v_and_b32 {t[1]}, {vMASK}, {t[1]}',
             f'v_rcp_f32 {RI}, {t[1]}', f'v_lshlrev_b32 {NM}, 16, {t[0]}']
        if PK is not None:
            L.append(f'v_lshrrev_b32 {t[0]}, 16, {NM}')
            L.append(f'v_or_b32 {PK}, {t[0]}, {t[1]}')
        L.append(f'v_xor_b32 {NM}, 0x80000000, {NM}')
        return L

    def zipl(a, b):
        out = []
        for i in range(max(len(a), len(b))):
            if i < len(a): out.append(a[i])
            if i < len(b): out.append(b[i])
        return out

    def row_stats2(F, F2, SQ, t, area, mid=None):
        k.emit_all(zipl(sums(F, SQ.sub(0, 2), t.sub(0, 4)), sums(F2, SQ.sub(2, 2), t.sub(4, 4))))
        for i in range(4):
            I(f'v_add_f32_dpp {SQ[i]}, {SQ[i]}, {SQ[i]} row_ror:8 row_mask:0xf bank_mask:0xf')
        k.emit_all(xswap(SQ, t, 16)); k.emit_all(xswap(SQ, t, 32))
        I(f's_mov_b64 exec, 0xff\nds_write_b128 {vSTXw}, {SQ} offset:{area*512}\ns_mov_b64 exec, -1')
        if mid:
            mid()
        k.barrier()
        for i in range(4):
            I(f'ds_read_b128 {t.t(4*i,4)}, {vSTXr} offset:{area*512+16*i}')
        I(f'v_pk_add_f32 {t.t(0,2)}, {t.t(0,2)}, {t.t(4,2)}\nv_pk_add_f32 {t.t(8,2)}, {t.t(8,2)}, {t.t(12,2)}\nv_pk_add_f32 {t.t(2,2)}, {t.t(2,2)}, {t.t(6,2)}\nv_pk_add_f32 {t.t(10,2)}, {t.t(10,2)}, {t.t(14,2)}')
        I(f'v_pk_add_f32 {SQ.t(0,2)}, {t.t(0,2)}, {t.t(8,2)}\nv_pk_add_f32 {SQ.t(2,2)}, {t.t(2,2)}, {t.t(10,2)}')

    def normalize(F, P, NM, RI):
        nm = f'v[{NM.b}:{NM.b+1}]'; ri = f'v[{RI.b}:{RI.b+1}]'
        for i in range(8):
            I(f'v_pk_add_f32 {F.t(2*i,2)}, {F.t(2*i,2)}, {nm} op_sel_hi:[1,0]')
        for i in range(8):
            I(f'v_cvt_pk_bf16_f32 {P[i]}, {F[2*i]}, {F[2*i+1]}')
        k.emit_all(unpack(F, P))
        for i in range(8):
            I(f'v_pk_mul_f32 {F.t(2*i,2)}, {F.t(2*i,2)}, {ri} op_sel_hi:[1,0]')
        for i in range(8):
            I(f'v_cvt_pk_bf16_f32 {P[i]}, {F[2*i]}, {F[2*i+1]}')

    def stores(L, tag='st'):
        ls = k.newlabel('L_slow'); lr = k.newlabel('L_sret')
        I(f's_cmp_lg_u32 {sSLOW}, 0')
        mark = len(k.lines)
        for t in L:
            I(t + f' #{tag}')
        body = k.lines[mark:]
        del k.lines[mark:]
        pre = []
        while body and not body[0].lstrip().startswith('buffer_store'):
            pre.append(body.pop(0))
        k.lines += pre
        k.lines.append(f'  s_cbranch_scc1 {ls}')
        k.lines += body
        k.lines.append(lr + ':')
        k.tail.append(ls + ':')
        for b in body:
            k.tail.append(b + ' sc0 sc1' if b.lstrip().startswith('buffer_store') else b)
        k.tail.append(f'  s_branch {lr}')

    def publish(phase, tag='st'):
        k.wait_vm_tag(tag)
        I('s_mov_b64 exec, 1')
        stores([f'buffer_store_dword {vTAGV}, {vZERO}, {WS}, {sMYF} offen offset:{phase*256}'], tag='flag')
        I('s_mov_b64 exec, -1')

    def poll_at(sbase, off, mask, voff=None):
        lp = k.newlabel('L_poll'); ld = k.newlabel('L_pdone')
        I(f's_mov_b32 {sA}, 0')
        k.fence(1)
        k.label(lp)
        k.raw(f'  buffer_load_dword {vt0}, {voff or vFLG}, {WS}, {sbase} offen offset:{off} sc1\n  s_waitcnt vmcnt(0)\n  v_cmp_ne_u32 vcc, {vt0}, {vTAGV}\n  s_add_u32 {sA}, {sA}, 1\n  s_cmp_gt_u32 {sA}, {SPIN}\n  s_cbranch_scc1 {ld}\n  s_and_b64 vcc, vcc, {mask}\n  s_cbranch_scc1 {lp}')
        k.label(ld)
        k.vm = []
        k.pos += 6

    def poll(phase, mask):
        poll_at(sFL, phase * 256, mask)

    def lazy_check(vdst, sbase, off, mask):
        lo = k.newlabel('L_lz'); lr = k.newlabel('L_lzr')
        I(f'v_cmp_ne_u32 vcc, {vdst}, {vTAGV}\ns_and_b64 vcc, vcc, {mask}\ns_cbranch_scc1 {lo}')
        k.label(lr)
        k.tail.append(f'{lo}:\n  s_mov_b32 {sA}, 0\n{lo}_p:\n  buffer_load_dword {vdst}, {vFLG}, {WS}, {sbase} offen offset:{off} sc1\n  s_waitcnt vmcnt(0)\n  v_cmp_ne_u32 vcc, {vdst}, {vTAGV}\n  s_add_u32 {sA}, {sA}, 1\n  s_cmp_gt_u32 {sA}, {SPIN}\n  s_cbranch_scc1 {lr}\n  s_and_b64 vcc, vcc, {mask}\n  s_cbranch_scc1 {lo}_p\n  s_branch {lr}')

    def ids_issue(dst):
        I(f's_add_u32 {sB}, {sTB}, {O_IDS}\nv_and_b32 {vt2}, 60, {vFLG}\nbuffer_load_dword {dst}, {vt2}, {WS}, {sB} offen sc1 #ids')

    def ids_check(src):
        I(f'v_and_b32 {vt0}, -16, {src}\nv_cmp_ne_u32 vcc, {sTAG}, {vt0}\ns_mov_b32 {sA}, 0\ns_cbranch_vccnz L_idpoll')
        k.label('L_idok')
        k.tail.append(f'L_idpoll:\n  s_add_u32 {sB}, {sTB}, {O_IDS}\n  buffer_load_dword {src}, {vt2}, {WS}, {sB} offen sc1\n  s_waitcnt vmcnt(0)\n  v_and_b32 {vt0}, -16, {src}\n  v_cmp_ne_u32 vcc, {sTAG}, {vt0}\n  s_add_u32 {sA}, {sA}, 1\n  s_cmp_gt_u32 {sA}, {SPIN}\n  s_cbranch_scc1 L_idok\n  s_cbranch_vccnz L_idpoll\n  s_branch L_idok')
        I(f's_or_b32 {sB}, {sTAG}, {sXCC}\nv_cmp_ne_u32 vcc, {sB}, {src}\ns_cmp_lg_u64 vcc, 0\ns_cselect_b32 {sSLOW}, 1, 0')
        if o.get('force_slow'):
            I(f's_mov_b32 {sSLOW}, 1')

    F = V.alloc(16, 2, 'F'); F2 = V.alloc(16, 2, 'F2'); SQ = V.alloc(4, 4, 'SQ'); t16 = V.alloc(16, 4, 't16')
    NM = V.alloc(2, 2, 'nm'); RI = V.alloc(2, 2, 'ri'); PK = V.alloc(2, 2, 'pk'); vID = V.alloc(1, name='ids')
    PT = V.alloc(12, 4, 'pt')
    sP4 = S.alloc(1); sPCd = S.alloc(1); sP2 = S.alloc(1); sWF = S.alloc(1)
    I(f's_lshr_b32 {sA}, {sPI}, 1\ns_lshl_b32 {sA}, {sA}, 2\ns_and_b32 {sB}, {sPI}, 1\ns_lshl_b32 {sC}, {sB}, 1\ns_add_u32 {sA}, {sA}, {sC}\ns_add_u32 {sA}, {sA}, {sT32}\ns_lshl_b32 {sA}, {sA}, 1\ns_add_u32 {sA}, {sA}, {sN32}\ns_lshl_b32 {sA}, {sA}, 10\ns_add_u32 {sA}, {sA}, {sPD}\ns_add_u32 {sPCd}, {sA}, {16*1024}')
    I(f's_lshr_b32 {sA}, {sPI}, 1\ns_mul_i32 {sA}, {sA}, 7\ns_lshl_b32 {sC}, {sW}, 1\ns_add_u32 {sA}, {sA}, {sC}\ns_lshl_b32 {sA}, {sA}, 1\ns_add_u32 {sA}, {sA}, {sB}\ns_lshl_b32 {sA}, {sA}, 10\ns_add_u32 {sA}, {sA}, {sPD}\ns_add_u32 {sP4}, {sA}, {48*1024}')
    I(f's_lshl_b32 {sC}, {sPI}, 11\ns_add_u32 {sP2}, {sC}, {sPD}')
    I(f's_lshl_b32 {sA}, {sPC}, 2\ns_add_u32 {sA}, {sA}, {sPW}\ns_lshl_b32 {sA}, {sA}, 7\ns_lshl_b32 {sB}, {sPI}, 4\ns_add_u32 {sA}, {sA}, {sB}\ns_lshl_b32 {sB}, {sW}, 2\ns_add_u32 {sA}, {sA}, {sB}\ns_add_u32 {sWF}, {sA}, {O_WTF}')
    I(f's_mul_i32 {sC}, {sW}, 3072\ns_add_u32 {sC}, {sC}, {L_UP}\nv_add_u32 {vt3}, {sC}, {vTRI}')
    S.release(sPC, sPW, sPI, sPD)
    k.emit_all(unpack(F, XP))
    stamp('x_in')
    k.emit_all(unpack(F2, HP))

    def pieces():
        k.wait_vm_tag('praw')
        I(f's_cmp_eq_u32 {sW}, 3\ns_cbranch_scc1 L_pt3')
        k.raw(f'  v_lshl_add_u32 {vt3}, {vH}, 8, {vt3}')
        for s in range(2):
            for rd in range(2):
                k.raw(f'  ds_read_b64_tr_b16 {PT.t(4*s+2*rd,2)}, {vt3} offset:{rd*1024 + s*512}')
        k.raw(f'  s_waitcnt lgkmcnt(0)\n  buffer_store_dwordx4 {PT.t(0,4)}, {vL16}, {WS}, {sP4} offen sc0 sc1\n  buffer_store_dwordx4 {PT.t(4,4)}, {vL16}, {WS}, {sP4} offen offset:2048 sc0 sc1\n  s_branch L_ptd\nL_pt3:')
        I(f'v_lshl_add_u32 {vt3}, {vH}, 9, {vt3}')
        for b in range(3):
            for rd in range(2):
                I(f'ds_read_b64_tr_b16 {PT.t(4*b+2*rd,2)}, {vt3} offset:{b*1024 + rd*256}')
        k.waitcnt(lg=0)
        k.raw(f'  buffer_store_dwordx4 {PT.t(0,4)}, {vL16}, {WS}, {sP4} offen sc0 sc1')
        I(f'buffer_store_dwordx4 {PT.t(4,4)}, {vL16}, {WS}, {sP2} offen sc0 sc1 #wt\nbuffer_store_dwordx4 {PT.t(8,4)}, {vL16}, {WS}, {sP2} offen offset:1024 sc0 sc1 #wt')
        k.label('L_ptd')
        k.fence(2)
        I(f'buffer_store_dwordx4 {CQ}, {vL16}, {WS}, {sPCd} offen sc0 sc1 #wt')
        stamp('pt_st')
    row_stats2(F, F2, SQ, t16, 0, mid=pieces)
    V.release(vW1o, CQ, vJUNK, PT)
    S.release(sP4, sPCd, sP2)
    k.emit_all(finish_stats(SQ.sub(0, 2), NM[0], RI[0], None, t16))
    normalize(F, XP, NM, RI)
    xn_st = [f'buffer_store_dwordx4 {XP.t(0,4)}, {vSo}, {WS}, {sXS[0]} offen', f'buffer_store_dwordx4 {XP.t(4,4)}, {vSo}, {WS}, {sXS[1]} offen']
    for t in xn_st:
        I(t + ' #st')
    ids_issue(vID)
    stamp('xn_st')
    for i in range(NB1, 16):
        k.emit_all(bdma(i))
    S.release(sBs, sBd)
    stamp('b_iss')
    k.emit_all(finish_stats(SQ.sub(2, 2), NM[0], RI[0], None, t16))
    normalize(F2, HP, NM, RI)
    I(f's_lshl_b32 {sA}, {sW}, 10\ns_add_u32 {sA}, {sA}, {L_HALO}\nv_and_b32 {vt0}, 1, {vP8}\nv_lshlrev_b32 {vt0}, 4, {vt0}\nv_lshl_add_u32 {vt0}, {vQ8}, 6, {vt0}\nv_add_u32 {vt0}, {sA}, {vt0}')
    I(f'ds_write_b128 {vt0}, {HP.t(0,4)}\nds_write_b128 {vt0}, {HP.t(4,4)} offset:512')
    ONES = V.at(204, 4, 'ones')
    for i in range(4):
        I(f'v_mov_b32 {ONES[i]}, 0x3f803f80')
    I(f'v_lshlrev_b32 {vt1}, 6, {vL}\nv_add_u32 {vt1}, {L_HALO + 32}, {vt1}\nds_write_b128 {vt1}, {ONES}')
    stamp('halo_n')
    ids_check(vID)
    V.release(vID)
    I(f's_cmp_lg_u32 {sSLOW}, 0\ns_cbranch_scc1 L_xnslow\ns_mov_b64 exec, 1')
    I(f'buffer_store_dword {vTAGV}, {vZERO}, {WS}, {sMYF} offen #flag')
    k.label('L_xnret')
    I(f'buffer_store_dword {vTAGV}, {vZERO}, {WS}, {sWF} offen sc0 sc1')
    S.release(sWF)
    I('s_mov_b64 exec, -1')
    k.tail.append('L_xnslow:\n' + ''.join(f'  {t} sc0 sc1\n' for t in xn_st) + f'  s_waitcnt vmcnt(0)\n  s_mov_b64 exec, 1\n  buffer_store_dword {vTAGV}, {vZERO}, {WS}, {sMYF} offen sc0 sc1\n  s_branch L_xnret')
    stamp('xn_pub')
    k.emit_all(zipl(unpack(F, XP), unpack(F2, HP)))
    row_stats2(F, F2, SQ, t16, 1)
    k.emit_all(finish_stats(SQ.sub(0, 2), NM[0], RI[0], PK[0], t16))
    I(f'v_mov_b32 {PK[1]}, {vTAGV}')
    I(f's_lshl_b32 {sA}, {sJ}, 6\ns_add_u32 {sA}, {sA}, {sTB}\ns_add_u32 {sA}, {sA}, {O_ST2}\nv_lshlrev_b32 {vt0}, 3, {vP8}')
    I(f's_cmp_eq_u32 {sW}, 0\ns_cselect_b64 exec, 0xff, 1')
    stores([f'buffer_store_dwordx2 {PK}, {vt0}, {WS}, {sA} offen'], tag='st2')
    I('s_mov_b64 exec, -1')
    HNM = V.alloc(1, name='hnm'); HRI = V.alloc(1, name='hri')
    k.emit_all(finish_stats(SQ.sub(2, 2), HNM[0], HRI[0], None, t16))
    V.release(F, F2, SQ, NM, RI, PK, XP, HP, vSo, vSTXw, vSTXr, t16, vP8, vQ8)
    S.release(sXS)

    LAM = V.alloc(2, 2, 'lam'); CF = V.alloc(2, 2, 'coef2'); L16 = V.alloc(2, 2, 'lam16'); L128 = V.alloc(2, 2, 'lam128'); LOWN = V.alloc(2, 2, 'lown'); L256 = V.alloc(2, 2, 'lam256')
    T = V.alloc(8, 2, 'ctmp')
    I(f'v_lshlrev_b32 {vLre}, 16, {vLre}\nv_lshlrev_b32 {vLim}, 16, {vLim}\nv_lshlrev_b32 {vLdt}, 16, {vLdt}')
    I(f'v_mul_f32 {T[0]}, {hx(LOG2E)}, {vLdt}\nv_exp_f32 {T[0]}, {T[0]}\nv_cvt_pk_bf16_f32 {T[0]}, {T[0]}, {T[0]}\nv_lshlrev_b32 {T[0]}, 16, {T[0]}')
    I(f'v_mul_f32 {T[1]}, {T[0]}, {vLre}\nv_mul_f32 {T[2]}, {T[0]}, {vLim}')
    I(f'v_mul_f32 {T[1]}, {hx(LOG2E)}, {T[1]}\nv_exp_f32 {T[1]}, {T[1]}')
    I(f'v_mul_f32 {T[2]}, {hx(1.0 / (2 * math.pi))}, {T[2]}\nv_rndne_f32 {T[3]}, {T[2]}\nv_sub_f32 {T[2]}, {T[2]}, {T[3]}')
    I(f'v_cos_f32 {T[3]}, {T[2]}\nv_sin_f32 {T[4]}, {T[2]}')
    I(f'v_mul_f32 {LAM[0]}, {T[1]}, {T[3]}\nv_mul_f32 {LAM[1]}, {T[1]}, {T[4]}')
    I(f'v_add_f32 {T[0]}, -1.0, {LAM[0]}')
    I(f'v_mul_f32 {T[1]}, {vLre}, {vLre}\nv_fmac_f32 {T[1]}, {vLim}, {vLim}\nv_rcp_f32 {T[1]}, {T[1]}\nv_add_f32 {T[1]}, {T[1]}, {T[1]}')
    I(f'v_mul_f32 {T[2]}, {T[0]}, {vLre}\nv_fmac_f32 {T[2]}, {LAM[1]}, {vLim}\nv_mul_f32 {CF[0]}, {T[2]}, {T[1]}')
    I(f'v_mul_f32 {T[3]}, {LAM[1]}, {vLre}\nv_fma_f32 {T[3]}, -{T[0]}, {vLim}, {T[3]}\nv_mul_f32 {CF[1]}, {T[3]}, {T[1]}')

    def csq(d, s):
        I(f'v_mul_f32 {d[0]}, {s[1]}, {s[1]}\nv_mul_f32 {d[1]}, {s[0]}, {s[1]}\nv_fma_f32 {d[0]}, {s[0]}, {s[0]}, -{d[0]}\nv_add_f32 {d[1]}, {d[1]}, {d[1]}')

    def cmul(d, a, b):
        I(f'v_mul_f32 {d[0]}, {a[1]}, {b[1]}\nv_mul_f32 {d[1]}, {a[0]}, {b[1]}\nv_fma_f32 {d[0]}, {a[0]}, {b[0]}, -{d[0]}\nv_fmac_f32 {d[1]}, {a[1]}, {b[0]}')
    Ta, Tb, Tc, Td = T.sub(0, 2), T.sub(2, 2), T.sub(4, 2), T.sub(6, 2)
    csq(Ta, LAM); csq(Tb, Ta); csq(Ta, Tb); csq(L16, Ta)
    csq(Ta, L16); csq(Tb, Ta); csq(L128, Tb); csq(L256, L128)
    I(f'v_cmp_eq_u32 vcc, 1, {vH}\nv_mov_b32 {Tc[0]}, 1.0\nv_mov_b32 {Tc[1]}, 0\nv_cndmask_b32 {Tc[0]}, {Tc[0]}, {L16[0]}, vcc\nv_cndmask_b32 {Tc[1]}, {Tc[1]}, {L16[1]}, vcc')
    I(f's_bitcmp1_b32 {sW}, 0\ns_cselect_b64 vcc, -1, 0')
    I(f'v_mov_b32 {Td[0]}, 1.0\nv_mov_b32 {Td[1]}, 0\nv_cndmask_b32 {Ta[0]}, {Td[0]}, {Ta[0]}, vcc\nv_cndmask_b32 {Ta[1]}, {Td[1]}, {Ta[1]}, vcc')
    I(f's_bitcmp1_b32 {sW}, 1\ns_cselect_b64 vcc, -1, 0')
    I(f'v_cndmask_b32 {Tb[0]}, {Td[0]}, {Tb[0]}, vcc\nv_cndmask_b32 {Tb[1]}, {Td[1]}, {Tb[1]}, vcc')
    cmul(Td, Tc, Ta); cmul(LOWN, Td, Tb)
    V.release(T, vLre, vLim, vLdt)
    vW1r = V.alloc(1, name='w1rd')
    I(f'v_lshl_add_u32 {vW1r}, {vH}, 9, {vTRI}\nv_add_u32 {vW1r}, {L_W1}, {vW1r}')
    vBr = V.alloc(1, name='brd')
    I(f'v_mul_u32_u24 {vBr}, {BROW}, {vL31}\nv_lshl_add_u32 {vBr}, {vH}, 4, {vBr}')
    V.release(vTRI)
    stamp('p0_done')

    sWTF = S.alloc(1, name='wtf')
    I(f's_lshl_b32 {sA}, {sW}, 4\ns_lshl_b64 {sM}, 0xffff, {sA}')
    poll(0, sM)
    stamp('xn_seen')
    XN = A.at(0, 128, 'XN')
    sXN = S.alloc(1, name='xnbase')
    I(f's_lshl_b32 {sXN}, {sW}, 15\ns_add_u32 {sXN}, {sXN}, {sTB}')

    def xn_load(ks):
        L = []
        if ks % 4 == 0 and ks:
            L.append(f's_add_u32 {sXN}, {sXN}, 4096')
        L.append(f'buffer_load_dwordx4 {XN.t(4*ks,4)}, {vL16}, {WS}, {sXN} offen offset:{(ks%4)*1024} sc1')
        return L
    PF = o.get('pf1', 10)
    for ks in range(PF):
        k.emit_all(xn_load(ks))
    sWT = S.alloc(1, name='wtbase')
    I(f's_lshl_b32 {sA}, {sCG}, 2\ns_add_u32 {sA}, {sA}, {sW}\ns_lshl_b32 {sWTF}, {sA}, 7\ns_add_u32 {sWTF}, {sWTF}, {O_WTF}\ns_mul_i32 {sWT}, {sA}, {WTS}\ns_add_u32 {sWT}, {sWT}, {O_WT}')
    ST2 = V.alloc(2, 2, 'st2')
    sST2 = S.alloc(1); vST2o = V.alloc(1)
    I(f's_lshl_b32 {sA}, {sW}, 8\ns_add_u32 {sA}, {sA}, {sTB}\ns_add_u32 {sST2}, {sA}, {O_ST2}\nv_lshlrev_b32 {vST2o}, 3, {vL31}')
    k.barrier()

    HA = V.alloc(16, 4, 'hacc'); WF = A.at(192, 24, 'wf')
    I(f'v_min_u32 {vt0}, 2, {vL31}\nv_lshlrev_b32 {vt0}, 4, {vt0}\nv_lshl_add_u32 {vt0}, {vH}, 6, {vt0}\ns_lshl_b32 {sB}, {sW}, 10\ns_add_u32 {sB}, {sB}, {L_HALO}\nv_add_u32 {vt0}, {sB}, {vt0}')
    I(f's_lshl_b32 {sB}, {sW}, 13\nv_add_u32 {vt1}, {sB}, {vW1r}')
    for i in range(8):
        b = (i % 3) * 8
        I(f'ds_read_b64_tr_b16 {WF.t(b,2)}, {vt1} offset:{i*1024}\nds_read_b64_tr_b16 {WF.t(b+2,2)}, {vt1} offset:{i*1024+256}\nds_read_b128 {WF.t(b+4,4)}, {vt0} offset:{i*128}')
        if i >= 2:
            j = i - 2; bb = (j % 3) * 8
            I(f'v_mfma_f32_32x32x16_bf16 {HA}, {WF.t(bb,4)}, {WF.t(bb+4,4)}, {HA if j else 0}')
    for j in (6, 7):
        bb = (j % 3) * 8
        I(f'v_mfma_f32_32x32x16_bf16 {HA}, {WF.t(bb,4)}, {WF.t(bb+4,4)}, {HA}')
    sDEL = S.alloc(1, name='delta'); sH1 = S.alloc(1, name='h1base')
    I(f's_lshr_b32 {sA}, {sJ}, 3\ns_add_u32 {sDEL}, {sA}, 1\ns_sub_u32 {sB}, 0, {sDEL}\ns_bitcmp1_b32 {sJ}, 2\ns_cselect_b32 {sDEL}, {sB}, {sDEL}')
    I(f's_lshl_b32 {sH1}, {sJ}, 11\ns_add_u32 {sH1}, {sH1}, {sTB}\ns_add_u32 {sH1}, {sH1}, {O_H1}')
    I(f's_mul_i32 {sB}, {sW}, 384\ns_add_u32 {sB}, {sB}, {L_HRED}\nv_lshlrev_b32 {vt0}, 7, {vL31}\nv_lshl_add_u32 {vt0}, {vH}, 6, {vt0}\nv_add_u32 {vt0}, {sB}, {vt0}')
    I('s_mov_b32 exec_lo, 7\ns_mov_b32 exec_hi, 7')
    for i in range(4):
        I(f'ds_write_b128 {vt0}, {HA.t(4*i,4)} offset:{16*i}')
    I('s_mov_b64 exec, -1')

    def gelu_pairs(Z, n, t, outs):
        L = []
        P = lambda R, i: R.t(2 * i, 2)
        for i in range(n): L.append(f'v_pk_mul_f32 {P(t,i)}, {P(Z,i)}, {P(Z,i)}')
        for i in range(n): L.append(f'v_pk_fma_f32 {P(t,i)}, {P(t,i)}, {gC1}, {gC0} op_sel_hi:[1,0,0]')
        for i in range(n): L.append(f'v_pk_mul_f32 {P(t,i)}, {P(t,i)}, {P(Z,i)}')
        for i in range(2 * n): L.append(f'v_exp_f32 {t[i]}, {t[i]}')
        for i in range(n): L.append(f'v_pk_add_f32 {P(t,i)}, {P(t,i)}, {gONE} op_sel_hi:[1,0]')
        for i in range(2 * n): L.append(f'v_rcp_f32 {t[i]}, {t[i]}')
        for i in range(n): L.append(f'v_pk_mul_f32 {P(t,i)}, {P(t,i)}, {P(Z,i)}')
        for i in range(n): L.append(f'v_cvt_pk_bf16_f32 {outs[i]}, {t[2*i]}, {t[2*i+1]}')
        return L

    def h1_rowoff(dst, tp, ta, tb):
        return [f'v_bfe_u32 {ta}, {tp}, 2, 2', f'v_lshlrev_b32 {ta}, 3, {ta}', f'v_bfe_u32 {tb}, {tp}, 4, 1', f'v_lshl_add_u32 {ta}, {tb}, 2, {ta}', f'v_and_b32 {tb}, 3, {tp}', f'v_add_u32 {ta}, {ta}, {tb}', f'v_lshlrev_b32 {ta}, 4, {ta}',
                f'v_lshrrev_b32 {tb}, 5, {tp}', f'v_lshl_add_u32 {ta}, {tb}, 15, {ta}', f'v_cmp_gt_u32 vcc, 128, {tp}\nv_bfrev_b32 {tb}, 1\nv_cndmask_b32 {dst}, {tb}, {ta}, vcc']

    CS1 = V.alloc(16, 4, 'cs1'); hz = V.alloc(12, 2, 'hz'); vH1o = V.alloc(1, name='h1off')
    hf = ['@barrier']
    hf += [f'v_lshlrev_b32 {hz[8]}, 6, {vH}', f'v_add_u32 {hz[8]}, {L_HRED + 256}, {hz[8]}']
    hf += [f'ds_read_b128 {CS1.t(4*i,4)}, {hz[8]} offset:{16*i}' for i in range(4)]
    for w in range(1, 4):
        hf += [f'ds_read_b128 {HA.t(4*i,4)}, {hz[8]} offset:{w*384+16*i}' for i in range(4)]
        hf += [f'v_pk_add_f32 {CS1.t(2*i,2)}, {CS1.t(2*i,2)}, {HA.t(2*i,2)}' for i in range(8)]
    hf += [f'v_and_b32 {hz[8]}, 1, {vL}', f'v_lshlrev_b32 {hz[8]}, 7, {hz[8]}', f'v_lshrrev_b32 {hz[9]}, 1, {vL}', f'v_lshl_add_u32 {hz[8]}, {hz[9]}, 2, {hz[8]}', f'v_add_u32 {hz[8]}, {L_HRED}, {hz[8]}', f'v_lshlrev_b32 {hz[10]}, 2, {hz[9]}', f'v_add_u32 {hz[10]}, {L_HRED + 256}, {hz[10]}']
    for w in range(4):
        hf += [f'ds_read_b32 {hz[w]}, {hz[8]} offset:{w*384}', f'ds_read_b32 {hz[4+w]}, {hz[10]} offset:{w*384}']
    hf += [f'v_add_f32 {hz[0]}, {hz[0]}, {hz[1]}', f'v_add_f32 {hz[2]}, {hz[2]}, {hz[3]}', f'v_add_f32 {hz[4]}, {hz[4]}, {hz[5]}', f'v_add_f32 {hz[6]}, {hz[6]}, {hz[7]}', f'v_add_f32 {hz[0]}, {hz[0]}, {hz[2]}', f'v_add_f32 {hz[4]}, {hz[4]}, {hz[6]}']
    hf += [f'v_fmac_f32 {hz[0]}, {HNM}, {hz[4]}', f'v_mul_f32 {hz[0]}, {hz[0]}, {HRI}', f'v_cvt_pk_bf16_f32 {hz[0]}, {hz[0]}, {hz[0]}', f'v_lshlrev_b32 {hz[0]}, 16, {hz[0]}', f'v_mov_b32 {hz[1]}, {hz[0]}']
    hf += gelu_pairs(hz.sub(0, 2), 1, hz.sub(2, 2), [hz[0]])
    hf += [f's_bitcmp1_b32 {sJ}, 2\ns_cselect_b32 {sB}, 15, 0\ns_cmp_eq_u32 {sT}, {sB}\ns_cselect_b32 {sB}, 0, -1\nv_and_b32 {hz[0]}, {sB}, {hz[0]}']
    hf += [f's_bitcmp1_b32 {sJ}, 2\ns_cselect_b32 {sB}, 128, -2\ns_add_u32 {sB}, {sB}, {sDEL}\nv_and_b32 {hz[2]}, 1, {vL}\nv_add_u32 {hz[2]}, {sB}, {hz[2]}']
    hf += h1_rowoff(hz[3], hz[2], hz[4], hz[5])
    hf += [f'v_bfe_u32 {hz[4]}, {hz[9]}, 3, 1', f'v_lshl_add_u32 {hz[3]}, {hz[4]}, 10, {hz[3]}', f'v_lshrrev_b32 {hz[4]}, 4, {hz[9]}', f'v_lshl_add_u32 {hz[3]}, {hz[4]}, 9, {hz[3]}', f'v_and_b32 {hz[4]}, 7, {hz[9]}', f'v_lshl_add_u32 {hz[3]}, {hz[4]}, 1, {hz[3]}']
    hf += [f's_cmp_lg_u32 {sW}, 0\ns_cselect_b32 {sB}, 0x80000000, 0\nv_or_b32 {hz[3]}, {sB}, {hz[3]}']
    hf += [lambda k_: stores([f'buffer_store_short {hz[0]}, {hz[3]}, {WS}, {sH1} offen'], tag='sth')]
    hf += [f's_lshl_b32 {sB}, {sW}, 5\ns_add_u32 {sB}, {sB}, {sDEL}\nv_add_u32 {hz[2]}, {sB}, {vTAU}']
    hf += h1_rowoff(vH1o, hz[2], hz[4], hz[5])
    hf += [f'v_lshl_add_u32 {vH1o}, {vH}, 9, {vH1o}']
    stamp('p1_start')

    vW3o = V.at(152, 7, 'w3o')
    w3prep = []
    for n in range(7):
        a_, b_, c_ = hz[8], hz[10], hz[11]
        w3prep += [f'v_lshrrev_b32 {a_}, 4, {vL}', f'v_add_u32 {a_}, {4*n}, {a_}', f'v_mul_u32_u24 {b_}, 37, {a_}', f'v_lshrrev_b32 {b_}, 8, {b_}', f'v_mul_u32_u24 {c_}, 7, {b_}', f'v_sub_u32 {a_}, {a_}, {c_}',
                   f'v_lshlrev_b32 {a_}, 5, {a_}', f'v_and_b32 {c_}, 1, {vL}', f'v_lshl_add_u32 {a_}, {c_}, 4, {a_}',
                   f'v_and_b32 {c_}, 1, {b_}', f'v_lshlrev_b32 {c_}, 2, {c_}', f'v_bfe_u32 {vW3o[n]}, {vL}, 1, 3', f'v_xor_b32 {c_}, {c_}, {vW3o[n]}', f'v_lshl_add_u32 {c_}, {b_}, 3, {c_}',
                   f'v_mul_u32_u24 {c_}, 3584, {c_}', f'v_add_u32 {vW3o[n]}, {c_}, {a_}']
    sW3s = S.alloc(1, name='w3src'); sW3d = S.alloc(1, name='w3dst')
    I(f's_mul_i32 {sW3s}, {sW}, {64*3584}\ns_mul_i32 {sA}, {sJ}, 224\ns_add_u32 {sW3s}, {sW3s}, {sA}\ns_mul_i32 {sW3d}, {sW}, {2*7168}')

    def w3_dma(upper):
        L = []
        for g in range(2):
            for n in range(7):
                L.append(f's_add_u32 m0, {sW3d}, {(L_UP if upper else 0) + g*7168 + n*1024}\ns_add_u32 {sD}, {sW3s}, {(8*upper + g)*32*3584}\nbuffer_load_dwordx4 {vW3o[n]}, {SRD["W3"]}, {sD} offen lds #w3')
        return L

    Q = Quads()
    k.Q = Q

    def wt_load(key, frag):
        def f(k_):
            q = Q.take(key)
            off = frag * 1024
            I(f's_add_u32 {sD}, {sWT}, {off}\nbuffer_load_dwordx4 {q}, {vLN[key[2]]}, {WS}, {sD} offen #wt{key[0]}')
        return f
    w2_loads = [wt_load(('w2', ks, ni), 2 * ks) for ks in range(8) for ni in range(2)]
    c_loads = [wt_load(('c', kc, ni), 16 + 2 * kc) for kc in range(16) for ni in range(2)]
    G6K = [7 * mb + j for mb in range(4) for j in range(4)] + [7 * mb + j for mb in range(4) for j in (4, 5, 6)]
    w4_loads = [wt_load(('w4', ks, ni), 48 + 2 * ks) for ks in G6K for ni in range(2)]
    QA2 = A.at(128, 64, 'qa2'); Q.add(QA2)

    ARE = V.at(172, 16, 'are'); AIM = V.at(188, 16, 'aim'); A3 = V.alloc(16, 4, 'a3')
    jobs = []
    g1 = 0
    ratio = o.get('g1ratio', 4 / 3)
    for ks in range(32):
        jobs.append(('w', ks))
        while g1 < min(2 * (ks + 1), int(ratio * (ks + 1))):
            jobs.append(('re' if g1 % 2 == 0 else 'im', g1 // 2)); g1 += 1
    nfirst = len(jobs)
    while g1 < 64:
        jobs.append(('re' if g1 % 2 == 0 else 'im', g1 // 2)); g1 += 1
    NB = 6

    def wread(i):
        ty, ks = jobs[i]; b = (i % NB) * 4
        if ty == 'w':
            return [f'ds_read_b64_tr_b16 {WF.t(b,2)}, {vW1r} offset:{ks*1024}', f'ds_read_b64_tr_b16 {WF.t(b+2,2)}, {vW1r} offset:{ks*1024+256}']
        return [f'ds_read_b128 {WF.t(b,4)}, {vBr} offset:{ks*32 + (32*BROW if ty == "im" else 0)}']

    def mm(i):
        ty, ks = jobs[i]; b = (i % NB) * 4
        if ty == 'w':
            return f'v_mfma_f32_32x32x16_bf16 {A3}, {WF.t(b,4)}, {XN.t(4*ks,4)}, {A3 if ks else 0}'
        acc = ARE if ty == 're' else AIM
        return f'v_mfma_f32_32x32x16_bf16 {acc}, {XN.t(4*ks,4)}, {WF.t(b,4)}, {acc if ks else 0}'
    AH = 4
    first, second = [], []
    for i in range(AH):
        first += wread(i)
    nxt = PF
    vWTF = V.alloc(1, name='wtflags')
    last_xn = None
    for i in range(len(jobs)):
        tgt = first if i < nfirst else second
        if i + AH < len(jobs):
            tgt += wread(i + AH)
        if jobs[i][0] == 'w' and nxt < 32:
            tgt += xn_load(nxt); nxt += 1
            if nxt == 32:
                last_xn = i
                tgt.append(f'buffer_load_dwordx2 {ST2}, {vST2o}, {WS}, {sST2} offen sc1')
                tgt.append(f'buffer_load_dword {vWTF}, {vFLG}, {WS}, {sWTF} offen sc1')
        tgt.append(mm(i))
    first = merge(first, hf + w3prep, per=o.get('hf_per', 4), start=1)
    pre1 = [lambda k_: (I(f's_mov_b32 {sM[0]}, -1\ns_mov_b32 {sM[1]}, 0'), lazy_check(vWTF, sWTF, 0, sM))] + w2_loads
    if o.get('w3u_p1', 1):
        pre1 += w3_dma(1)
    nanch = len([t for t in first if is_anchor(t)])
    wstart = min(last_xn + o.get('wt_lag', 14), nanch - 1)
    first, rest1 = merge(first, pre1, per=o.get('pre1_per', 1), start=wstart, tail=False)
    k.emit_all(fine(first, 25, 'p1'))
    stamp('g3_done')
    ep = []
    NM2 = V.alloc(2, 2); RI2 = V.alloc(2, 2); GT = V.alloc(16, 2, 'gt'); HP2 = V.alloc(8, 4, 'h1p')

    def st2_check(k_):
        lp = k.newlabel('L_st2'); ld = k.newlabel('L_st2d')
        I(f'v_cmp_ne_u32 vcc, {ST2[1]}, {vTAGV}\ns_mov_b32 {sA}, 0\ns_cbranch_vccnz {lp}')
        k.label(ld)
        k.tail.append(f'{lp}:\n  buffer_load_dwordx2 {ST2}, {vST2o}, {WS}, {sST2} offen sc1\n  s_waitcnt vmcnt(0)\n  v_cmp_ne_u32 vcc, {ST2[1]}, {vTAGV}\n  s_add_u32 {sA}, {sA}, 1\n  s_cmp_gt_u32 {sA}, {SPIN}\n  s_cbranch_scc1 {ld}\n  s_cbranch_vccnz {lp}\n  s_branch {ld}')
    ep.append(st2_check)
    ep += [f'v_lshlrev_b32 {NM2[0]}, 16, {ST2[0]}', f'v_and_b32 {RI2[0]}, {vMASK}, {ST2[0]}', f'v_xor_b32 {NM2[0]}, 0x80000000, {NM2[0]}', f'v_rcp_f32 {RI2[0]}, {RI2[0]}']
    for i in range(8): ep.append(f'v_pk_fma_f32 {A3.t(2*i,2)}, {CS1.t(2*i,2)}, {NM2}, {A3.t(2*i,2)} op_sel_hi:[1,0,1]')
    for i in range(8): ep.append(f'v_pk_mul_f32 {A3.t(2*i,2)}, {A3.t(2*i,2)}, {RI2} op_sel_hi:[1,0]')
    for i in range(8): ep.append(f'v_cvt_pk_bf16_f32 {HP2[i]}, {A3[2*i]}, {A3[2*i+1]}')
    ep += unpack(A3, HP2)
    ep += gelu_pairs(A3, 8, GT, [HP2[i] for i in range(8)])
    ep.append(lambda k_: stores([f'buffer_store_dwordx4 {HP2.t(0,4)}, {vH1o}, {WS}, {sH1} offen', f'buffer_store_dwordx4 {HP2.t(4,4)}, {vH1o}, {WS}, {sH1} offen offset:1024']))
    second, rest1 = merge(second, rest1, per=o.get('pre1_per', 1), tail=False) if not o.get('pre1_late') else (second, rest1)
    k.emit_all(merge(second, ep, every=1, per=o.get('ep_per', 5)))
    stamp('h1_st')

    V.release(A3, CS1, NM2, RI2, GT, ST2, vST2o, vH1o, vW1r, vBr, hz, HA, HNM, HRI, vWTF); A.release(XN, WF)
    S.release(sST2, sH1, sXN, sDEL)

    class V2:
        def __init__(s, a, b): s.r = (a, b)
        def __getitem__(s, i): return s.r[i]
    G = V.alloc(2, 2, 'g')
    I(f'v_mov_b32 {G[0]}, {ARE[0]}\nv_mov_b32 {G[1]}, {AIM[0]}')
    gt = V.alloc(4, 2)
    cur, oth = G, gt.sub(0, 2)
    for r in range(1, 16):
        I(f'v_fma_f32 {oth[0]}, {LAM[0]}, {cur[0]}, {ARE[r]}\nv_fma_f32 {oth[1]}, {LAM[0]}, {cur[1]}, {AIM[r]}')
        I(f'v_fma_f32 {oth[0]}, -{LAM[1]}, {cur[1]}, {oth[0]}\nv_fma_f32 {oth[1]}, {LAM[1]}, {cur[0]}, {oth[1]}')
        cur, oth = oth, cur
    I(f's_lshl_b32 {sA}, {sW}, 9\ns_add_u32 {sA}, {sA}, {L_SEG}\nv_lshl_add_u32 {vt0}, {vL}, 3, {sA}')
    I(f'ds_write_b64 {vt0}, {cur.t(0,2)}')
    publish(1)
    V.release(HP2)
    stamp('h1_pub')
    k.emit_all(rest1)
    k.barrier()
    E = V.alloc(16, 4, 'segs')
    I(f'v_lshlrev_b32 {vt0}, 3, {vL31}\nv_add_u32 {vt0}, {L_SEG}, {vt0}')
    for s in range(8):
        I(f'ds_read_b64 {E.t(2*s,2)}, {vt0} offset:{s*256}')
    CIN = V.alloc(2, 2, 'cin'); P = gt.sub(0, 2); Qq = gt.sub(2, 2)
    I(f's_lshl_b32 {sA}, {sW}, 1\nv_add_u32 {vt0}, {sA}, {vH}')
    I(f'v_mov_b32 {CIN[0]}, 0\nv_mov_b32 {CIN[1]}, 0\nv_mov_b32 {P[0]}, {E[0]}\nv_mov_b32 {P[1]}, {E[1]}')
    for s in range(1, 8):
        I(f'v_cmp_eq_u32 vcc, {s}, {vt0}')
        I(f'v_fma_f32 {Qq[0]}, {L16[0]}, {P[0]}, {E[2*s]}\nv_fma_f32 {Qq[1]}, {L16[0]}, {P[1]}, {E[2*s+1]}')
        I(f'v_cndmask_b32 {CIN[0]}, {CIN[0]}, {P[0]}, vcc\nv_cndmask_b32 {CIN[1]}, {CIN[1]}, {P[1]}, vcc')
        I(f'v_fma_f32 {Qq[0]}, -{L16[1]}, {P[1]}, {Qq[0]}\nv_fma_f32 {Qq[1]}, {L16[1]}, {P[0]}, {Qq[1]}')
        P, Qq = Qq, P
    I(f'v_mov_b32 {E[0]}, {P[0]}\nv_mov_b32 {E[1]}, {vTAGV}\nv_mov_b32 {E[2]}, {P[1]}\nv_mov_b32 {E[3]}, {vTAGV}')
    sSC = S.alloc(1, name='scanbase')
    I(f's_lshl_b32 {sSC}, {sJ}, 9\ns_add_u32 {sSC}, {sSC}, {O_SCAN}\ns_lshl_b32 {sA}, {sT}, 13\ns_add_u32 {sA}, {sA}, {sSC}\nv_lshlrev_b32 {vt0}, 4, {vL31}')
    I(f's_cmp_eq_u32 {sW}, 0\ns_cselect_b64 exec, 0xffffffff, 1')
    if o.get('et_late'):
        pass
    I(f'buffer_store_dwordx4 {E.t(0,4)}, {vt0}, {WS}, {sA} offen sc0 sc1')
    I('s_mov_b64 exec, -1')
    V.release(E, G, gt, L16)
    stamp('scan1')

    sSTG = S.alloc(1, name='stgbase')
    I(f's_mul_i32 {sSTG}, {sW}, {STGW}\ns_add_u32 {sSTG}, {sSTG}, {L_STG}')
    for i in range(1, 4):
        I(f's_xor_b32 {sA}, {sW}, {i}\ns_mul_i32 {sA}, {sA}, {STGW}\ns_add_u32 {sA}, {sA}, {L_STG + (i-1)*4096}\nv_add_u32 {vREDw[i-1]}, {sA}, {vL16}')
    I(f'v_add_u32 {vREDr}, {sSTG}, {vL16}')

    def reduce4(ACC, mid=None):
        k.barrier()
        for i in range(1, 4):
            for q in range(4):
                I(f'ds_write_b128 {vREDw[i-1]}, {ACC[i].t(4*q,4)} offset:{q*1024}')
        if mid:
            mid()
        k.barrier()
        for i in range(3):
            for q in range(4):
                I(f'ds_read_b128 {ACC[i+1].t(4*q,4)}, {vREDr} offset:{i*4096+q*1024}')
        for i in range(3):
            for q in range(8):
                I(f'v_pk_add_f32 {ACC[0].t(2*q,2)}, {ACC[0].t(2*q,2)}, {ACC[i+1].t(2*q,2)}')

    def act_base(dst0, dst1, off, kpt, k0mul):
        for ti, d in ((0, dst0), (1, dst1)):
            I(f's_xor_b32 {sA}, {sT32}, {ti}\ns_lshl_b32 {sB}, {sTH}, 1\ns_add_u32 {sA}, {sA}, {sB}\ns_mul_i32 {sA}, {sA}, {kpt}\ns_mul_i32 {sB}, {sW}, {k0mul}\ns_add_u32 {sA}, {sA}, {sB}\ns_lshl_b32 {sA}, {sA}, 10\ns_add_u32 {sA}, {sA}, {sTB}\ns_add_u32 {d}, {sA}, {off}')

    sB0 = S.alloc(1); sB1 = S.alloc(1)

    def act_load(name, ks, ti, sb0, sb1):
        def f(k_):
            q = Q.take((name, ks, ti))
            sb = sb0 if ti == 0 else sb1
            if ks < 4:
                I(f'buffer_load_dwordx4 {q}, {vL16}, {WS}, {sb} offen offset:{ks*1024} sc1')
            else:
                I(f's_add_u32 {sD}, {sb}, {(ks//4)*4096}\nbuffer_load_dwordx4 {q}, {vL16}, {WS}, {sD} offen offset:{(ks%4)*1024} sc1')
        return f

    def gemm64(ACC, wname, aname, klist, first=True):
        L = []
        for n, ks in enumerate(klist):
            for ti in range(2):
                for ni in range(2):
                    def f(k_, ks=ks, ti=ti, ni=ni, n=n):
                        acc = ACC[2*ti+ni]
                        I(f'v_mfma_f32_32x32x16_bf16 {acc}, {Q[(wname, ks, ni)]}, {Q[(aname, ks, ti)]}, {acc if (n or not first) else 0}')
                        if ni == 1:
                            Q.give((aname, ks, ti))
                        if ti == 1:
                            Q.give((wname, ks, ni))
                    L.append(Anchor(f))
        return L

    vW3r = V.alloc(4, 1, 'w3rd')
    for rd in range(2):
        I(f'v_bfe_u32 {vt0}, {vL}, 2, 2\nv_add_u32 {vt0}, {4*rd}, {vt0}\nv_bfe_u32 {vt1}, {vL}, 4, 1\nv_lshlrev_b32 {vt1}, 2, {vt1}\nv_xor_b32 {vt0}, {vt0}, {vt1}\nv_lshlrev_b32 {vt0}, 5, {vt0}\nv_and_b32 {vt1}, 3, {vL}\nv_lshl_add_u32 {vt0}, {vt1}, 3, {vt0}\nv_lshrrev_b32 {vt1}, 4, {vL}\nv_mul_u32_u24 {vt1}, 1792, {vt1}\nv_add_u32 {vW3r[rd]}, {vt0}, {vt1}')
        I(f'v_add_u32 {vW3r[2+rd]}, {L_UP}, {vW3r[rd]}')
    CS3a = V.at(96, 16, 'cs3a'); CS3b = V.at(160, 12, 'cs3b')
    cs3 = lambda t: CS3a.sub(4*t, 4) if t < 4 else CS3b.sub(4*(t-4), 4)

    QA0 = A.at(0, 128, 'qa0'); QA3 = A.at(192, 64, 'qa3')
    Q.add(QA0.sub(0, 64))
    act_base(sB0, sB1, O_H1, 32, 8)
    I(f's_lshl_b32 {sA}, {sW}, 4\ns_lshl_b64 {sM}, 0xffff, {sA}')
    sOWN = S.alloc(1, name='ownfrag')
    I(f's_lshl_b32 {sA}, {sTH}, 1\ns_add_u32 {sA}, {sA}, {sT32}\ns_lshl_b32 {sA}, {sA}, 5\ns_lshl_b32 {sB}, {sCG}, 2\ns_add_u32 {sA}, {sA}, {sB}\ns_lshl_b32 {sB}, {sN32}, 1\ns_add_u32 {sA}, {sA}, {sB}\ns_lshl_b32 {sA}, {sA}, 10\ns_add_u32 {sOWN}, {sA}, {sTB}')
    poll(1, sM)
    stamp('h1_seen')
    ACC = [V.at(64, 16), V.at(80, 16), V.at(112, 16), V.at(136, 16)]
    for ks in range(8):
        for ti in range(2):
            act_load('h1', ks, ti, sB0, sB1)(k)
    I(f'buffer_load_dwordx4 {XNT.t(0,4)}, {vL16}, {WS}, {sOWN} offen sc1\nbuffer_load_dwordx4 {XNT.t(4,4)}, {vL16}, {WS}, {sOWN} offen offset:1024 sc1')
    if not o.get('w3u_p1', 1):
        k.emit_all(w3_dma(1))
    k.emit_all(w3_dma(0))
    V.release(vW3o); S.release(sW3s, sW3d)
    k.emit_all(gemm64(ACC, 'w2', 'h1', list(range(8))))
    stamp('g4_mfma')
    EG = V.at(208, 32, 'eg'); vEGo = V.alloc(1)
    I(f's_sub_u32 {sA}, {sT}, 1\nv_sub_u32 {vt0}, {sA}, {vH}\nv_lshlrev_b32 {vt0}, 13, {vt0}\nv_lshl_add_u32 {vEGo}, {vL31}, 4, {vt0}')

    def eg_loads(k_=None):
        for i in range(8):
            I(f'v_subrev_u32 {vt1}, {i*16384}, {vEGo}\nbuffer_load_dwordx4 {EG.t(4*i,4)}, {vt1}, {WS}, {sSC} offen sc1')
    reduce4(ACC, mid=eg_loads)
    a0 = ACC[0]; f1 = ACC[1]; tq = ACC[2].sub(0, 8); SQ = ACC[2].sub(8, 2)
    for i in range(8): I(f'v_cvt_pk_bf16_f32 {X1P[i]}, {a0[2*i]}, {a0[2*i+1]}')
    k.emit_all(unpack(a0, X1P)); k.emit_all(unpack(f1, XNT))
    for i in range(8): I(f'v_pk_add_f32 {a0.t(2*i,2)}, {a0.t(2*i,2)}, {f1.t(2*i,2)}')
    for i in range(8): I(f'v_cvt_pk_bf16_f32 {X1P[i]}, {a0[2*i]}, {a0[2*i+1]}')
    I(f's_add_u32 {sC}, {sOWN}, {O_X1}')
    stores([f'buffer_store_dwordx4 {X1P.t(0,4)}, {vL16}, {WS}, {sC} offen', f'buffer_store_dwordx4 {X1P.t(4,4)}, {vL16}, {WS}, {sC} offen offset:1024'])
    k.emit_all(unpack(a0, X1P))
    k.emit_all(sums(a0, SQ, tq)); k.emit_all(xswap(SQ, tq, 32))
    I(f's_lshl_b32 {sA}, {sTH}, 1\ns_add_u32 {sA}, {sA}, {sT32}\ns_lshl_b32 {sA}, {sA}, 12\ns_lshl_b32 {sB}, {sCG}, 9\ns_add_u32 {sA}, {sA}, {sB}\ns_lshl_b32 {sB}, {sN32}, 8\ns_add_u32 {sA}, {sA}, {sB}\ns_add_u32 {sA}, {sA}, {sTB}\ns_add_u32 {sA}, {sA}, {O_ST3}')
    I(f'v_and_b32 {vt0}, 15, {vL}\nv_lshlrev_b32 {vt0}, 4, {vt0}\nv_bfe_u32 {vt1}, {vL}, 4, 1\nv_lshl_add_u32 {vt0}, {vt1}, 3, {vt0}')
    I('s_mov_b64 exec, 0xffffffff')
    stores([f'buffer_store_dwordx2 {SQ}, {vt0}, {WS}, {sA} offen'])
    I('s_mov_b64 exec, -1')
    stamp('x1_st')

    vEX = V.alloc(1); C0 = V.alloc(2, 2); C1 = V.alloc(2, 2)

    def eg_check(lines):
        lines.append(f'v_mov_b32 {vt0}, 0')
        for i in range(8):
            lines.append(f'v_cmp_le_i32 vcc, {i*16384}, {vEGo}\nv_xor_b32 {vt2}, {EG[4*i+1]}, {EG[4*i+3]}\nv_cndmask_b32 {vEX}, 0, {vTAGV}, vcc\nv_xor_b32 {vt1}, {EG[4*i+1]}, {vEX}\nv_or3_b32 {vt0}, {vt0}, {vt1}, {vt2}')
        lines.append(f'v_cmp_ne_u32 vcc, 0, {vt0}')
    L = []; eg_check(L); k.emit_all(L)
    I(f's_mov_b32 {sD}, 0\ns_cbranch_vccnz L_egslow')
    k.label('L_egok')
    sub = Asm(); subI = sub.I
    for i in range(8):
        subI(f'v_subrev_u32 {vt1}, {i*16384}, {vEGo}\nbuffer_load_dwordx4 {EG.t(4*i,4)}, {vt1}, {WS}, {sSC} offen sc1')
    sub.waitcnt(vm=0)
    L = []; eg_check(L); sub.emit_all(L)
    subI(f's_add_u32 {sD}, {sD}, 1\ns_cmp_gt_u32 {sD}, {SPIN}\ns_cbranch_scc1 L_egok\ns_cbranch_vccnz L_egslow\ns_branch L_egok')
    k.tail += ['L_egslow:'] + sub.lines
    publish(2)
    stamp('x1_pub')
    for a in ACC: V.release(a)
    Q.add(QA0.sub(64, 64)); Q.add(QA3)
    npc = o.get('npc', 32)
    k.emit_all(c_loads[:npc])
    I(f'v_mov_b32 {C0[0]}, {EG[28]}\nv_mov_b32 {C0[1]}, {EG[30]}')
    cur, oth = C0, C1
    for i in range(6, -1, -1):
        I(f'v_fma_f32 {oth[0]}, {L256[0]}, {cur[0]}, {EG[4*i]}\nv_fma_f32 {oth[1]}, {L256[0]}, {cur[1]}, {EG[4*i+2]}')
        I(f'v_fma_f32 {oth[0]}, -{L256[1]}, {cur[1]}, {oth[0]}\nv_fma_f32 {oth[1]}, {L256[1]}, {cur[0]}, {oth[1]}')
        cur, oth = oth, cur
    I(f'v_mov_b32 {oth[0]}, {cur[0]}\nv_mov_b32 {oth[1]}, {cur[1]}\nv_permlane32_swap_b32 {oth[0]}, {cur[0]}\nv_permlane32_swap_b32 {oth[1]}, {cur[1]}')
    I(f'v_fmac_f32 {oth[0]}, {L128[0]}, {cur[0]}\nv_fmac_f32 {oth[1]}, {L128[0]}, {cur[1]}\nv_fma_f32 {oth[0]}, -{L128[1]}, {cur[1]}, {oth[0]}\nv_fmac_f32 {oth[1]}, {L128[1]}, {cur[0]}')
    I(f'v_fmac_f32 {CIN[0]}, {LOWN[0]}, {oth[0]}\nv_fmac_f32 {CIN[1]}, {LOWN[0]}, {oth[1]}\nv_fma_f32 {CIN[0]}, -{LOWN[1]}, {oth[1]}, {CIN[0]}\nv_fmac_f32 {CIN[1]}, {LOWN[1]}, {oth[0]}')
    g = CIN; gt = C0
    for r in range(16):
        I(f'v_fma_f32 {gt[0]}, {LAM[0]}, {g[0]}, {ARE[r]}\nv_fma_f32 {gt[1]}, {LAM[0]}, {g[1]}, {AIM[r]}')
        I(f'v_fma_f32 {ARE[r]}, -{LAM[1]}, {g[1]}, {gt[0]}\nv_fma_f32 {AIM[r]}, {LAM[1]}, {g[0]}, {gt[1]}')
        g = V2(ARE[r], AIM[r])
    HR = EG.sub(0, 16); HI = EG.sub(16, 16); PR = ARE.sub(0, 8); PI = ARE.sub(8, 8)
    for r in range(16):
        I(f'v_mul_f32 {HR[r]}, {CF[0]}, {ARE[r]}\nv_mul_f32 {HI[r]}, -{CF[0]}, {AIM[r]}')
    for r in range(16):
        I(f'v_fma_f32 {HR[r]}, -{CF[1]}, {AIM[r]}, {HR[r]}\nv_fma_f32 {HI[r]}, -{CF[1]}, {ARE[r]}, {HI[r]}')
    for i in range(8):
        I(f'v_cvt_pk_bf16_f32 {PR[i]}, {HR[2*i]}, {HR[2*i+1]}\nv_cvt_pk_bf16_f32 {PI[i]}, {HI[2*i]}, {HI[2*i+1]}')
    TRS = 80
    I(f'v_mul_u32_u24 {vt0}, {TRS}, {vL31}\nv_lshl_add_u32 {vt0}, {vH}, 5, {vt0}\nv_add_u32 {vt0}, {sSTG}, {vt0}')
    I(f'ds_write_b128 {vt0}, {PR.t(0,4)}\nds_write_b128 {vt0}, {PR.t(4,4)} offset:16\nds_write_b128 {vt0}, {PI.t(0,4)} offset:{32*TRS}\nds_write_b128 {vt0}, {PI.t(4,4)} offset:{32*TRS+16}')
    I(f'v_bfe_u32 {vt1}, {vL}, 2, 2\nv_lshl_add_u32 {vt1}, {vH}, 3, {vt1}\nv_mul_u32_u24 {vt1}, {TRS}, {vt1}\nv_and_b32 {vt0}, 1, {vL}\nv_lshl_add_u32 {vt1}, {vt0}, 5, {vt1}\nv_bfe_u32 {vt0}, {vL}, 4, 1\nv_lshl_add_u32 {vt1}, {vt0}, 4, {vt1}\nv_bfe_u32 {vt0}, {vL}, 1, 1\nv_lshl_add_u32 {vt1}, {vt0}, 3, {vt1}\nv_add_u32 {vt1}, {sSTG}, {vt1}')
    k.waitcnt(lg=0)
    HF = EG.sub(0, 16)
    for f in range(4):
        for rd in range(2):
            I(f'ds_read_b64_tr_b16 {HF.t(4*f+2*rd,2)}, {vt1} offset:{(16*f + 4*rd)*TRS}')
    I(f's_lshl_b32 {sA}, {sW}, 6\ns_lshl_b32 {sB}, {sJ}, 2\ns_add_u32 {sA}, {sA}, {sB}\ns_lshl_b32 {sA}, {sA}, 10\ns_add_u32 {sA}, {sA}, {sTB}\ns_add_u32 {sA}, {sA}, {O_HS}')
    stores([f'buffer_store_dwordx4 {HF.t(4*f,4)}, {vL16}, {WS}, {sA} offen offset:{f*1024}' for f in range(4)], tag='sths')
    V.release(C0, C1, CIN, ARE, AIM, LAM, CF, L128, L256, LOWN, vEX, vEGo)
    S.release(sSC)
    stamp('hs_st')

    WF = V.at(112, 24, 'wf5')
    vcs = V.alloc(4, 1)
    I(f's_mul_i32 {sA}, {sW}, {2*7168}')
    for i in range(4):
        I(f'v_add_u32 {vcs[i]}, {sA}, {vW3r[i]}')
    cj = [(t, s) for s in range(4) for t in range(7)]
    for i in range(len(cj) + 3):
        if i < len(cj):
            t, s = cj[i]; b = (i % 6) * 4
            for rd in range(2):
                I(f'ds_read_b64_tr_b16 {WF.t(b+2*rd,2)}, {vcs[2*(s>>1)+rd]} offset:{(s&1)*7168 + t*256}')
        if i >= 3:
            t, s = cj[i-3]; b = ((i-3) % 6) * 4
            I(f'v_mfma_f32_16x16x32_bf16 {cs3(t)}, {WF.t(b,4)}, {ONES}, {cs3(t) if s else 0}')
    V.release(vcs, ONES)
    I(f'v_lshrrev_b32 {vt0}, 4, {vL}\nv_lshlrev_b32 {vt0}, 4, {vt0}\nv_add_u32 {vt1}, {sSTG}, {vt0}\nv_add_u32 {vt3}, {L_STG}, {vt0}')
    I('s_mov_b32 exec_lo, 0x00010001\ns_mov_b32 exec_hi, 0x00010001')
    for t in range(7):
        I(f'ds_write_b128 {vt1}, {cs3(t)} offset:{6144 + t*64}')
    I('s_mov_b64 exec, -1')
    publish(3, 'sths')
    V.release(EG)
    k.barrier()
    stamp('cs3')

    I(f's_lshl_b32 {sB}, {sN32}, 1\ns_lshl_b32 {sA}, 0x33333333, {sB}\ns_bitcmp1_b32 {sW}, 1\ns_cselect_b32 {sM[0]}, 0, {sA}\ns_cselect_b32 {sM[1]}, {sA}, 0')
    vFo = V.alloc(1, name='frag16off')
    I(f'v_lshlrev_b32 {vt0}, 10, {vH}\nv_bfe_u32 {vt1}, {vL}, 4, 1\nv_lshl_add_u32 {vt0}, {vt1}, 9, {vt0}\nv_and_b32 {vt1}, 15, {vL}\nv_lshl_add_u32 {vFo}, {vt1}, 4, {vt0}')
    I(f's_lshl_b32 {sB0}, {sW}, 15\ns_add_u32 {sB0}, {sB0}, {sTB}\ns_add_u32 {sB0}, {sB0}, {O_X1}')
    I(f's_lshl_b32 {sB1}, {sW}, 12\ns_add_u32 {sB1}, {sB1}, {sTB}\ns_add_u32 {sB1}, {sB1}, {O_ST3}')
    I(f'v_lshrrev_b32 {vt2}, 4, {vL}\nv_lshlrev_b32 {vt2}, 10, {vt2}\nv_and_b32 {vt1}, 15, {vL}\nv_lshl_add_u32 {vt2}, {vt1}, 4, {vt2}')
    poll(2, sM)
    stamp('x1_seen')
    A5a = V.at(64, 32, 'acc5a'); A5b = V.at(136, 24, 'acc5b')
    a5 = lambda t: A5a.sub(8*t, 8) if t < 4 else A5b.sub(8*(t-4), 8)
    GT = V.at(172, 16, 'gt5'); OP = V.at(188, 8, 'hout'); NM3 = V.at(196, 4, 'nm3'); RI3 = V.at(200, 4, 'ri3')
    SP = GT
    for i in range(4):
        I(f'buffer_load_dwordx4 {SP.t(4*i,4)}, {vt2}, {WS}, {sB1} offen offset:{i*256} sc1')

    def xa_load(s):
        def f(k_):
            for u in range(2):
                q = Q.take(('xa', s, u))
                if s < 2:
                    I(f'buffer_load_dwordx4 {q}, {vFo}, {WS}, {sB0} offen offset:{(s%2)*2048 + u*256} sc1')
                else:
                    I(f's_add_u32 {sD}, {sB0}, {(s//2)*4096}\nbuffer_load_dwordx4 {q}, {vFo}, {WS}, {sD} offen offset:{(s%2)*2048 + u*256} sc1')
        return f
    PF5 = o.get('pf5', 6)
    for s in range(PF5):
        xa_load(s)(k)
    ctmp = V.at(208, 28, 'ctmp')
    for w in range(4):
        for t in range(7):
            I(f'ds_read_b128 {cs3(t) if w == 0 else ctmp.t(4*t,4)}, {vt3} offset:{w*STGW + 6144 + t*64}')
        if w:
            for t in range(7):
                for q in range(2):
                    I(f'v_pk_add_f32 {cs3(t).t(2*q,2)}, {cs3(t).t(2*q,2)}, {ctmp.t(4*t+2*q,2)}')
    V.release(ctmp)
    QV = V.at(208, 48, 'qv'); Q.add(QV)
    tq = OP
    st5 = [f'v_pk_add_f32 {SP.t(0,2)}, {SP.t(0,2)}, {SP.t(4,2)}', f'v_pk_add_f32 {SP.t(2,2)}, {SP.t(2,2)}, {SP.t(6,2)}', f'v_pk_add_f32 {SP.t(8,2)}, {SP.t(8,2)}, {SP.t(12,2)}', f'v_pk_add_f32 {SP.t(10,2)}, {SP.t(10,2)}, {SP.t(14,2)}',
           f'v_pk_add_f32 {SP.t(0,2)}, {SP.t(0,2)}, {SP.t(8,2)}', f'v_pk_add_f32 {SP.t(2,2)}, {SP.t(2,2)}, {SP.t(10,2)}']
    st5 += xswap(SP.sub(0, 4), tq, 16) + xswap(SP.sub(0, 4), tq, 32)
    st5 += zipl(finish_stats(SP.sub(0, 2), NM3[0], RI3[0], None, tq.sub(0, 2)), finish_stats(SP.sub(2, 2), NM3[2], RI3[2], None, tq.sub(2, 2)))

    def w3read(dst, tile, s):
        hi = 2 if s >= 8 else 0
        off = (s % 8) * 7168 + tile * 256
        return [f'ds_read_b64_tr_b16 {dst.t(2*rd,2)}, {vW3r[hi+rd]} offset:{off}' for rd in range(2)]
    j5 = [(t, s) for s in range(16) for t in range(4)] + [(t, s) for s in range(16) for t in (4, 5, 6)]
    AH = 4
    pass1, pass2 = [], []
    for i in range(AH):
        pass1 += w3read(WF.sub((i % 6) * 4, 4), *j5[i])
    nxt = PF5
    for i, (t, s) in enumerate(j5):
        tgt = pass1 if i < 64 else pass2
        if i + AH < len(j5):
            tgt += w3read(WF.sub(((i + AH) % 6) * 4, 4), *j5[i + AH])
        if t == 0 and nxt < 16:
            tgt.append(xa_load(nxt)); nxt += 1
        for u in range(2):
            def f(k_, i=i, t=t, s=s, u=u):
                acc = a5(t).t(4*u, 4)
                I(f'v_mfma_f32_16x16x32_bf16 {acc}, {WF.t((i % 6)*4, 4)}, {Q[("xa", s, u)]}, {acc if s else 0}')
                if t == 6:
                    Q.give(('xa', s, u))
            tgt.append(Anchor(f))
    sH = S.alloc(1, name='hbase')
    I(f's_mul_i32 {sH}, {sW}, 112\ns_mul_i32 {sA}, {sJ}, 7\ns_add_u32 {sH}, {sH}, {sA}\ns_lshl_b32 {sH}, {sH}, 10\ns_add_u32 {sH}, {sH}, {sTB}\ns_add_u32 {sH}, {sH}, {O_H}')

    def ep5(tiles):
        L = []
        for t in tiles:
            for u in range(2):
                for q in range(2):
                    r = a5(t).t(4*u+2*q, 2)
                    L.append(f'v_pk_fma_f32 {r}, {cs3(t).t(2*q,2)}, {NM3.t(2*u,2)}, {r} op_sel_hi:[1,0,1]')
        for t in tiles:
            for u in range(2):
                for q in range(2):
                    r = a5(t).t(4*u+2*q, 2)
                    L.append(f'v_pk_mul_f32 {r}, {r}, {RI3.t(2*u,2)} op_sel_hi:[1,0]')
        base = a5(tiles[0])
        Z = Reg('v', base.b, 8 * len(tiles))
        n = Z.n // 2
        for i in range(n): L.append(f'v_cvt_pk_bf16_f32 {GT[i]}, {Z[2*i]}, {Z[2*i+1]}')
        L += unpack(Z, GT.sub(0, n))
        if len(tiles) == 2:
            outs = [OP[4*u + 2*ti + q] for ti in range(2) for u in range(2) for q in range(2)]
        else:
            outs = [OP[2*u + q] for u in range(2) for q in range(2)]
        L += gelu_pairs(Z, n, GT, outs)
        return L

    def st5pair(P_):
        return lambda k_: (I(f's_add_u32 {sC}, {sH}, {P_*2048}'), stores([f'buffer_store_dwordx4 {OP.t(4*u,4)}, {vFo}, {WS}, {sC} offen offset:{u*256}' for u in range(2)], tag='sth'))
    epA = ep5([0, 1]) + [st5pair(0)] + ep5([2, 3]) + [st5pair(1)]
    epB = ep5([4, 5]) + [st5pair(2)] + ep5([6])
    epB += [f'v_lshlrev_b32 {vt0}, 9, {vH}', f'v_and_b32 {vt1}, 15, {vL}', f'v_lshl_add_u32 {vt0}, {vt1}, 4, {vt0}', f'v_bfe_u32 {vt1}, {vL}, 4, 1', f'v_lshl_add_u32 {vt0}, {vt1}, 3, {vt0}']
    epB += [lambda k_: (I(f's_add_u32 {sC}, {sH}, 6144'), stores([f'buffer_store_dwordx2 {OP.t(2*u,2)}, {vt0}, {WS}, {sC} offen offset:{u*256}' for u in range(2)], tag='sth'))]
    pass1 = merge(pass1, st5, per=1, start=4)
    pre5 = c_loads[npc:] + w4_loads[:12]
    pass1 = merge(pass1, pre5, per=o.get('pre5_per', 0.5), start=o.get('pre5_start', 90))
    k.emit_all(fine(pass1, 32, 'g5a'))
    stamp('g5_p1')
    sHS0 = S.alloc(1); sHS1 = S.alloc(1); sM2 = S.alloc(2, 2); vHSF = V.alloc(1)
    I(f's_lshl_b32 {sB}, {sTH}, 1\ns_lshl_b32 {sA}, 0x3333, {sB}\ns_lshl_b32 {sC}, {sW}, 4\ns_mov_b32 {sM2[0]}, {sA}\ns_mov_b32 {sM2[1]}, 0\ns_lshl_b64 {sM2}, {sM2}, {sC}')
    act_base(sHS0, sHS1, O_HS, 64, 16)
    I(f'buffer_load_dword {vHSF}, {vFLG}, {WS}, {sFL} offen offset:{3*256} sc1')
    hs_loads = [act_load('hs', kc, ti, sHS0, sHS1) for kc in range(16) for ti in range(2)]
    pass2 = merge(pass2, [lambda k_: lazy_check(vHSF, sFL, 3*256, sM2)] + hs_loads, every=3, per=1, start=3)
    pass2 = merge(pass2, epA, per=o.get('epa_per', 2.2), start=3)
    k.emit_all(fine(pass2, 32, 'g5b'))
    publish(4, 'sth')
    stamp('g5_p2')
    V.release(WF, vW3r, A5a, CS3a, vHSF)

    ACC2 = [V.at(64, 16), V.at(80, 16), V.at(96, 16), V.at(112, 16)]
    XT = V.alloc(8, 4, 'xtile'); DS = V.alloc(8, 4, 'dskip')
    sROW = S.alloc(1, name='tilerow'); sCOL = S.alloc(1, name='tilecol')
    I(f's_lshl_b32 {sROW}, {sT}, 7\ns_lshl_b32 {sA}, {sTH}, 6\ns_add_u32 {sROW}, {sROW}, {sA}\ns_lshl_b32 {sA}, {sT32}, 5\ns_add_u32 {sROW}, {sROW}, {sA}')
    I(f's_lshl_b32 {sCOL}, {sCG}, 6\ns_lshl_b32 {sA}, {sN32}, 5\ns_add_u32 {sCOL}, {sCOL}, {sA}')
    g2 = gemm64(ACC2, 'c', 'hs', list(range(16)))
    g2 = merge(g2, epB + [lambda k_: publish(5, 'sth')], per=o.get('epb_per', 4), start=0)
    nw4 = o.get('w4_g2_start', 24)
    g2, w4rest = merge(g2, w4_loads[12:], per=1, start=nw4, tail=False)
    k.emit_all(fine(g2, 16, 'g2'))
    stamp('g2_mfma')
    V.release(A5b, CS3b, GT, OP, NM3, RI3, vFo)
    S.release(sH, sHS0, sHS1)
    k.emit_all(w4rest)
    I(f'v_lshlrev_b32 {vt0}, 10, {vTAU}\nv_lshl_add_u32 {vt0}, {vH}, 4, {vt0}')
    I(f's_lshl_b32 {sA}, {sROW}, 10\ns_lshl_b32 {sB}, {sCOL}, 1\ns_add_u32 {sA}, {sA}, {sB}')
    I(f'buffer_load_dwordx4 {XT.t(0,4)}, {vt0}, {SRD["X"]}, {sA} offen\nbuffer_load_dwordx4 {XT.t(4,4)}, {vt0}, {SRD["X"]}, {sA} offen offset:32')
    I(f'v_lshlrev_b32 {vt1}, 4, {vH}')
    I(f'buffer_load_dwordx4 {DS.t(0,4)}, {vt1}, {SRD["DSK"]}, {sB} offen\nbuffer_load_dwordx4 {DS.t(4,4)}, {vt1}, {SRD["DSK"]}, {sB} offen offset:32')
    act_base(sB0, sB1, O_H, 112, 28)
    QV2 = V.at(144, 64, 'qv2'); Q.add(QV2)
    h_loads = [act_load('h', ks, ti, sB0, sB1) for ks in G6K for ti in range(2)]
    poll(4, sM2)
    stamp('ha_seen')
    nh0 = min(len(Q.free), 32)
    k.emit_all(h_loads[:nh0])
    reduce4(ACC2)
    I(f's_cmp_lg_u32 s2, 255\ns_cbranch_scc1 L_noep\ns_cmp_lg_u32 {sW}, 0\ns_cbranch_scc1 L_noep\ns_mov_b32 {sA}, {O_EPOCH}\ns_mov_b64 exec, 1')
    k.raw(f'  buffer_store_dword {vTAGV}, {vZERO}, {WS}, {sA} offen sc0 sc1\n  s_waitcnt vmcnt(0)\n  s_mov_b64 exec, -1')
    k.label('L_noep')
    SS = ACC2[0]
    f1 = ACC2[1]; f2 = ACC2[2]; pp = ACC2[3].sub(0, 8)
    k.emit_all(unpack(f1, XNT)); k.emit_all(unpack(f2, DS))
    for i in range(8): I(f'v_pk_mul_f32 {f1.t(2*i,2)}, {f1.t(2*i,2)}, {f2.t(2*i,2)}')
    for i in range(8): I(f'v_cvt_pk_bf16_f32 {pp[i]}, {f1[2*i]}, {f1[2*i+1]}')
    k.emit_all(unpack(f1, pp))
    for i in range(8): I(f'v_pk_add_f32 {SS.t(2*i,2)}, {SS.t(2*i,2)}, {f1.t(2*i,2)}')
    V.release(DS, XNT)
    stamp('g2')

    A6x = V.at(128, 16, 'acc6x')
    ACC6 = [ACC2[1], ACC2[2], ACC2[3], A6x]
    g6 = gemm64(ACC6, 'w4', 'h', G6K)
    assert nh0 <= 32
    vHBF = V.alloc(1)
    rest = h_loads[nh0:32] + [f'buffer_load_dword {vHBF}, {vFLG}, {WS}, {sFL} offen offset:{5*256} sc1', lambda k_: lazy_check(vHBF, sFL, 5*256, sM2)] + h_loads[32:]
    g6 = merge(g6, rest, every=2, per=o.get('h_per', 1.5), start=2)
    k.emit_all(fine(g6, 32, 'g6'))
    stamp('g6_mfma')
    reduce4(ACC6)
    a0 = ACC6[0]; f1 = ACC6[1]; e_ = ACC6[2]; pp = ACC6[3].sub(0, 8); NL = ACC6[3].sub(8, 2)
    I(f'v_mov_b32 {NL[0]}, {hx(-LOG2E)}')
    for i in range(8): I(f'v_cvt_pk_bf16_f32 {pp[i]}, {a0[2*i]}, {a0[2*i+1]}')
    k.emit_all(unpack(a0, pp)); k.emit_all(unpack(f1, X1P))
    for i in range(8): I(f'v_pk_add_f32 {a0.t(2*i,2)}, {a0.t(2*i,2)}, {f1.t(2*i,2)}')
    for i in range(8): I(f'v_cvt_pk_bf16_f32 {pp[i]}, {a0[2*i]}, {a0[2*i+1]}')
    k.emit_all(unpack(a0, pp))
    for i in range(8): I(f'v_pk_mul_f32 {e_.t(2*i,2)}, {a0.t(2*i,2)}, {NL} op_sel_hi:[1,0]')
    for i in range(16): I(f'v_exp_f32 {e_[i]}, {e_[i]}')
    for i in range(8): I(f'v_pk_add_f32 {e_.t(2*i,2)}, {e_.t(2*i,2)}, {gONE} op_sel_hi:[1,0]')
    for i in range(16): I(f'v_rcp_f32 {e_[i]}, {e_[i]}')
    for i in range(8): I(f'v_pk_mul_f32 {a0.t(2*i,2)}, {a0.t(2*i,2)}, {e_.t(2*i,2)}')
    for i in range(8): I(f'v_cvt_pk_bf16_f32 {pp[i]}, {a0[2*i]}, {a0[2*i+1]}')
    k.emit_all(unpack(a0, pp)); k.emit_all(unpack(f1, XT))
    for i in range(8): I(f'v_pk_fma_f32 {a0.t(2*i,2)}, {a0.t(2*i,2)}, {SS.t(2*i,2)}, {f1.t(2*i,2)}')
    I(f'v_lshlrev_b32 {vt0}, 11, {vTAU}\nv_lshl_add_u32 {vt0}, {vH}, 5, {vt0}\ns_lshl_b32 {sA}, {sROW}, 11\ns_lshl_b32 {sB}, {sCOL}, 2\ns_add_u32 {sA}, {sA}, {sB}')
    for q in range(4):
        I(f'buffer_store_dwordx4 {a0.t(4*q,4)}, {vt0}, {SRD["OUT"]}, {sA} offen offset:{(q>>1)*64 + (q&1)*16}')
    stamp('end')
    if o['stamps']:
        stamp_flush()
        I(f's_lshl_b32 {sA}, s2, 2\ns_add_u32 {sA}, {sA}, {sW}\ns_lshl_b32 {sA}, {sA}, 8\ns_add_u32 {sA}, {sA}, {O_DBG}')
        I(f'buffer_store_dword {c.vSTP}, {vFLG}, {WS}, {sA} offen')
        if o.get('dbg') is not None:
            sel = o.get('dbgsel') or ['stubs', 'x_in', 'xn_pub', 'xn_seen', 'p1_start', 'h1_pub', 'h1_seen', 'x1_pub', 'x1_seen', 'g5_p2', 'g2_mfma', 'ha_seen', 'g6_mfma', 'end']
            R2 = S.alloc(2, 2); DP = S.alloc(2, 2)
            I(f's_cmp_lg_u32 s2, {o["dbg"]}\ns_cbranch_scc1 L_end\ns_cmp_lg_u32 {sW}, 0\ns_cbranch_scc1 L_end')
            I(f's_memrealtime {R2}\ns_load_dwordx2 {DP}, s[0:1], 120\nv_mov_b32 {vt0}, 0\nv_readlane_b32 {sB}, {c.vSTP}, 0')
            for j, n in enumerate(sel):
                I(f'v_readlane_b32 {sA}, {c.vSTP}, {k.stampnames.index(n)}\ns_sub_u32 {sA}, {sA}, {sB}\nv_writelane_b32 {vt0}, {sA}, {j}')
            I(f's_sub_u32 {sA}, {R2[0]}, {c.RT[0]}\nv_writelane_b32 {vt0}, {sA}, 14\nv_writelane_b32 {vt0}, {sSLOW}, 15')
            I(f'global_store_dword {vFLG}, {vt0}, {DP}')
    k.label('L_end')
    k.raw('  s_endpgm')
    return k.lines + k.tail, k


from gen import layout

if __name__ == '__main__':
    import json
    opts = json.loads(sys.argv[2]) if len(sys.argv) > 2 else {}
    body, k = gen(opts)
    txt, size = layout(body, k)
    open(sys.argv[1], 'w').write(txt)
    print('code bytes', size, 'vpeak', k.V.peak, 'apeak', k.A.peak, 'speak', k.S.peak, k.stat)
    open(sys.argv[1] + '.names', 'w').write(','.join(k.stampnames))
```

```python
import re

TRANS = ('v_exp_f32', 'v_log_f32', 'v_rcp_f32', 'v_rsq_f32', 'v_sqrt_f32', 'v_sin_f32', 'v_cos_f32', 'v_rcp_iflag_f32')
REG_RE = re.compile(r'(?<![\w.])(-?\|?|abs\()?([vas])(?:(\d+)|\[(\d+):(\d+)\])(?![\w])')


def regs_of(op):
    op = op.strip()
    out = []
    if op in ('vcc',):
        return [('s', 106), ('s', 107)]
    if op == 'vcc_lo':
        return [('s', 106)]
    if op == 'vcc_hi':
        return [('s', 107)]
    if op == 'exec':
        return [('x', 0)]
    if op == 'm0':
        return [('m', 0)]
    for m in REG_RE.finditer(op):
        k = m.group(2)
        if m.group(3) is not None:
            out.append((k, int(m.group(3))))
        else:
            out += [(k, i) for i in range(int(m.group(4)), int(m.group(5)) + 1)]
    return out


def split_ops(s):
    ops, depth, cur = [], 0, ''
    for ch in s:
        if ch in '[(':
            depth += 1
        if ch in '])':
            depth -= 1
        if ch == ',' and depth == 0:
            ops.append(cur.strip()); cur = ''
        else:
            cur += ch
    if cur.strip():
        ops.append(cur.strip())
    return ops


class Ins:
    __slots__ = ('text', 'op', 'cls', 'dst', 'src', 'srcc', 'passes', 'wide', 'lds', 'tag', 'dpp', 'dotc')


def parse(text):
    t = text.strip()
    tag = None
    if '#' in t:
        t, tag = t.split('#', 1)
        t = t.strip(); tag = tag.strip()
    sp = t.split(None, 1)
    op = sp[0]
    rest = sp[1] if len(sp) > 1 else ''
    ops = split_ops(rest)
    mods = ''
    if ops:
        last = ops[-1]
        depth = 0; cut = None
        for i, ch in enumerate(last):
            if ch in '[(':
                depth += 1
            if ch in '])':
                depth -= 1
            if ch == ' ' and depth == 0:
                cut = i; break
        if cut is not None:
            mods = last[cut:]; ops[-1] = last[:cut]
    I = Ins(); I.text = t; I.op = op; I.tag = tag; I.srcc = []; I.passes = 0; I.wide = False; I.lds = False
    I.dpp = ('row_' in mods or 'quad_perm' in mods or 'wave_' in mods)
    R = [regs_of(o) for o in ops]
    I.dotc = []
    if op.startswith('v_dot'):
        ab = R[1] + R[2]
        I.dotc = [r for r in (R[3] if len(R) > 3 else R[0]) + R[0] if r not in ab]
    flat = lambda L: [r for x in L for r in x]
    base = op.replace('_e32', '').replace('_e64', '').replace('_dpp', '')
    if base.startswith('v_mfma'):
        I.cls = 'mfma'; I.dst = R[0]; I.src = R[1] + R[2]; I.srcc = R[3]
        I.passes = 8 if '32x32' in base else 4
    elif base.startswith('v_'):
        I.cls = 'trans' if base in TRANS else 'valu'
        if base.startswith('v_permlane') and 'swap' in base:
            I.cls = 'perm'; I.dst = R[0] + R[1]; I.src = R[0] + R[1]
        elif base.startswith('v_cmp'):
            I.dst = R[0]; I.src = flat(R[1:])
        elif base in ('v_add_co_u32', 'v_sub_co_u32', 'v_addc_co_u32', 'v_subb_co_u32', 'v_mad_u64_u32', 'v_div_scale_f32'):
            I.dst = R[0] + R[1]; I.src = flat(R[2:])
        elif base in ('v_fmac_f32', 'v_pk_fmac_f16', 'v_dot2c_f32_bf16', 'v_writelane_b32'):
            I.dst = R[0]; I.src = flat(R)
        elif base in ('v_readlane_b32', 'v_readfirstlane_b32'):
            I.cls = 'rdlane'; I.dst = R[0]; I.src = flat(R[1:])
        else:
            I.dst = R[0]; I.src = flat(R[1:])
            if base == 'v_cndmask_b32' and len(ops) == 3:
                I.src = I.src + [('s', 106), ('s', 107)]
            if I.dpp:
                I.src = I.src + R[0]
    elif base.startswith('ds_'):
        I.cls = 'ds'
        if base.startswith('ds_read') or base.startswith('ds_bpermute') or base.startswith('ds_permute') or base.startswith('ds_swizzle'):
            I.dst = R[0]; I.src = flat(R[1:])
        else:
            I.dst = []; I.src = flat(R)
    elif base.startswith('buffer_') or base.startswith('global_'):
        I.cls = 'vmem'
        I.lds = (' lds' in (mods + ' ')) and re.search(r'\blds\b', mods) is not None or '_lds_' in base
        if 'load' in base and not I.lds:
            I.dst = R[0]; I.src = flat(R[1:])
        elif 'atomic' in base and 'sc0' in mods:
            I.dst = R[0]; I.src = flat(R)
        else:
            I.dst = []; I.src = flat(R)
            if I.lds:
                I.src = I.src + [('m', 0)]
            if 'store' in base and ('x4' in base or 'x3' in base):
                I.wide = R[0] if base.startswith('buffer_') else R[1]
    elif base.startswith('s_load') or base in ('s_memtime', 's_memrealtime'):
        I.cls = 'smem'; I.dst = R[0]; I.src = flat(R[1:])
    elif base in ('s_waitcnt', 's_nop', 's_barrier', 's_endpgm', 's_branch', 's_setprio', 's_sleep') or base.startswith('s_cbranch'):
        I.cls = 'ctl'; I.dst = []; I.src = []
        if 'vcc' in base:
            I.src = [('s', 106), ('s', 107)]
    elif base.startswith('s_cmp') or base.startswith('s_bitcmp'):
        I.cls = 'salu'; I.dst = []; I.src = flat(R)
    elif base.startswith('s_'):
        I.cls = 'salu'; I.dst = R[0] if R else []; I.src = flat(R[1:])
        if 'saveexec' in base:
            I.dst = I.dst + [('x', 0)]
        if base in ('s_addk_i32', 's_mulk_i32'):
            I.src = I.src + R[0]
    else:
        raise ValueError('cannot parse ' + text)
    return I


class Reg:
    def __init__(self, kind, base, n, name=''):
        self.k = kind; self.b = base; self.n = n; self.name = name

    def __getitem__(self, i):
        if isinstance(i, slice):
            a = i.start or 0
            e = i.stop if i.stop is not None else self.n
            assert 0 <= a < e <= self.n, (self.name, a, e, self.n)
            if e - a == 1:
                return f'{self.k}{self.b + a}'
            return f'{self.k}[{self.b + a}:{self.b + e - 1}]'
        assert 0 <= i < self.n, (self.name, i, self.n)
        return f'{self.k}{self.b + i}'

    def t(self, i, n):
        return self[i:i + n]

    def sub(self, i, n):
        assert i + n <= self.n
        return Reg(self.k, self.b + i, n, self.name + f'+{i}')

    def __str__(self):
        return self[0:self.n]


class Pool:
    def __init__(self, kind, lo, hi):
        self.live = {}; self.k = kind; self.free = [True] * hi; self.lo = lo; self.hi = hi; self.peak = 0
        for i in range(lo):
            self.free[i] = False

    def alloc(self, n, align=1, name='', top=None):
        rng = range(0, self.hi - n + 1, align)
        if top is None:
            top = (self.k == 'v' and n >= 16)
        if top:
            rng = reversed(rng)
        for b in rng:
            if all(self.free[b:b + n]):
                for i in range(b, b + n):
                    self.free[i] = False
                self.peak = max(self.peak, b + n)
                self.live[b] = (n, name)
                return Reg(self.k, b, n, name)
        print(sorted((b, v) for b, v in self.live.items() if not self.free[b]))
        raise RuntimeError(f'out of {self.k} regs for {name} n={n}; free={sum(self.free)}')

    def at(self, b, n, name=''):
        if not all(self.free[b:b + n]):
            print('LIVE', self.dump())
            raise AssertionError((name, b, n))
        for i in range(b, b + n):
            self.free[i] = False
        self.peak = max(self.peak, b + n)
        self.live[b] = (n, name)
        return Reg(self.k, b, n, name)

    def dump(self):
        out = []
        i = 0
        while i < self.hi:
            if not self.free[i]:
                n, nm = self.live.get(i, (1, '?'))
                out.append((i, n, nm)); i += n
            else:
                i += 1
        return out

    def release(self, *rs):
        for r in rs:
            for i in range(r.b, r.b + r.n):
                assert not self.free[i], ('double free', r.name)
                self.free[i] = True

    def nfree(self):
        return sum(self.free)


class Asm:
    def __init__(self):
        self.lines = []
        self.pos = 0
        self.lastw = {}
        self.lastc = {}
        self.lastst = {}
        self.lastdot = {}
        self.vm = []
        self.lg = []
        self.sm = set()
        self.smn = 0
        self.V = Pool('v', 1, 256)
        self.A = Pool('a', 0, 256)
        self.S = Pool('s', 3, 102)
        self.nlab = 0
        self.tail = []
        self.stat = {}

    def raw(self, text):
        self.lines.append(text)

    def label(self, name):
        self.lines.append(name + ':')

    def newlabel(self, p='L'):
        self.nlab += 1
        return f'{p}_{self.nlab}'

    def _emit(self, text, n=1):
        self.lines.append('  ' + text)
        self.pos += n

    def nop(self, n):
        while n > 0:
            k = min(n, 16)
            self._emit(f's_nop {k - 1}', k)
            n -= k

    def waitcnt(self, vm=None, lg=None):
        parts = []
        if vm is not None and len(self.vm) > vm:
            if vm <= 63:
                parts.append(f'vmcnt({vm})')
            self.vm = self.vm[len(self.vm) - vm:] if vm > 0 else []
        if lg is not None and (len(self.lg) > lg or self.smn):
            if self.smn:
                lg = 0
            if lg <= 15:
                parts.append(f'lgkmcnt({lg})')
            self.lg = self.lg[len(self.lg) - lg:] if lg > 0 else []
            if lg == 0:
                self.sm = set(); self.smn = 0
        if parts:
            self._emit('s_waitcnt ' + ' '.join(parts))

    def wait_vm_tag(self, tag):
        idx = [i for i, (r, t) in enumerate(self.vm) if t == tag]
        if idx:
            self.waitcnt(vm=len(self.vm) - 1 - idx[-1])

    def wait_lg_tag(self, tag):
        idx = [i for i, (r, t) in enumerate(self.lg) if t == tag]
        if idx:
            self.waitcnt(lg=len(self.lg) - 1 - idx[-1])

    def barrier(self):
        self.waitcnt(lg=0)
        self._emit('s_barrier')

    def fence(self, n=13):
        self.nop(n)
        self.lastw = {}; self.lastc = {}; self.lastst = {}; self.lastdot = {}

    def I(self, text):
        for t in text.split('\n'):
            t = t.strip()
            if not t or t.startswith(';'):
                continue
            if t.endswith(':'):
                self.lines.append(t); continue
            if t.startswith('@'):
                self.directive(t); continue
            self._one(parse(t))

    def directive(self, t):
        p = t[1:].split()
        if p[0] == 'barrier':
            self.barrier()
        elif p[0] == 'waitvm':
            self.wait_vm_tag(p[1])
        elif p[0] == 'waitlg':
            self.wait_lg_tag(p[1])
        elif p[0] == 'vm0':
            self.waitcnt(vm=0)
        elif p[0] == 'lg0':
            self.waitcnt(lg=0)
        elif p[0] == 'call':
            self.calls[p[1]](self)
        else:
            raise ValueError(t)

    def emit_all(self, L):
        for t in L:
            if callable(t):
                t(self)
            else:
                self.I(t)

    def _one(self, I):
        touched = set(I.src) | set(I.dst) | set(I.srcc)
        needvm = None
        for i, (r, t) in enumerate(self.vm):
            if r & touched:
                needvm = len(self.vm) - 1 - i
        needlg = None
        for i, (r, t) in enumerate(self.lg):
            if r & touched:
                if I.cls == 'ds' and not (r & set(I.src)):
                    continue
                needlg = len(self.lg) - 1 - i
        if self.sm & touched:
            needlg = 0
        if needvm is not None or needlg is not None:
            self.waitcnt(vm=needvm, lg=needlg)
        need = 0
        isv = I.cls in ('valu', 'trans', 'perm', 'rdlane')

        def req(p, n):
            nonlocal need
            need = max(need, p + n + 1)
        for r in set(I.src) | set(I.srcc):
            w = self.lastw.get(r)
            if not w:
                continue
            cls, p, passes, key = w
            wv = cls in ('valu', 'trans', 'perm', 'rdlane')
            if cls == 'mfma':
                if I.cls == 'mfma' and r in I.srcc and r not in I.src:
                    if key == (tuple(I.srcc), I.passes):
                        pass
                    else:
                        req(p, 10 if passes == 8 else 6)
                else:
                    req(p, 12 if passes == 8 else 8)
            elif wv and r[0] in 'va':
                if I.cls == 'mfma':
                    req(p, 2)
                elif I.cls == 'perm' or I.dpp:
                    req(p, 2)
                elif I.cls == 'rdlane':
                    req(p, 1)
                elif cls == 'trans' and I.cls != 'trans':
                    req(p, 1)
            elif wv and r[0] == 's':
                if isv:
                    req(p, 4 if I.cls == 'rdlane' else 2)
                elif I.cls == 'vmem':
                    req(p, 5)
                else:
                    req(p, 2)
            elif cls == 'salu' and r[0] == 'm':
                req(p, 1)
        for r in set(I.src) | set(I.dst):
            d = self.lastdot.get(r)
            if d is not None and not (I.op == d[1] and r in I.dotc):
                req(d[0], 3)
        for r in I.dst:
            w = self.lastw.get(r)
            if w and w[0] == 'mfma':
                cls, p, passes, key = w
                if I.cls == 'mfma' and key == (tuple(I.dst), I.passes):
                    pass
                else:
                    req(p, 12 if passes == 8 else 8)
            c = self.lastc.get(r)
            if c and I.cls != 'mfma':
                req(c[0], 7 if c[1] == 8 else 3)
            s = self.lastst.get(r)
            if s is not None:
                req(s, 2)
        if need > self.pos:
            self.nop(need - self.pos)
        p = self.pos
        n = 1
        if I.op == 's_nop':
            n = int(I.text.split()[1], 0) + 1
        self._emit(I.text, n)
        self.stat[I.cls] = self.stat.get(I.cls, 0) + 1
        for r in I.dst:
            self.lastw[r] = (I.cls, p, I.passes, (tuple(I.dst), I.passes))
            if I.op.startswith('v_dot'):
                self.lastdot[r] = (p, I.op)
            else:
                self.lastdot.pop(r, None)
        if I.cls == 'mfma':
            for r in I.srcc:
                self.lastc[r] = (p, I.passes)
        if I.wide:
            for r in I.wide:
                self.lastst[r] = p
        if I.cls == 'vmem':
            self.vm.append((set(I.dst), I.tag))
            assert len(self.vm) <= 200
        elif I.cls == 'ds':
            self.lg.append((set(I.dst), I.tag))
        elif I.cls == 'smem':
            self.sm |= set(I.dst); self.smn += 1
        elif I.op == 's_waitcnt':
            m = re.search(r'vmcnt\((\d+)\)', I.text)
            if m:
                k = int(m.group(1)); self.vm = self.vm[len(self.vm) - k:] if k and len(self.vm) > k else (self.vm if k else [])
            m = re.search(r'lgkmcnt\((\d+)\)', I.text)
            if m:
                k = int(m.group(1)); self.lg = self.lg[len(self.lg) - k:] if k and len(self.lg) > k else (self.lg if k else [])
                if k == 0:
                    self.sm = set(); self.smn = 0

    def text(self):
        return '\n'.join(self.lines + self.tail) + '\n'


class Anchor:
    def __init__(self, fn):
        self.fn = fn

    def __call__(self, k):
        self.fn(k)


def is_anchor(t):
    return isinstance(t, Anchor) or (isinstance(t, str) and t.lstrip().startswith('v_mfma'))


def merge(main, fill, every=1, per=1, start=0, tail=True):
    out = []
    fi = 0
    k = 0
    acc = 0.0
    for t in main:
        out.append(t)
        if is_anchor(t):
            k += 1
            if k > start and (k - start) % every == 0:
                acc += per
                while acc >= 1.0 - 1e-9:
                    acc -= 1.0
                    if fi < len(fill):
                        out.append(fill[fi]); fi += 1
    if tail:
        out += fill[fi:]
        return out
    return out, fill[fi:]


class Quads:
    def __init__(self):
        self.free = []
        self.map = {}

    def add(self, reg):
        for i in range(0, reg.n, 4):
            self.free.append(reg.sub(i, 4))

    def take(self, key):
        assert key not in self.map, key
        if not self.free:
            raise RuntimeError(f'no free quad for {key}')
        q = self.free.pop(0)
        self.map[key] = q
        return q

    def __getitem__(self, key):
        return self.map[key]

    def has(self, key):
        return key in self.map

    def give(self, key):
        self.free.append(self.map.pop(key))

    def remove(self, reg):
        want = {(reg.k, reg.b + i) for i in range(0, reg.n, 4)}
        keep = [q for q in self.free if (q.k, q.b) not in want]
        assert len(self.free) - len(keep) == len(want), ('quads busy', reg.k, reg.b, reg.n)
        self.free = keep
```

```python
import re
from collections import deque
from asmb import *


class At:
    def __init__(self, n):
        self.n = n


class Item:
    def __init__(self, fn, cost=8):
        self.fn = fn; self.cost = cost

    def __call__(self, k):
        self.fn(k)


def cost(t):
    if isinstance(t, Item):
        return t.cost
    if callable(t):
        return 12
    c = 0
    for l in t.split('\n'):
        l = l.strip()
        if not l:
            continue
        op = l.split()[0]
        c += 8 if op.replace('_e32', '') in TRANS else 4
    return c


class Sched(Asm):
    def __init__(self):
        super().__init__()
        self.t = 0; self.mf = 0; self.lastv = -10 ** 6
        self.bg = deque(); self.hi = deque(); self.fill = deque()
        self.gap = 64; self.higap = 40
        self.lock = 0; self.exec_full = True; self.scc_live = False; self.depth = 0
        self.nanch = 0; self.slack = 0; self.src = None

    def _emit(self, text, n=1):
        super()._emit(text, n)
        op = text.split()[0]
        if op.startswith('v_mfma'):
            st = max(self.t, self.mf)
            self.mf = st + (32 if '32x32' in op else 16)
            self.t = st + 8
        elif op == 's_nop':
            self.t += 4 * n
        elif op.replace('_e32', '') in TRANS:
            self.t += 8
        elif op.startswith('ds_write_b128'):
            self.t += 12
        else:
            self.t += 4
        if op.startswith('buffer_') or op.startswith('global_'):
            self.lastv = self.t
        if re.match(r's_\w+\s+exec', text):
            self.exec_full = bool(re.match(r's_mov_b64\s+exec,\s*-1\s*$', text))
        if op.startswith('s_cmp') or op.startswith('s_bitcmp') or op in ('s_and_b64', 's_or_b64', 's_andn2_b64'):
            self.scc_live = True
        if op.startswith('s_cbranch_scc') or op.startswith('s_cselect') or op.startswith('s_addc'):
            self.scc_live = False

    def free(self):
        return not self.lock and self.exec_full and not self.scc_live and self.depth == 0

    def run(self, t):
        self.depth += 1
        if callable(t):
            t(self)
        else:
            Asm.I(self, t)
        self.depth -= 1

    def due(self):
        if self.hi and self.t - self.lastv >= self.higap:
            return self.hi
        if not self.hi and self.src is not None:
            t = self.src(self.t - self.lastv)
            if t is not None:
                self.hi.append(t)
                return self.hi
        if not self.hi and self.bg and self.t - self.lastv >= self.gap:
            return self.bg
        return None

    def after(self):
        if self.free():
            q = self.due()
            if q:
                self.run(q.popleft())

    def I(self, text):
        Asm.I(self, text)
        self.after()

    def emit_all(self, L):
        for t in L:
            if is_anchor(t):
                self.anchor(t)
            elif callable(t):
                self.run(t); self.after()
            else:
                self.I(t)

    def region(self):
        self.nanch = 0

    def anchor(self, t):
        while self.free():
            q = self.due()
            if q:
                self.run(q.popleft()); continue
            while self.fill and isinstance(self.fill[0], At) and self.fill[0].n <= self.nanch:
                self.fill.popleft()
            if self.fill and not isinstance(self.fill[0], At) and self.t + min(cost(self.fill[0]), 12) <= self.mf + self.slack:
                self.run(self.fill.popleft()); continue
            break
        self.run(t)
        self.nanch += 1

    def drain_fill(self):
        while self.fill:
            t = self.fill.popleft()
            if isinstance(t, At):
                continue
            self.run(t); self.after()

    def drain_hi(self):
        while self.hi:
            self.run(self.hi.popleft())

    def drain_bg(self):
        self.drain_hi()
        while self.bg:
            self.run(self.bg.popleft())
```

```python
import sys, struct, math
sys.path.insert(0, 'work')
from asmb import *
from sched import *

KNAME = 'recurrent_scan__ssm_conv_s5__mixer_s_mlp__prompt_kernel'
HDR = open('recurrent_scan__ssm_conv_s5__mixer_s_mlp__prompt.s.ref').read().split('; @launch')[0]

def f2u(x):
    return struct.unpack('<I', struct.pack('<f', x))[0]
def hx(x):
    return '0x%08x' % f2u(x)

TS = 0x120000
O_H1, O_X1, O_HS, O_H = 0x20000, 0x40000, 0x60000, 0xA0000
O_REC, O_ST3, O_FLG, O_IDS = 0x110000, 0x111000, 0x118000, 0x119000
O_SCAN = 0x1400000
O_EPOCH = 0x1480000
O_WTF = 0x14C0000
O_WT = 0x1500000
WTS = 88 * 1024
O_DBG = 0x1900000
L_BB, BROW = 0, 1040
L_W1 = 66560
L_MISC = 99328
L_HALO = L_MISC
L_HRED = L_MISC + 4096
L_TOK = L_MISC + 5632
L_CSW = L_MISC + 6656
L_SEG = L_HALO
L_CS3 = L_HALO + 2048
L_CS3T = L_HRED
L_UP = 106496
XSW = 4608
L_W2A = L_UP + 4 * XSW
STGW = 12288
L_RED4 = L_UP
L_W3B = 57344
L_TOK2 = L_HALO + 2048
L_CSB = L_CSW
LW4 = 24576
L_RED = L_UP
LDS_BYTES = 163840
SPIN = 50000

LOG2E = 1.4426950408889634
GC0 = -2.0 * math.sqrt(2.0 / math.pi) * LOG2E
GC1 = GC0 * 0.044715


class Ctx:
    pass


def gen(opts=None):
    o = dict(stamps=False, stop=None)
    o.update(opts or {})
    k = Sched()
    I = k.I
    V, A, S = k.V, k.A, k.S
    k.raw(HDR.rstrip('\n'))
    k.raw(f'; @launch grid=(256,1,1) block=(256,1,1) lds={LDS_BYTES}')
    k.raw('.amdgcn_target "amdgcn-amd-amdhsa--gfx950"\n.text\n.globl %s\n.p2align 12\n.type %s,@function\n%s:' % (KNAME, KNAME, KNAME))

    KA = S.at(16, 16, 'ka0'); KB = S.at(32, 16, 'ka1'); KW = S.at(48, 2, 'kaws')
    names = ['X', 'BRE', 'BIM', 'CRE', 'CIM', 'W1', 'W2', 'W3', 'W4', 'OUT', 'WS', 'DSK']
    SRD = {n: S.at(52 + 4 * i, 4, n) for i, n in enumerate(names)}
    sT, sJ, sW = [S.alloc(1, name=n) for n in ('T', 'J', 'W')]
    sA, sB, sC, sD = [S.alloc(1, name=f'tmp{i}') for i in range(4)]
    sXJ = S.alloc(4, 1, 'xj')
    sEP = S.alloc(1, name='epoch'); sBG = S.alloc(1, name='bgtmp')
    sM = S.at(50, 2, 'mask')

    nstamp = [0]
    c = Ctx(); c.STP = None; c.vSTP = None
    c.pend = []; c.flip = 0

    def stamp_flush():
        for pr, i in c.pend:
            I(f'v_writelane_b32 {c.vSTP}, {pr[0]}, {i}')
        c.pend = []

    c.marks = []
    def stamp(name, pair=None):
        c.marks.append((name, k.t))
        if o['stamps']:
            i = nstamp[0]; nstamp[0] += 1
            if pair is None:
                stamp_flush()
                pair = c.STP[c.flip]; c.flip ^= 1
            I(f's_memrealtime {pair}' if name.startswith('rt') else f's_memtime {pair}')
            c.pend.append((pair, i))
            k.stampnames.append(name)
    k.stampnames = []

    def fstamp(name):
        return [Item(lambda k_: stamp(name), 0)] if o.get('fine') else []

    I('s_cmp_ge_u32 s2, 256\ns_cbranch_scc1 L_end')
    if o['stamps']:
        c.STP = [None, None]; c.S0 = S.at(100, 2, 'stamp0')
    stamp('start', c.S0 if o['stamps'] else None)
    I(f's_load_dwordx16 {KA}, s[0:1], 0')
    I(f's_load_dwordx16 {KB}, s[0:1], 64')
    I(f's_load_dwordx2 {KW}, s[0:1], 128')
    vJUNK = V.at(65, 1, 'junk')
    I(f's_getpc_b64 {sM}')
    k.label('L_pc')
    I(f's_lshr_b32 {sA}, s2, 3\ns_lshl_b32 {sA}, {sA}, 11')
    I(f'v_lshl_add_u32 {vJUNK}, v0, 3, {sA}\nv_min_u32 {vJUNK}, L_codeend-L_pc-4, {vJUNK}\nglobal_load_dword {vJUNK}, {vJUNK}, {sM}')
    vL = V.alloc(1, name='lane'); vt0 = V.alloc(1); vt1 = V.alloc(1); vt2 = V.alloc(1); vt3 = V.alloc(1)
    I(f'v_and_b32 {vL}, 63, v0')
    I(f'v_lshrrev_b32 {vt0}, 6, v0')
    I(f'v_readfirstlane_b32 {sW}, {vt0}')
    I(f's_and_b32 {sT}, s2, 7\ns_lshl_b32 {sT}, {sT}, 1\ns_lshr_b32 {sA}, s2, 7\ns_add_u32 {sT}, {sT}, {sA}')
    I(f's_lshr_b32 {sJ}, s2, 3\ns_and_b32 {sJ}, {sJ}, 15')
    vL31 = V.alloc(1, name='l31'); vH = V.alloc(1, name='h'); vL16 = V.alloc(1, name='lane*16')
    vTAU = V.alloc(1, name='tau'); vMASK = V.alloc(1, name='hi16mask'); vTAGV = V.alloc(1, name='tagv'); vZERO = V.alloc(1, name='zero')
    vFLG = V.alloc(1, name='flagoff'); vLN = V.alloc(2, 1, 'lane16^nt'); vTRI = V.alloc(1, name='tr_inner')
    if o['stamps']:
        c.vSTP = V.alloc(1, name='stamps')
    I(f'v_and_b32 {vL31}, 31, {vL}\nv_lshrrev_b32 {vH}, 5, {vL}\nv_lshlrev_b32 {vL16}, 4, {vL}')
    vSo = V.alloc(1); vHo = V.alloc(1); vXo = V.alloc(1, name='xo'); vW1o = V.alloc(1, name='w1o')
    I(f'v_lshl_add_u32 {vSo}, {vH}, 9, {vL16}')
    I(f's_lshl_b32 {sD}, {sT}, 7\ns_lshr_b32 {sB}, {sJ}, 2\ns_lshl_b32 {sB}, {sB}, 5\ns_add_u32 {sA}, {sD}, {sB}\ns_and_b32 {sB}, {sJ}, 3\ns_lshl_b32 {sB}, {sB}, 2\ns_add_u32 {sA}, {sA}, {sB}'
      f'\ns_lshr_b32 {sB}, {sW}, 1\ns_lshl_b32 {sB}, {sB}, 4\ns_add_u32 {sA}, {sA}, {sB}\ns_and_b32 {sB}, {sW}, 1\ns_lshl_b32 {sB}, {sB}, 1\ns_add_u32 {sA}, {sA}, {sB}\ns_lshl_b32 {sA}, {sA}, 10\nv_add_u32 {vSo}, {sA}, {vSo}')
    I(f'v_and_b32 {vt1}, 1, {vL}\nv_lshlrev_b32 {vt1}, 10, {vt1}\nv_lshrrev_b32 {vt0}, 1, {vL31}\nv_lshl_add_u32 {vHo}, {vt0}, 4, {vt1}')
    I(f's_bitcmp1_b32 {sJ}, 2\ns_cselect_b32 {sC}, 128, -2\ns_add_u32 {sC}, {sC}, {sD}\ns_lshl_b32 {sC}, {sC}, 10\ns_lshl_b32 {sB}, {sW}, 8\ns_add_u32 {sC}, {sC}, {sB}\nv_add_u32 {vHo}, {sC}, {vHo}')
    I(f'v_lshrrev_b32 {vt0}, 5, {vL}\nv_lshlrev_b32 {vt0}, 4, {vt0}\nv_bfe_u32 {vt1}, {vL}, 3, 2\nv_add_u32 {vt0}, {vt0}, {vt1}\nv_lshlrev_b32 {vt0}, 10, {vt0}\nv_and_b32 {vt1}, 7, {vL}\nv_lshl_add_u32 {vXo}, {vt1}, 4, {vt0}')
    I(f's_lshl_b32 {sB}, {sW}, 5\ns_add_u32 {sA}, {sD}, {sB}\ns_lshl_b32 {sXJ[0]}, {sA}, 10\ns_add_u32 {sXJ[1]}, {sXJ[0]}, 4096\ns_add_u32 {sXJ[2]}, {sXJ[0]}, 8192\ns_add_u32 {sXJ[3]}, {sXJ[0]}, 12288')
    vPo = V.alloc(1, name='piece16x64')
    I(f'v_lshrrev_b32 {vt0}, 2, {vL}\nv_lshlrev_b32 {vt0}, 10, {vt0}\nv_and_b32 {vt1}, 3, {vL}\nv_lshl_add_u32 {vPo}, {vt1}, 4, {vt0}')
    I(f's_lshl_b32 {sA}, {sW}, 17\ns_lshl_b32 {sB}, {sJ}, 6\ns_add_u32 {sA}, {sA}, {sB}\nv_add_u32 {vW1o}, {sA}, {vPo}')
    XP = V.at(240, 8, 'xp'); HP = V.at(248, 4, 'hp')
    for i in range(4):
        I(f'v_mov_b32 {HP[i]}, 0x3f803f80')
    I(f's_lshl_b32 {sB}, {sW}, 13\ns_add_u32 m0, {sB}, {L_W1}\ns_mov_b32 {sD}, {O_EPOCH}\ns_mov_b32 {sA}, 0')

    def srd(name, lo, size):
        r = SRD[name]
        I(f's_mov_b32 {r[0]}, {lo[0]}\ns_and_b32 {r[1]}, {lo[1]}, 0xffff\ns_mov_b32 {r[2]}, {size}\ns_mov_b32 {r[3]}, 0x20000')
    srd('X', KA.sub(0, 2), 0x200000)
    I(f's_load_dword {sEP}, {KW}, {sD}')
    stamp('ka', sM)
    I(f'buffer_load_dwordx4 {XP.t(0,4)}, {vSo}, {SRD["X"]}, 0 offen')
    I(f'buffer_load_dwordx4 {XP.t(4,4)}, {vSo}, {SRD["X"]}, 0 offen offset:512')
    I('s_mov_b32 exec_hi, 0')
    I(f'buffer_load_dwordx4 {HP}, {vHo}, {SRD["X"]}, 0 offen')
    I('s_mov_b64 exec, -1')
    srd('W1', KB.sub(4, 2), 0x80000)
    NW0 = o.get('nw0', 4)
    for i in range(NW0):
        I(f'buffer_load_dwordx4 {vW1o}, {SRD["W1"]}, {sA} offen lds #w1')
        if i < NW0 - 1:
            I(f's_add_u32 {sA}, {sA}, 16384\ns_add_u32 m0, m0, 1024')
    vLre = V.alloc(1); vLim = V.alloc(1); vLdt = V.alloc(1)
    I(f's_lshl_b32 {sA}, {sJ}, 6\nv_lshl_add_u32 {vSo}, {vL31}, 1, {sA}')
    I(f'global_load_ushort {vLre}, {vSo}, {KA.t(2,2)}\nglobal_load_ushort {vLim}, {vSo}, {KA.t(4,2)}\nglobal_load_ushort {vLdt}, {vSo}, {KA.t(14,2)}')
    V.release(vSo, vHo)
    srd('BRE', KA.sub(6, 2), 0x80000); srd('BIM', KA.sub(8, 2), 0x80000)
    S.release(KA.sub(0, 10))
    sW1d = S.alloc(1, name='w1dst')
    I(f's_lshl_b32 {sW1d}, {sW}, 13')
    w1_rest = [f's_add_u32 m0, {sW1d}, {L_W1 + i*1024}\ns_mov_b32 {sBG}, {i*16384}\nbuffer_load_dwordx4 {vW1o}, {SRD["W1"]}, {sBG} offen lds #w1' for i in range(NW0, 8)]
    srd('WS', KW, 0x10000000)
    WS = SRD['WS']
    XN = A.at(0, 128, 'XN')

    def x_load(kg, j):
        return f'buffer_load_dwordx4 {XN.t(16*kg + 4*j, 4)}, {vXo}, {SRD["X"]}, {sXJ[j]} offen offset:{kg*128}'
    xl = [x_load(kg, j) for kg in range(8) for j in range(4)]
    srd('W2', KB.sub(6, 2), 0x80000); srd('W3', KB.sub(8, 2), 1835008); srd('W4', KB.sub(10, 2), 1835008)
    srd('CRE', KA.sub(10, 2), 0x80000); srd('CIM', KA.sub(12, 2), 0x80000)
    srd('OUT', KB.sub(12, 2), 0x400000)
    srd('DSK', KB.sub(0, 2), 1024)
    S.release(KA.sub(10, 6), KB, KW)
    sTB, sTAG, sSLOW, sXCC = [S.alloc(1, name=n) for n in ('TB', 'TAG', 'SLOW', 'xcc')]
    if o['stamps']:
        c.STP = [S.alloc(2, 2, 'stamps'), S.alloc(2, 2, 'stamps')]
        c.E = [S.alloc(2, 2) for _ in range(2)]
    stamp('w1_iss', c.E[0] if o['stamps'] else None)
    if o.get('dbg') is not None:
        c.RT = S.alloc(2, 2, 'rt0')
        I(f's_memrealtime {c.RT}')
    I(f's_getreg_b32 {sXCC}, hwreg(HW_REG_XCC_ID)\ns_and_b32 {sXCC}, {sXCC}, 15\ns_mul_i32 {sTB}, {sT}, {TS}')
    I(f'v_mov_b32 {vZERO}, 0\ns_add_u32 {sTAG}, {sEP}, 16\ns_and_b32 {sTAG}, {sTAG}, -16\nv_mov_b32 {vTAGV}, {sTAG}')
    I(f's_or_b32 {sA}, {sTAG}, {sXCC}\nv_mov_b32 {vt0}, {sA}\ns_lshl_b32 {sB}, {sJ}, 7\ns_add_u32 {sB}, {sB}, {sTB}\ns_add_u32 {sB}, {sB}, {O_IDS}\ns_mov_b64 exec, 1')
    I(f's_cmp_lg_u32 {sW}, 0\ns_cselect_b32 {sB}, 0x80000000, {sB}')
    I(f'buffer_store_dword {vt0}, {vZERO}, {WS}, {sB} offen sc0 sc1')
    S.release(sEP)
    I('s_mov_b64 exec, 0')
    for w in range(4):
        I(f's_cmp_eq_u32 {sW}, {w}\ns_cbranch_scc1 L_stub{w}')
    k.label('L_stubret')
    I('s_mov_b64 exec, -1')
    stamp('stubs')
    stamp('rt0')

    sTH, sCG, sN32, sT32 = [S.alloc(1, name=n) for n in ('th', 'cg', 'n32', 't32')]
    I(f's_lshr_b32 {sTH}, {sJ}, 3\ns_and_b32 {sCG}, {sJ}, 7\ns_and_b32 {sN32}, {sW}, 1\ns_lshr_b32 {sT32}, {sW}, 1')
    I(f'v_mov_b32 {vMASK}, 0xffff0000\nv_lshlrev_b32 {vFLG}, 2, {vL}')

    def unpack(dst, src):
        L = []
        for i in range(src.n):
            L.append(f'v_lshlrev_b32 {dst[2*i]}, 16, {src[i]}')
            L.append(f'v_and_b32 {dst[2*i+1]}, {vMASK}, {src[i]}')
        return L

    def zipl(*ls):
        out = []
        for i in range(max(len(x) for x in ls)):
            for x in ls:
                if i < len(x):
                    out.append(x[i])
        return out

    def dsums(P, SQ, t, one):
        n = P.n
        L = []
        for i in range(n):
            a, b = (SQ[0], SQ[1]) if i % 2 == 0 else (t[0], t[1])
            L.append(f'v_dot2_f32_bf16 {a}, {P[i]}, {one}, {a if i >= 2 else 0}')
            L.append(f'v_dot2_f32_bf16 {b}, {P[i]}, {P[i]}, {b if i >= 2 else 0}')
        L.append(f'v_add_f32 {SQ[0]}, {SQ[0]}, {t[0]}')
        L.append(f'v_add_f32 {SQ[1]}, {SQ[1]}, {t[1]}')
        return L

    def xswap(SQ, t, which):
        n = SQ.n
        return ([f'v_mov_b32 {t[i]}, {SQ[i]}' for i in range(n)] + [f'v_permlane{which}_swap_b32 {SQ[i]}, {t[i]}' for i in range(n)]
                + [f'v_add_f32 {SQ[i]}, {SQ[i]}, {t[i]}' for i in range(n)])

    def ror(SQ):
        return [f'v_add_f32_dpp {SQ[i]}, {SQ[i]}, {SQ[i]} row_ror:{r} row_mask:0xf bank_mask:0xf' for r in (8, 4, 2, 1) for i in range(SQ.n)]

    def finish_stats(SQ, NM, RI, PK, t, SD=None, n=512):
        L = [f'v_mul_f32 {SQ[0]}, {hx(1.0/n)}, {SQ[0]}', f'v_mul_f32 {SQ[1]}, {hx(1.0/n)}, {SQ[1]}',
             f'v_fma_f32 {SQ[1]}, -{SQ[0]}, {SQ[0]}, {SQ[1]}', f'v_max_f32 {SQ[1]}, 0, {SQ[1]}',
             f'v_cvt_pk_bf16_f32 {t[0]}, {SQ[0]}, {SQ[1]}',
             f'v_and_b32 {t[1]}, {vMASK}, {t[0]}', f'v_add_f32 {t[1]}, {hx(1e-5)}, {t[1]}', f'v_cvt_pk_bf16_f32 {t[1]}, {t[1]}, {t[1]}',
             f'v_and_b32 {t[1]}, {vMASK}, {t[1]}', f'v_sqrt_f32 {t[1]}, {t[1]}', f'v_cvt_pk_bf16_f32 {t[1]}, {t[1]}, {t[1]}', f'v_and_b32 {SD or t[1]}, {vMASK}, {t[1]}']
        if RI is not None:
            L.append(f'v_rcp_f32 {RI}, {SD or t[1]}')
        if PK is not None:
            L.append(f'v_and_or_b32 {PK}, {t[0]}, {vFFFF}, {SD or t[1]}')
        if NM is not None:
            L.append(f'v_lshlrev_b32 {NM}, 16, {t[0]}')
            L.append(f'v_xor_b32 {NM}, 0x80000000, {NM}')
        return L

    def stores(L, tag='st'):
        k.lock += 1
        ls = k.newlabel('L_slow'); lr = k.newlabel('L_sret')
        I(f's_cmp_lg_u32 {sSLOW}, 0')
        mark = len(k.lines)
        for t in L:
            I(t + f' #{tag}')
        body = k.lines[mark:]
        del k.lines[mark:]
        pre = []
        while body and not body[0].lstrip().startswith('buffer_store'):
            pre.append(body.pop(0))
        k.lines += pre
        k.lines.append(f'  s_cbranch_scc1 {ls}')
        k.scc_live = False
        k.lines += body
        k.lines.append(lr + ':')
        k.tail.append(ls + ':')
        for b in body:
            k.tail.append(b + ' sc0 sc1' if b.lstrip().startswith('buffer_store') else b)
        k.tail.append(f'  s_branch {lr}')
        k.lock -= 1

    def publish(phase, tag='st'):
        k.lock += 1
        k.wait_vm_tag(tag)
        I('s_mov_b64 exec, 1')
        stores([f'buffer_store_dword {vTAGV}, {vZERO}, {WS}, {sMYF} offen offset:{phase*256}'], tag='flag')
        I('s_mov_b64 exec, -1')
        k.lock -= 1

    def lazy_check(vdst, sbase, off, mask):
        lo = k.newlabel('L_lz'); lr = k.newlabel('L_lzr')
        k.lock += 1
        I(f'v_cmp_ne_u32 vcc, {vdst}, {vTAGV}\ns_and_b64 vcc, vcc, {mask}\ns_cbranch_scc1 {lo}')
        k.lock -= 1
        k.label(lr)
        k.tail.append(f'{lo}:\n  s_mov_b32 {sBG}, 0\n{lo}_p:\n  buffer_load_dword {vdst}, {vFLG}, {WS}, {sbase} offen offset:{off} sc1\n  s_waitcnt vmcnt(0)\n  v_cmp_ne_u32 vcc, {vdst}, {vTAGV}\n  s_add_u32 {sBG}, {sBG}, 1\n  s_cmp_gt_u32 {sBG}, {SPIN}\n  s_cbranch_scc1 {lr}\n  s_and_b64 vcc, vcc, {mask}\n  s_cbranch_scc1 {lo}_p\n  s_branch {lr}')

    def flag_load(vdst, sbase, off):
        return f'buffer_load_dword {vdst}, {vFLG}, {WS}, {sbase} offen offset:{off} sc1'

    def retry(loads, test, name):
        lp = k.newlabel('L_' + name); ld = k.newlabel('L_' + name + 'd')
        k.lock += 1
        k.emit_all(test)
        I(f's_mov_b32 {sBG}, 0\ns_cbranch_vccnz {lp}')
        k.lock -= 1
        k.label(ld)
        sub = Asm()
        for t in loads:
            sub.I(t)
        sub.waitcnt(vm=0)
        sub.emit_all(test)
        sub.I(f's_add_u32 {sBG}, {sBG}, 1\ns_cmp_gt_u32 {sBG}, {SPIN}\ns_cbranch_scc1 {ld}\ns_cbranch_vccnz {lp}\ns_branch {ld}')
        k.tail += [lp + ':'] + sub.lines

    F = V.at(224, 16, 'F'); SQ = V.alloc(2, 2, 'SQ'); tq = V.alloc(2, 2, 'tq')
    NM = V.alloc(2, 2, 'nm'); RI = V.alloc(2, 2, 'ri'); REC = V.alloc(4, 4, 'rec'); vONE = V.alloc(1, name='one2'); vFFFF = V.alloc(1, name='ffff')
    I(f'v_mov_b32 {vONE}, 0x3f803f80\nv_mov_b32 {vFFFF}, 0xffff\nv_mov_b32 {REC[1]}, {vTAGV}\nv_mov_b32 {REC[3]}, {vTAGV}')
    sFL = S.alloc(1, name='flagbase'); sMYF = S.alloc(1, name='myflag'); sREC = S.alloc(1, name='rec')
    I(f's_add_u32 {sFL}, {sTB}, {O_FLG}\ns_lshl_b32 {sMYF}, {sJ}, 4\ns_lshl_b32 {sA}, {sW}, 2\ns_add_u32 {sMYF}, {sMYF}, {sA}\ns_add_u32 {sMYF}, {sMYF}, {sFL}\ns_add_u32 {sREC}, {sTB}, {O_REC}')
    vRW = V.alloc(2, 1)
    I(f's_lshl_b32 {sA}, {sJ}, 2\ns_add_u32 {sA}, {sA}, {sW}\ns_lshl_b32 {sB}, {sA}, 5\ns_add_u32 {sB}, {sB}, {sREC}\nv_lshl_add_u32 {vRW[0]}, {vH}, 4, {sB}')
    I(f's_add_u32 {sA}, {sA}, 1\ns_and_b32 {sA}, {sA}, 63\ns_cmp_le_u32 {sA}, 1\ns_cselect_b32 {sA}, 0, 0x80000000\nv_or_b32 {vRW[1]}, {sA}, {vRW[0]}')
    vHw = V.alloc(1)
    I(f's_lshl_b32 {sA}, {sW}, 10\ns_add_u32 {sA}, {sA}, {L_HALO}\nv_lshrrev_b32 {vt0}, 1, {vL31}\nv_lshlrev_b32 {vt0}, 6, {vt0}\nv_and_b32 {vt1}, 1, {vL}\nv_lshl_add_u32 {vt0}, {vt1}, 4, {vt0}\nv_lshl_add_u32 {vt0}, {vH}, 5, {vt0}\nv_add_u32 {vHw}, {sA}, {vt0}')
    vID = V.alloc(1, name='ids'); vIDo = V.alloc(1)
    I(f's_add_u32 {sB}, {sTB}, {O_IDS}\nv_and_b32 {vIDo}, 15, {vL}\nv_lshl_add_u32 {vIDo}, {vIDo}, 7, {sB}')
    id_load = f'buffer_load_dword {vID}, {vIDo}, {WS}, 0 offen sc1'

    def ids_check(k_=None):
        retry([id_load], [f'v_and_b32 {vt0}, -16, {vID}', f'v_cmp_ne_u32 vcc, {sTAG}, {vt0}'], 'id')
        I(f's_or_b32 {sB}, {sTAG}, {sXCC}\nv_cmp_ne_u32 vcc, {sB}, {vID}\ns_cmp_lg_u64 vcc, 0\ns_cselect_b32 {sSLOW}, 1, 0')
        if o.get('force_slow'):
            I(f's_mov_b32 {sSLOW}, 1')

    RP = V.at(208, 4, 'recp'); RH = V.at(216, 4, 'rech'); vRo = V.at(220, 1); vRHo = V.at(221, 1)
    I(f's_lshl_b32 {sA}, {sW}, 9\ns_add_u32 {sA}, {sA}, {sREC}\nv_lshl_add_u32 {vRo}, {vL31}, 4, {sA}')
    I(f's_mov_b32 {sB}, {TS + 2048}\ns_bitcmp1_b32 {sJ}, 2\ns_cselect_b32 {sA}, {sB}, {-TS + 2048 + 2016}\ns_add_u32 {sA}, {sA}, {sREC}\nv_and_b32 {vt0}, 1, {vL}\nv_lshl_add_u32 {vRHo}, {vt0}, 4, {sA}')
    sHE = S.alloc(1, name='haloexists')
    I(f's_bitcmp1_b32 {sJ}, 2\ns_cselect_b32 {sB}, 15, 0\ns_cmp_eq_u32 {sT}, {sB}\ns_cselect_b32 {sHE}, 0, -1')
    rec_loads = [f'buffer_load_dwordx4 {RP}, {vRo}, {WS}, 0 offen sc1', f'buffer_load_dwordx4 {RH}, {vRHo}, {WS}, 0 offen sc1']
    sBs = S.alloc(1, name='bsrc'); sBd = S.alloc(1, name='bdst')
    I(f's_lshl_b32 {sBs}, {sJ}, 15\ns_add_u32 {sBs}, {sBs}, {sW1d}\ns_mul_i32 {sBd}, {sW}, {8*BROW}')

    def bdma(i):
        nm_ = 'BRE' if i % 2 == 0 else 'BIM'
        r = i // 2
        t = f's_add_u32 m0, {sBd}, {L_BB + (32 if i % 2 else 0) * BROW + r * BROW - (r % 4) * 1024}\n'
        if i == 8:
            t += f's_add_u32 {sBs}, {sBs}, 4096\n'
        return t + f'buffer_load_dwordx4 {vL16}, {SRD[nm_]}, {sBs} offen offset:{(r%4)*1024} lds #b'

    I(f'v_bfe_u32 {vt1}, {vL}, 4, 1\nv_lshlrev_b32 {vt0}, 5, {vt1}\nv_and_b32 {vt1}, 1, {vL}\nv_lshl_add_u32 {vt0}, {vt1}, 4, {vt0}\nv_bfe_u32 {vt1}, {vL}, 1, 1\nv_lshl_add_u32 {vt2}, {vt1}, 3, {vt0}')
    I(f'v_bfe_u32 {vt0}, {vL}, 2, 2\nv_lshl_add_u32 {vTRI}, {vt0}, 6, {vt2}\nv_lshl_add_u32 {vTRI}, {vH}, 9, {vTRI}')
    vW1r = V.alloc(1, name='w1rd')
    I(f'v_add_u32 {vW1r}, {L_W1}, {vTRI}')
    vW2r = V.at(119, 2, 'w2rd')
    I(f'v_lshl_add_u32 {vt2}, {vt0}, 7, {vt2}\nv_lshl_add_u32 {vt2}, {vH}, 10, {vt2}\nv_bfe_u32 {vt1}, {vL}, 3, 1\nv_xor_b32 {vt1}, {sN32}, {vt1}\ns_mov_b32 {sB}, {L_W1}\ns_cmp_eq_u32 {sN32}, 0\ns_cselect_b32 {sA}, {L_W2A}, {sB}\nv_add_u32 {vt2}, {sA}, {vt2}')
    I(f'v_lshl_add_u32 {vW2r[0]}, {vt1}, 6, {vt2}\nv_xor_b32 {vW2r[1]}, 64, {vW2r[0]}')
    vXw = V.alloc(1); vXr = V.alloc(1); sXS = S.alloc(1, name='xs')
    I(f's_mul_i32 {sXS}, {sW}, {XSW}\ns_add_u32 {sXS}, {sXS}, {L_UP}\nv_lshrrev_b32 {vt0}, 3, {vL}\nv_mul_u32_u24 {vt0}, 144, {vt0}\nv_and_b32 {vt1}, 7, {vL}\nv_lshl_add_u32 {vt0}, {vt1}, 4, {vt0}\nv_add_u32 {vXw}, {sXS}, {vt0}')
    I(f'v_mul_u32_u24 {vt0}, 144, {vL31}\nv_lshl_add_u32 {vt0}, {vH}, 4, {vt0}\nv_add_u32 {vXr}, {sXS}, {vt0}')
    sH1 = S.alloc(1, name='h1base'); sDEL = sD
    I(f's_lshr_b32 {sA}, {sJ}, 3\ns_add_u32 {sDEL}, {sA}, 1\ns_sub_u32 {sB}, 0, {sDEL}\ns_bitcmp1_b32 {sJ}, 2\ns_cselect_b32 {sDEL}, {sB}, {sDEL}')
    I(f's_lshl_b32 {sH1}, {sJ}, 11\ns_add_u32 {sH1}, {sH1}, {sTB}\ns_add_u32 {sH1}, {sH1}, {O_H1}')

    def h1_rowoff(dst, tp, ta, tb):
        return [f'v_bfe_u32 {ta}, {tp}, 2, 2', f'v_lshlrev_b32 {ta}, 3, {ta}', f'v_bfe_u32 {tb}, {tp}, 4, 1', f'v_lshl_add_u32 {ta}, {tb}, 2, {ta}', f'v_and_b32 {tb}, 3, {tp}', f'v_add_u32 {ta}, {ta}, {tb}', f'v_lshlrev_b32 {ta}, 4, {ta}',
                f'v_lshrrev_b32 {tb}, 5, {tp}', f'v_lshl_add_u32 {ta}, {tb}, 15, {ta}', f'v_cmp_gt_u32 vcc, 128, {tp}\nv_bfrev_b32 {tb}, 1\nv_cndmask_b32 {dst}, {tb}, {ta}, vcc']
    CS1 = V.at(80, 16, 'cs1'); hz = V.at(96, 14, 'hz'); vH1o = V.at(222, 1, 'h1off'); vHHo = V.at(223, 1, 'h1halo'); HZ = V.at(126, 2, 'halo dot, colsum')
    hf = [f'v_and_b32 {hz[8]}, 1, {vL}', f'v_lshlrev_b32 {hz[8]}, 7, {hz[8]}', f'v_lshrrev_b32 {hz[9]}, 1, {vL}', f'v_lshl_add_u32 {hz[8]}, {hz[9]}, 2, {hz[8]}', f'v_add_u32 {hz[8]}, {L_HRED}, {hz[8]}', f'v_lshlrev_b32 {hz[10]}, 2, {hz[9]}', f'v_add_u32 {hz[11]}, {L_HRED + 256}, {hz[10]}']
    hf += [f's_lshl_b32 {sA}, {sW}, 7\ns_add_u32 {sA}, {sA}, {L_TOK}\nv_add_u32 {hz[10]}, {sA}, {hz[10]}', f'v_lshl_add_u32 {hz[12]}, {vH}, 6, {sA}']
    hf += [f'v_bfe_u32 {hz[0]}, {vL31}, 2, 1', f'v_lshlrev_b32 {hz[0]}, 4, {hz[0]}', f'v_lshrrev_b32 {hz[1]}, 3, {vL31}', f'v_lshl_add_u32 {hz[0]}, {hz[1]}, 2, {hz[0]}', f'v_and_b32 {hz[1]}, 3, {vL31}', f'v_add_u32 {vTAU}, {hz[0]}, {hz[1]}']
    hf += [f's_bitcmp1_b32 {sJ}, 2\ns_cselect_b32 {sB}, 128, -2\ns_add_u32 {sB}, {sB}, {sDEL}\nv_and_b32 {hz[2]}, 1, {vL}\nv_add_u32 {hz[2]}, {sB}, {hz[2]}']
    hf += h1_rowoff(hz[3], hz[2], hz[4], hz[5])
    hf += [f'v_bfe_u32 {hz[4]}, {hz[9]}, 3, 1', f'v_lshl_add_u32 {hz[3]}, {hz[4]}, 10, {hz[3]}', f'v_lshrrev_b32 {hz[4]}, 4, {hz[9]}', f'v_lshl_add_u32 {hz[3]}, {hz[4]}, 9, {hz[3]}', f'v_and_b32 {hz[4]}, 7, {hz[9]}', f'v_lshl_add_u32 {hz[3]}, {hz[4]}, 1, {hz[3]}']
    hf += [f's_cmp_lg_u32 {sW}, 0\ns_cselect_b32 {sB}, 0x80000000, 0\nv_or_b32 {vHHo}, {sB}, {hz[3]}']
    hf += [f's_lshl_b32 {sB}, {sW}, 5\ns_add_u32 {sB}, {sB}, {sDEL}\nv_add_u32 {hz[2]}, {sB}, {vTAU}']
    hf += h1_rowoff(vH1o, hz[2], hz[4], hz[5])
    hf += [f'v_lshl_add_u32 {vH1o}, {vH}, 9, {vH1o}']
    vHa = V.at(122, 3, 'ha')
    hf += [f'v_min_u32 {vt0}, 2, {vL31}\nv_lshlrev_b32 {vt0}, 4, {vt0}\nv_lshl_add_u32 {vt0}, {vH}, 6, {vt0}\ns_lshl_b32 {sB}, {sW}, 10\ns_add_u32 {sB}, {sB}, {L_HALO}\nv_add_u32 {vHa[0]}, {sB}, {vt0}',
           f'v_add_u32 {vHa[1]}, {sW1d}, {vW1r}',
           f's_mul_i32 {sB}, {sW}, 384\ns_add_u32 {sB}, {sB}, {L_HRED}\nv_lshlrev_b32 {vt0}, 7, {vL31}\nv_lshl_add_u32 {vt0}, {vH}, 6, {vt0}\nv_add_u32 {vHa[2]}, {sB}, {vt0}']
    vW3o = V.at(112, 7, 'w3o')
    a_, b_, c_, d0, dl, e_ = hz[0], hz[1], hz[2], hz[6], hz[7], hz[3]
    hf += [f'v_bfe_u32 {a_}, {vL}, 1, 3', f'v_xor_b32 {b_}, 4, {a_}', f'v_sub_u32 {b_}, {b_}, {a_}', f'v_mul_i32_i24 {dl}, 3584, {b_}', f'v_mul_u32_u24 {a_}, 3584, {a_}', f'v_and_b32 {b_}, 1, {vL}', f'v_lshl_add_u32 {d0}, {b_}, 4, {a_}', f'v_lshrrev_b32 {e_}, 4, {vL}',
           f'v_mov_b32 {hz[4]}, 28448', f's_mul_i32 {sA}, {sW}, {32*3584}\ns_mul_i32 {sB}, {sJ}, 224\ns_add_u32 {sA}, {sA}, {sB}\nv_add_u32 {d0}, {sA}, {d0}']
    for n in range(7):
        hf += [f'v_add_u32 {a_}, {4*n}, {e_}', f'v_mul_u32_u24 {b_}, 37, {a_}', f'v_lshrrev_b32 {b_}, 8, {b_}', f'v_add_u32 {c_}, {a_}, {b_}', f'v_and_b32 {c_}, 1, {c_}',
               f'v_lshl_add_u32 {a_}, {a_}, 5, {d0}', f'v_mad_i32_i24 {a_}, {c_}, {dl}, {a_}', f'v_mad_u32_u24 {vW3o[n]}, {b_}, {hz[4]}, {a_}']
    for ni in range(2):
        hf += [f's_xor_b32 {sA}, {sN32}, {ni}\ns_lshl_b32 {sA}, {sA}, 10\nv_add_u32 {vLN[ni]}, {sA}, {vL16}']
    vBr = V.at(121, 1, 'brd')
    hf += [f'v_mul_u32_u24 {vBr}, {BROW}, {vL31}', f'v_lshl_add_u32 {vBr}, {vH}, 4, {vBr}']
    vCo, vP4o, vPCd, vP4d, vRTo, vW2o, vCSr, vCSw = [V.at(192 + i, 1, n) for i, n in enumerate(('co', 'p4o', 'pcd', 'p4d', 'rto', 'w2o', 'csr', 'csw'))]
    hf += [f'v_lshrrev_b32 {vt0}, 3, {vL}\nv_bfe_u32 {vt1}, {vL}, 4, 1\nv_lshlrev_b32 {vt1}, 2, {vt1}\nv_and_b32 {vt2}, 7, {vL}\nv_xor_b32 {vt1}, {vt1}, {vt2}\nv_lshlrev_b32 {vt1}, 4, {vt1}\nv_lshl_add_u32 {vW2o}, {vt0}, 10, {vt1}',
           f's_lshl_b32 {sB}, {sW}, 16\ns_lshl_b32 {sA}, {sCG}, 7\ns_add_u32 {sB}, {sB}, {sA}\nv_add_u32 {vW2o}, {sB}, {vW2o}']

    def w2dma(half, i):
        return f's_add_u32 m0, {sW1d}, {(L_W1 if half else L_W2A) + i*1024}\ns_mov_b32 {sBG}, {half*262144 + i*8192}\nbuffer_load_dwordx4 {vW2o}, {SRD["W2"]}, {sBG} offen lds #w2'
    hf += [f'v_and_b32 {vt0}, 7, {vL}\nv_bfe_u32 {vt1}, {vL}, 3, 1\nv_lshl_add_u32 {vt0}, {vt1}, 5, {vt0}\ns_lshl_b32 {sA}, {sW}, 3\nv_add_u32 {vt0}, {sA}, {vt0}\nv_lshlrev_b32 {vCSw}, 2, {vt0}\nv_add_u32 {vCSw}, {L_CSB}, {vCSw}',
           f'v_mul_u32_u24 {vt0}, {BROW}, {vt0}\nv_lshrrev_b32 {vt1}, 4, {vL}\nv_lshl_add_u32 {vCSr}, {vt1}, 4, {vt0}']
    sPI, sWF = [S.alloc(1, name=n) for n in ('pi', 'wf')]
    sPW, sPC, sPD = sC, sD, sBG
    hf += [f's_and_b32 {sPW}, {sJ}, 1\ns_lshl_b32 {sPW}, {sPW}, 1\ns_and_b32 {sA}, {sT}, 1\ns_add_u32 {sPW}, {sPW}, {sA}\ns_lshr_b32 {sPI}, {sT}, 1\ns_lshr_b32 {sPC}, {sJ}, 1'
           f'\nv_and_b32 {vt0}, 0x13, {vL}\nv_bfe_u32 {vt1}, {vL}, 2, 1\nv_lshl_add_u32 {vt0}, {vt1}, 3, {vt0}\nv_bfe_u32 {vt1}, {vL}, 3, 1\nv_lshl_add_u32 {vt0}, {vt1}, 2, {vt0}\nv_lshlrev_b32 {vt0}, 10, {vt0}\nv_lshl_add_u32 {vt0}, {vH}, 4, {vt0}'
           f'\ns_lshl_b32 {sA}, {sPC}, 16\ns_lshl_b32 {sB}, {sN32}, 15\ns_add_u32 {sA}, {sA}, {sB}\ns_lshl_b32 {sB}, {sPW}, 8\ns_add_u32 {sA}, {sA}, {sB}\ns_lshr_b32 {sB}, {sPI}, 1\ns_lshl_b32 {sB}, {sB}, 6\ns_add_u32 {sA}, {sA}, {sB}\ns_lshl_b32 {sB}, {sT32}, 5\ns_add_u32 {sA}, {sA}, {sB}\nv_add_u32 {vCo}, {sA}, {vt0}'
           f'\ns_mul_i32 {sA}, {sPW}, 448\ns_lshr_b32 {sB}, {sPI}, 1\ns_mul_i32 {sB}, {sB}, 112\ns_add_u32 {sA}, {sA}, {sB}\ns_lshl_b32 {sB}, {sW}, 5\ns_add_u32 {sA}, {sA}, {sB}\ns_lshl_b32 {sA}, {sA}, 10\ns_lshl_b32 {sB}, {sPC}, 7\ns_add_u32 {sA}, {sA}, {sB}\ns_and_b32 {sB}, {sPI}, 1\ns_lshl_b32 {sB}, {sB}, 6\ns_add_u32 {sA}, {sA}, {sB}\nv_add_u32 {vP4o}, {sA}, {vPo}'
           f'\ns_lshl_b32 {sA}, {sPC}, 2\ns_add_u32 {sA}, {sA}, {sPW}\ns_mul_i32 {sPD}, {sA}, {WTS}\ns_add_u32 {sPD}, {sPD}, {O_WT}'
           f'\ns_lshl_b32 {sA}, {sA}, 3\ns_add_u32 {sA}, {sA}, {sPI}\ns_lshl_b32 {sA}, {sA}, 7\ns_add_u32 {sWF}, {sA}, {O_WTF}\ns_cmp_lg_u32 {sW}, 0\ns_cselect_b32 {sWF}, 0x80000000, {sWF}'
           f'\ns_lshl_b32 {sA}, {sPI}, 2\ns_add_u32 {sA}, {sA}, {sW}\ns_lshl_b32 {sA}, {sA}, 10\ns_add_u32 {sA}, {sA}, {sPD}\nv_add_u32 {vPCd}, {sA}, {vL16}'
           f'\ns_lshr_b32 {sA}, {sPI}, 1\ns_lshl_b32 {sB}, {sA}, 2\ns_mul_i32 {sA}, {sA}, 3\ns_add_u32 {sA}, {sA}, 12\ns_cmp_lt_u32 {sW}, 2\ns_cselect_b32 {sA}, {sB}, {sA}\ns_lshl_b32 {sB}, {sW}, 1\ns_add_u32 {sA}, {sA}, {sB}\ns_lshl_b32 {sA}, {sA}, 1'
           f'\ns_and_b32 {sB}, {sPI}, 1\ns_add_u32 {sA}, {sA}, {sB}\ns_add_u32 {sA}, {sA}, 32\ns_lshl_b32 {sA}, {sA}, 10\ns_add_u32 {sA}, {sA}, {sPD}\nv_add_u32 {vP4d}, {sA}, {vL16}']
    vTo = V.alloc(1, name='tileoff'); sOWN = S.alloc(1, name='ownfrag'); sB0 = S.alloc(1); sST3 = S.alloc(1)
    hf += [f's_lshl_b32 {sC}, {sTH}, 1\ns_add_u32 {sC}, {sC}, {sT32}\ns_lshl_b32 {sA}, {sT}, 2\ns_add_u32 {sA}, {sA}, {sC}\ns_lshl_b32 {sA}, {sA}, 15\ns_lshl_b32 {sB}, {sCG}, 7\ns_add_u32 {sA}, {sA}, {sB}\ns_lshl_b32 {sB}, {sN32}, 6\ns_add_u32 {sA}, {sA}, {sB}'
           f'\nv_lshlrev_b32 {vt0}, 10, {vTAU}\nv_lshl_add_u32 {vt0}, {vH}, 4, {vt0}\nv_add_u32 {vTo}, {sA}, {vt0}'
           f'\ns_lshl_b32 {sA}, {sC}, 9\ns_add_u32 {sA}, {sA}, {sREC}\nv_lshl_add_u32 {vRTo}, {vL31}, 4, {sA}'
           f'\ns_lshl_b32 {sA}, {sC}, 15\ns_add_u32 {sA}, {sA}, {sTB}\ns_lshl_b32 {sB}, {sN32}, 14\ns_add_u32 {sB0}, {sA}, {sB}\ns_add_u32 {sB0}, {sB0}, {O_H1}'
           f'\ns_lshl_b32 {sB}, {sCG}, 12\ns_add_u32 {sA}, {sA}, {sB}\ns_lshl_b32 {sB}, {sN32}, 11\ns_add_u32 {sA}, {sA}, {sB}\ns_add_u32 {sOWN}, {sA}, {O_X1}'
           f'\ns_lshl_b32 {sA}, {sC}, 12\ns_lshl_b32 {sB}, {sCG}, 9\ns_add_u32 {sA}, {sA}, {sB}\ns_lshl_b32 {sB}, {sN32}, 3\ns_add_u32 {sA}, {sA}, {sB}\ns_add_u32 {sA}, {sA}, {sTB}\ns_add_u32 {sST3}, {sA}, {O_ST3}'
           f'\ns_sub_u32 {sM[1]}, 0, {sN32}\ns_not_b32 {sM[0]}, {sM[1]}']
    S.release(sREC); V.release(vPo)
    k.emit_all(hf)
    stamp('prep')
    k.gap = o.get('gap0', 40)
    NXI = o.get('nxi', 12)
    k.bg.extend(w1_rest + xl[:NXI] + [id_load] + xl[NXI:])

    def xT(kg):
        return ([f'ds_write_b128 {vXw}, {XN.t(16*kg + 4*j, 4)} offset:{j*1152}' for j in range(4)]
                + [f'ds_read_b128 {XN.t(16*kg + 4*j, 4)}, {vXr} offset:{j*32}' for j in range(4)])

    def bg_until(L):
        while any(t in k.bg for t in L):
            k.run(k.bg.popleft())

    L1 = dsums(XP, SQ, tq, vONE)
    k.emit_all(L1[:1])
    stamp('x_in')
    k.emit_all(zipl(L1[1:], unpack(F, XP)))
    I(f'ds_write_b128 {vHw}, {HP}')
    k.emit_all(ror(SQ) + xswap(SQ, tq, 16))
    k.emit_all(finish_stats(SQ, NM[0], RI[0], REC[0], tq))
    nm = NM.t(0, 2); ri = RI.t(0, 2)
    for i in range(8):
        I(f'v_pk_add_f32 {F.t(2*i,2)}, {F.t(2*i,2)}, {nm} op_sel_hi:[1,0]')
    for i in range(8):
        I(f'v_cvt_pk_bf16_f32 {XP[i]}, {F[2*i]}, {F[2*i+1]}')
    k.emit_all(unpack(F, XP))
    for i in range(8):
        I(f'v_pk_mul_f32 {F.t(2*i,2)}, {F.t(2*i,2)}, {ri} op_sel_hi:[1,0]')
    for i in range(8):
        I(f'v_cvt_pk_bf16_f32 {XP[i]}, {F[2*i]}, {F[2*i+1]}')
    k.emit_all(dsums(XP, SQ, tq, vONE))
    k.emit_all(ror(SQ) + xswap(SQ, tq, 16))
    k.emit_all(finish_stats(SQ, None, None, REC[2], tq))
    bg_until([id_load])
    ids_check()
    I('s_mov_b32 exec_lo, 1\ns_mov_b32 exec_hi, 1')
    stores([f'buffer_store_dwordx4 {REC}, {vRW[0]}, {WS}, 0 offen'], tag='rec')
    I(f'buffer_store_dwordx4 {REC}, {vRW[1]}, {WS}, 0 offen offset:2048 sc0 sc1')
    I('s_mov_b64 exec, -1')
    stamp('rec_st')
    V.release(F, SQ, tq, NM, RI, REC, XP, HP, vHw, vJUNK, vRW, vFFFF, vID, vIDo)
    NB0 = o.get('nb0', 6)
    k.bg.extend([bdma(i) for i in range(NB0)] + rec_loads + [bdma(i) for i in range(NB0, 16)] + [w2dma(0, i) for i in range(8)])

    LAM, CF, L16, L128, LOWN, L256 = [V.at(180 + 2 * i, 2, n) for i, n in enumerate(('lam', 'coef2', 'lam16', 'lam128', 'lown', 'lam256'))]
    T = V.at(160, 8, 'ctmp')
    cc = [f'v_lshlrev_b32 {vLre}, 16, {vLre}', f'v_lshlrev_b32 {vLim}, 16, {vLim}', f'v_lshlrev_b32 {vLdt}, 16, {vLdt}',
          f'v_mul_f32 {T[0]}, {hx(LOG2E)}, {vLdt}', f'v_exp_f32 {T[0]}, {T[0]}', f'v_cvt_pk_bf16_f32 {T[0]}, {T[0]}, {T[0]}', f'v_lshlrev_b32 {T[0]}, 16, {T[0]}',
          f'v_mul_f32 {T[1]}, {T[0]}, {vLre}', f'v_mul_f32 {T[2]}, {T[0]}, {vLim}', f'v_mul_f32 {T[1]}, {hx(LOG2E)}, {T[1]}', f'v_exp_f32 {T[1]}, {T[1]}',
          f'v_mul_f32 {T[2]}, {hx(1.0 / (2 * math.pi))}, {T[2]}', f'v_rndne_f32 {T[3]}, {T[2]}', f'v_sub_f32 {T[2]}, {T[2]}, {T[3]}',
          f'v_cos_f32 {T[3]}, {T[2]}', f'v_sin_f32 {T[4]}, {T[2]}', f'v_mul_f32 {LAM[0]}, {T[1]}, {T[3]}', f'v_mul_f32 {LAM[1]}, {T[1]}, {T[4]}', f'v_add_f32 {T[0]}, -1.0, {LAM[0]}',
          f'v_mul_f32 {T[1]}, {vLre}, {vLre}', f'v_fmac_f32 {T[1]}, {vLim}, {vLim}', f'v_rcp_f32 {T[1]}, {T[1]}', f'v_add_f32 {T[1]}, {T[1]}, {T[1]}',
          f'v_mul_f32 {T[2]}, {T[0]}, {vLre}', f'v_fmac_f32 {T[2]}, {LAM[1]}, {vLim}', f'v_mul_f32 {CF[0]}, {T[2]}, {T[1]}',
          f'v_mul_f32 {T[3]}, {LAM[1]}, {vLre}', f'v_fma_f32 {T[3]}, -{T[0]}, {vLim}, {T[3]}', f'v_mul_f32 {CF[1]}, {T[3]}, {T[1]}']

    def csq(d, s):
        return [f'v_mul_f32 {d[0]}, {s[1]}, {s[1]}', f'v_mul_f32 {d[1]}, {s[0]}, {s[1]}', f'v_fma_f32 {d[0]}, {s[0]}, {s[0]}, -{d[0]}', f'v_add_f32 {d[1]}, {d[1]}, {d[1]}']

    def cmul(d, a, b):
        return [f'v_mul_f32 {d[0]}, {a[1]}, {b[1]}', f'v_mul_f32 {d[1]}, {a[0]}, {b[1]}', f'v_fma_f32 {d[0]}, {a[0]}, {b[0]}, -{d[0]}', f'v_fmac_f32 {d[1]}, {a[1]}, {b[0]}']
    Ta, Tb, Tc, Td = T.sub(0, 2), T.sub(2, 2), T.sub(4, 2), T.sub(6, 2)
    cc += csq(Ta, LAM) + csq(Tb, Ta) + csq(Ta, Tb) + csq(L16, Ta) + csq(Ta, L16) + csq(Tb, Ta) + csq(L128, Tb) + csq(L256, L128)
    cc += [f'v_mov_b32 {Td[0]}, 1.0', f'v_mov_b32 {Td[1]}, 0',
           f'v_cmp_eq_u32 vcc, 1, {vH}\nv_cndmask_b32 {Tc[0]}, {Td[0]}, {L16[0]}, vcc\nv_cndmask_b32 {Tc[1]}, {Td[1]}, {L16[1]}, vcc',
           f's_bitcmp1_b32 {sW}, 0\ns_cselect_b64 vcc, -1, 0\nv_cndmask_b32 {Ta[0]}, {Td[0]}, {Ta[0]}, vcc\nv_cndmask_b32 {Ta[1]}, {Td[1]}, {Ta[1]}, vcc',
           f's_bitcmp1_b32 {sW}, 1\ns_cselect_b64 vcc, -1, 0\nv_cndmask_b32 {Tb[0]}, {Td[0]}, {Tb[0]}, vcc\nv_cndmask_b32 {Tb[1]}, {Td[1]}, {Tb[1]}, vcc']
    cc += cmul(Td, Tc, Ta) + cmul(LOWN, Td, Tb)

    HA = V.at(64, 16, 'hacc'); WF = A.at(192, 24, 'wf')
    NXT = o.get('nxt', 2)
    bg_until(w1_rest + xl[:4*NXT])
    k.wait_vm_tag('w1')
    stamp('w1_in')
    V.release(vW1o)
    k.region()
    for i in range(8):
        b = (i % 3) * 8
        I(f'ds_read_b64_tr_b16 {WF.t(b,2)}, {vHa[1]} offset:{i*1024}\nds_read_b64_tr_b16 {WF.t(b+2,2)}, {vHa[1]} offset:{i*1024+256}\nds_read_b128 {WF.t(b+4,4)}, {vHa[0]} offset:{i*128}')
        if i >= 2:
            j = i - 2; bb = (j % 3) * 8
            k.anchor(f'v_mfma_f32_32x32x16_bf16 {HA}, {WF.t(bb,4)}, {WF.t(bb+4,4)}, {HA if j else 0}')
    for j in (6, 7):
        bb = (j % 3) * 8
        k.anchor(f'v_mfma_f32_32x32x16_bf16 {HA}, {WF.t(bb,4)}, {WF.t(bb+4,4)}, {HA}')
    for kg in range(NXT):
        k.emit_all(xT(kg))
    I('s_mov_b32 exec_lo, 7\ns_mov_b32 exec_hi, 7')
    for i in range(4):
        I(f'ds_write_b128 {vHa[2]}, {HA.t(4*i,4)} offset:{16*i}')
    I('s_mov_b64 exec, -1')
    V.release(HA, vHa)
    k.barrier()
    stamp('g3_go')

    KK = V.alloc(4, 2, 'k0 k1 nm sd'); KH_ = V.alloc(4, 2, 'halo k0 k1 nm sd'); e4 = V.at(168, 8, 'e4')
    hf = []
    for w in range(4):
        hf += [f'ds_read_b32 {hz[w]}, {hz[8]} offset:{w*384}', f'ds_read_b32 {hz[4+w]}, {hz[11]} offset:{w*384}']
    hf += cc[:12]
    hf += [f'v_add_f32 {hz[0]}, {hz[0]}, {hz[1]}', f'v_add_f32 {hz[2]}, {hz[2]}, {hz[3]}', f'v_add_f32 {hz[4]}, {hz[4]}, {hz[5]}', f'v_add_f32 {hz[6]}, {hz[6]}, {hz[7]}', f'v_add_f32 {HZ[0]}, {hz[0]}, {hz[2]}', f'v_add_f32 {HZ[1]}, {hz[4]}, {hz[6]}']
    hf += [f'ds_write_b32 {hz[10]}, {HZ[1]}'] + [f'ds_read_b128 {CS1.t(4*i,4)}, {hz[12]} offset:{16*i}' for i in range(4)]
    hf += cc[12:]
    rtest = [f'v_xor_b32 {e4[0]}, {RP[1]}, {vTAGV}', f'v_xor_b32 {e4[1]}, {RP[3]}, {vTAGV}', f'v_xor_b32 {e4[4]}, {RH[1]}, {vTAGV}', f'v_xor_b32 {e4[5]}, {RH[3]}, {vTAGV}',
             f'v_or_b32 {e4[0]}, {e4[0]}, {e4[1]}', f'v_or_b32 {e4[4]}, {e4[4]}, {e4[5]}', f'v_and_or_b32 {e4[1]}, {e4[4]}, {sHE}, {e4[0]}', f'v_cmp_ne_u32 vcc, 0, {e4[1]}']

    def tokconst(R, K_, t):
        return [f'v_lshlrev_b32 {t[0]}, 16, {R[0]}', f'v_and_b32 {t[1]}, {vMASK}, {R[0]}', f'v_lshlrev_b32 {t[2]}, 16, {R[2]}', f'v_and_b32 {t[3]}, {vMASK}, {R[2]}',
                f'v_mul_f32 {K_[3]}, {t[1]}, {t[3]}', f'v_rcp_f32 {t[3]}, {K_[3]}', f'v_fma_f32 {K_[2]}, -{t[2]}, {t[1]}, -{t[0]}',
                f'v_mul_f32 {K_[0]}, {hx(GC0)}, {t[3]}', f'v_mul_f32 {t[2]}, {t[3]}, {t[3]}', f'v_mul_f32 {t[3]}, {hx(GC1)}, {t[3]}', f'v_mul_f32 {K_[1]}, {t[2]}, {t[3]}']
    z, u = HZ[0], HZ[1]
    halo = [f'v_fmac_f32 {z}, {KH_[2]}, {u}', f'v_mul_f32 {u}, {z}, {z}', f'v_fma_f32 {u}, {u}, {KH_[1]}, {KH_[0]}', f'v_mul_f32 {u}, {u}, {z}', f'v_exp_f32 {u}, {u}', f'v_fma_f32 {u}, {u}, {KH_[3]}, {KH_[3]}',
            f'v_rcp_f32 {u}, {u}', f'v_mul_f32 {u}, {u}, {z}', f'v_cvt_pk_bf16_f32 {u}, {u}, {u}', f'v_and_b32 {u}, {sHE}, {u}']
    hf += [At(o.get('rec_at', 24)), Item(lambda k_: (bg_until(rec_loads), retry(rec_loads, rtest, 'rec'), stamp('rec_in')), 12)]
    hf += zipl(tokconst(RP, KK, e4.sub(0, 4)), tokconst(RH, KH_, e4.sub(4, 4))) + halo
    hf += [f'v_rcp_f32 {e4[1]}, {e4[1]}', f's_lshl_b32 {sA}, {sW}, 8\ns_add_u32 {sA}, {sA}, {L_TOK2}\nv_lshl_add_u32 {vt0}, {vTAU}, 2, {sA}', f'ds_write2_b32 {vt0}, {e4[0]}, {e4[1]} offset1:32']
    k.fill.extend(hf)

    A3 = V.at(64, 16, 'a3')
    NB, AH = 6, 3

    def w1read(ks):
        b = (ks % NB) * 4
        return [f'ds_read_b64_tr_b16 {WF.t(b,2)}, {vW1r} offset:{ks*1024}', f'ds_read_b64_tr_b16 {WF.t(b+2,2)}, {vW1r} offset:{ks*1024+256}']
    g3 = []
    for ks in range(AH):
        g3 += w1read(ks)
    for ks in range(32):
        kg = ks // 4 + NXT
        if kg < 8:
            T_ = xT(kg)
            g3 += {0: [lambda k_, kg=kg: bg_until(xl[:4*kg+4])] + T_[0:2], 1: T_[2:5], 2: T_[5:8], 3: []}[ks % 4]
        if ks + AH < 32:
            g3 += w1read(ks + AH)
        g3.append(f'v_mfma_f32_32x32x16_bf16 {A3}, {WF.t((ks % NB)*4,4)}, {XN.t(4*ks,4)}, {A3 if ks else 0}')
        if ks in (7, 15, 23):
            g3 += fstamp(f'g3_{ks+1}')
    k.region()
    k.slack = o.get('slack3', 24)
    k.emit_all(g3)
    k.slack = 0
    k.drain_fill()
    stamp('g3_done')
    V.release(hz, vXw, vXr, vXo, T, vLre, vLim, vLdt)
    S.release(sXJ)

    def gelu_pk(Z, CS, K_, t, outs):
        n = Z.n // 2
        P = lambda R, i: R.t(2 * i, 2)
        k01, k23 = K_.t(0, 2), K_.t(2, 2)
        L = []
        for i in range(n): L.append(f'v_pk_fma_f32 {P(Z,i)}, {P(CS,i)}, {k23}, {P(Z,i)} op_sel_hi:[1,0,1]')
        for i in range(n): L.append(f'v_pk_mul_f32 {P(t,i)}, {P(Z,i)}, {P(Z,i)}')
        for i in range(n): L.append(f'v_pk_fma_f32 {P(t,i)}, {P(t,i)}, {k01}, {k01} op_sel:[0,1,0] op_sel_hi:[1,1,0]')
        for i in range(n): L.append(f'v_pk_mul_f32 {P(t,i)}, {P(t,i)}, {P(Z,i)}')
        for i in range(2 * n): L.append(f'v_exp_f32 {t[i]}, {t[i]}')
        for i in range(n): L.append(f'v_pk_fma_f32 {P(t,i)}, {P(t,i)}, {k23}, {k23} op_sel:[0,1,1] op_sel_hi:[1,1,1]')
        for i in range(2 * n): L.append(f'v_rcp_f32 {t[i]}, {t[i]}')
        for i in range(n): L.append(f'v_pk_mul_f32 {P(t,i)}, {P(t,i)}, {P(Z,i)}')
        for i in range(n): L.append(f'v_cvt_pk_bf16_f32 {outs[i]}, {t[2*i]}, {t[2*i+1]}')
        return L

    def gelu_1(Z, CS, K_, t, outs):
        n = Z.n
        L = []
        for i in range(n): L.append(f'v_fmac_f32 {Z[i]}, {CS[i]}, {K_[2]}')
        for i in range(n): L.append(f'v_mul_f32 {t[i]}, {Z[i]}, {Z[i]}')
        for i in range(n): L.append(f'v_fma_f32 {t[i]}, {t[i]}, {K_[1]}, {K_[0]}')
        for i in range(n): L.append(f'v_mul_f32 {t[i]}, {t[i]}, {Z[i]}')
        for i in range(n): L.append(f'v_exp_f32 {t[i]}, {t[i]}')
        for i in range(n): L.append(f'v_fma_f32 {t[i]}, {t[i]}, {K_[3]}, {K_[3]}')
        for i in range(n): L.append(f'v_rcp_f32 {t[i]}, {t[i]}')
        for i in range(n): L.append(f'v_mul_f32 {t[i]}, {t[i]}, {Z[i]}')
        for i in range(n // 2): L.append(f'v_cvt_pk_bf16_f32 {outs[i]}, {t[2*i]}, {t[2*i+1]}')
        return L
    GT = V.at(128, 16, 'gt'); HP2 = V.at(104, 8, 'h1p')
    k.lock += o.get('quiet3', 0)
    k.emit_all(gelu_pk(A3, CS1, KK, GT, [HP2[i] for i in range(8)]))
    stores([f'buffer_store_dwordx4 {HP2.t(0,4)}, {vH1o}, {WS}, {sH1} offen', f'buffer_store_dwordx4 {HP2.t(4,4)}, {vH1o}, {WS}, {sH1} offen offset:1024',
            f'buffer_store_short {u}, {vHHo}, {WS}, {sH1} offen'])
    k.lock -= o.get('quiet3', 0)
    stamp('h1_st')
    V.release(A3, CS1, KK, KH_, e4, GT, RP, RH, vRo, vRHo, vH1o, vHHo, HZ, vW1r)
    S.release(sH1, sHE)

    CQ = V.at(240, 4, 'cpiece'); PT = V.at(244, 8, 'pt')

    def c_raw(k_):
        I(f's_bitcmp1_b32 {sPI}, 0\ns_cbranch_scc1 L_cim')
        k.raw(f'  buffer_load_dwordx4 {CQ}, {vCo}, {SRD["CRE"]}, 0 offen\n  s_branch L_cdone\nL_cim:')
        I(f'buffer_load_dwordx4 {CQ}, {vCo}, {SRD["CIM"]}, 0 offen #craw')
        k.label('L_cdone')
    XT = V.at(96, 8, 'xtile'); XNT = V.alloc(8, 4, 'xnt'); RT = V.at(252, 4, 'rect')
    xt_loads = [f'buffer_load_dwordx4 {XT.t(0,4)}, {vTo}, {SRD["X"]}, 0 offen', f'buffer_load_dwordx4 {XT.t(4,4)}, {vTo}, {SRD["X"]}, 0 offen offset:32']
    rt_load = f'buffer_load_dwordx4 {RT}, {vRTo}, {WS}, 0 offen sc1'
    bg_until([bdma(15)])
    S.release(sBs, sBd)
    k.gap = o.get('gap1', 64)
    rest = list(k.bg); k.bg.clear()
    k.bg.extend([rt_load] + xt_loads + rest + [c_raw, f's_mov_b32 m0, {sXS}\nbuffer_load_dwordx4 {vP4o}, {SRD["W4"]}, 0 offen lds #praw',
                 f's_add_u32 m0, {sXS}, 1024\ns_movk_i32 {sBG}, 16384\nbuffer_load_dwordx4 {vP4o}, {SRD["W4"]}, {sBG} offen lds #praw'])
    k.wait_vm_tag('b')
    k.barrier()
    stamp('g1_go')
    k.bg.extend(w2dma(1, i) for i in range(8))

    ARE = V.at(128, 16, 'are'); AIM = V.at(144, 16, 'aim')
    ACC = [V.at(64, 16, 'acc4a'), V.at(80, 16, 'acc4b')]
    a0 = ACC[0]
    xn = [Item(lambda k_: (bg_until([rt_load] + xt_loads), retry([rt_load], [f'v_xor_b32 {vt0}, {RT[1]}, {vTAGV}', f'v_cmp_ne_u32 vcc, 0, {vt0}'], 'rt')), 16),
          f'v_and_b32 {RT[1]}, {vMASK}, {RT[0]}', f'v_lshlrev_b32 {RT[0]}, 16, {RT[0]}', f'v_rcp_f32 {RT[1]}, {RT[1]}']
    xn += unpack(a0, XT)
    xn += [f'v_sub_f32 {a0[i]}, {a0[i]}, {RT[0]}' for i in range(16)]
    xn += [f'v_cvt_pk_bf16_f32 {XNT[i]}, {a0[2*i]}, {a0[2*i+1]}' for i in range(8)]
    xn += unpack(a0, XNT)
    xn += [f'v_mul_f32 {a0[i]}, {a0[i]}, {RT[1]}' for i in range(16)]
    xn += [f'v_cvt_pk_bf16_f32 {XNT[i]}, {a0[2*i]}, {a0[2*i+1]}' for i in range(8)]
    xn += unpack(a0, XNT)

    pst = [f'v_add_u32 {vt3}, {sXS}, {vTRI}', '@waitvm praw']
    pst += [f'ds_read_b64_tr_b16 {PT.t(4*s+2*rd,2)}, {vt3} offset:{s*1024 + rd*256}' for s in range(2) for rd in range(2)]
    pst += [f'buffer_store_dwordx4 {CQ}, {vPCd}, {WS}, 0 offen sc0 sc1 #wt', f's_cmp_eq_u32 {sW}, 3\ns_cselect_b32 {sA}, 0x80000000, 0',
            f'buffer_store_dwordx4 {PT.t(0,4)}, {vP4d}, {WS}, 0 offen sc0 sc1 #wt', f'buffer_store_dwordx4 {PT.t(4,4)}, {vP4d}, {WS}, {sA} offen offset:2048 sc0 sc1 #wt']

    Q = Quads()
    k.Q = Q
    QA1 = A.at(128, 64, 'qa1'); Q.add(QA1)

    class Stream:
        def __init__(s, r):
            s.r = r; s.base = 0

        def at(s, off):
            assert off >= s.base
            if off >= s.base + 4096:
                nb = off & ~4095
                I(f's_add_u32 {s.r}, {s.r}, {nb - s.base}')
                s.base = nb
            return off - s.base

    def act_load(key, pos, st):
        def f(k_):
            q = Q.take(key)
            off = st.at(pos * 1024)
            I(f'buffer_load_dwordx4 {q}, {vL16}, {WS}, {st.r} offen offset:{off}' + o.get('actmod', ' sc1'))
        return f
    vFV = V.alloc(1, name='flagval')

    def h1_go(k_):
        lazy_check(vFV, sFL, 256, sM)
        stamp('h1_seen')
        st = Stream(sB0)
        k.hi.extend(act_load(('h1', ks, 0), ks, st) for ks in range(16))
    ONES = V.at(200, 4, 'ones'); CSD = V.at(204, 4, 'csd')
    k.fill.extend([f'v_mov_b32 {ONES[i]}, 0x3f803f80' for i in range(4)] + [At(o.get('pub1at', 6)), Item(lambda k_: (publish(1), stamp('h1_pub')), 24), At(o.get('xn_at', 12))] + xn + [At(o.get('pst_at', 40))] + pst)
    late1 = [At(o.get('h1f', 36)), flag_load(vFV, sFL, 256), At(o.get('h1c', 52)), Item(h1_go, 12)]

    def bread(i):
        if i >= 64:
            return f'ds_read_b128 {WF.t((i % NB)*4,4)}, {vCSr} offset:{(i-64)*64}'
        return f'ds_read_b128 {WF.t((i % NB)*4,4)}, {vBr} offset:{(i//2)*32 + (32*BROW if i % 2 else 0)}'
    g1 = [bread(i) for i in range(4)]
    for i in range(80):
        if i + 4 < 80:
            g1.append(bread(i + 4))
        if i == o.get('h1f', 36):
            g1.append(flag_load(vFV, sFL, 256))
        if i == o.get('h1c', 52):
            g1.append(h1_go)
        if i < 64:
            acc = AIM if i % 2 else ARE
            g1.append(f'v_mfma_f32_32x32x16_bf16 {acc}, {XN.t(4*(i//2),4)}, {WF.t((i % NB)*4,4)}, {acc if i >= 2 else 0}')
        else:
            g1.append(f'v_mfma_f32_16x16x32_bf16 {CSD}, {ONES}, {WF.t((i % NB)*4,4)}, {CSD if i > 64 else 0}')
        if i in (15, 31, 47, 63):
            g1 += fstamp(f'g1_{i+1}')
    k.region()
    k.emit_all(g1)
    k.drain_fill()
    I(f'ds_write_b32 {vCSw}, {CSD[0]}')
    stamp('g1_done')
    A.release(XN)
    k.drain_bg()
    V.release(HP2, vBr, vCo, vP4o, vPCd, vP4d, CQ, PT, RT, vRTo, XT, vW2o, vCSr, vCSw, ONES, CSD)
    S.release(sPI, sXS)
    k.wait_vm_tag('w2'); k.wait_vm_tag('wt')
    k.barrier()
    I('s_mov_b64 exec, 1')
    I(f'buffer_store_dword {vTAGV}, {vZERO}, {WS}, {sWF} offen sc0 sc1')
    I('s_mov_b64 exec, -1')
    S.release(sWF)
    stamp('g4_go')

    sW3d = S.alloc(1, name='w3dst'); sSTG = S.alloc(1, name='stgbase')
    I(f's_mul_i32 {sW3d}, {sW}, 7168\ns_mul_i32 {sSTG}, {sW}, {STGW}\ns_add_u32 {sSTG}, {sSTG}, {L_UP}')
    sW3s = sW1d

    def w3_dma(q):
        L = []
        for n in range(7):
            m0 = f's_add_u32 m0, {sW3d}, {q*4*7168 + n*1024}' if q < 3 else f's_add_u32 m0, {sSTG}, {n*1024}'
            if n == 0:
                m0 += f'\ns_mov_b32 {sW3s}, {q*4*32*3584}'
            L.append(f'{m0}\nbuffer_load_dwordx4 {vW3o[n]}, {SRD["W3"]}, {sW3s} offen lds #w3' + ('b' if q == 3 else ''))
        return L
    k.bg.extend(w3_dma(0) + w3_dma(1))

    def w2read(i):
        ks, ni = i // 2, i % 2
        b = (i % NB) * 4
        return [f'ds_read_b64_tr_b16 {WF.t(b+2*rd,2)}, {vW2r[ni]} offset:{ks*2048 + rd*512}' for rd in range(2)]
    g4 = []
    for i in range(AH):
        g4 += w2read(i)
    for i in range(32):
        if i + AH < 32:
            g4 += w2read(i + AH)

        def f(k_, i=i):
            ks, ni = i // 2, i % 2
            I(f'v_mfma_f32_32x32x16_bf16 {ACC[ni]}, {WF.t((i % NB)*4,4)}, {Q[("h1", ks, 0)]}, {ACC[ni] if (ks or ni == 0) else 0}')
            if ni == 1:
                Q.give(('h1', ks, 0))
        g4.append(Anchor(f))
    TM = V.at(200, 32, 'tokm'); CSB = V.alloc(2, 2, 'csb')
    sc = [f'v_lshlrev_b32 {vt0}, 2, {vL31}', f'v_add_u32 {vt0}, {L_CSB}, {vt0}',
          f'ds_read2_b32 {CSB}, {vt0} offset1:32',
          f's_lshl_b32 {sA}, {sW}, 8\ns_add_u32 {sA}, {sA}, {L_TOK2}\nv_lshl_add_u32 {vt0}, {vH}, 6, {sA}']
    sc += [f'ds_read_b128 {TM.t(4*i,4)}, {vt0} offset:{(i//4)*128 + (i%4)*16}' for i in range(8)]
    for r in range(16):
        sc += [f'v_fma_f32 {ARE[r]}, -{TM[r]}, {CSB[0]}, {ARE[r]}', f'v_fma_f32 {AIM[r]}, -{TM[r]}, {CSB[1]}, {AIM[r]}']
    for r in range(16):
        sc += [f'v_mul_f32 {ARE[r]}, {TM[16+r]}, {ARE[r]}', f'v_mul_f32 {AIM[r]}, {TM[16+r]}, {AIM[r]}']
    G = V.alloc(2, 2, 'g'); gt = V.alloc(4, 2)

    class V2:
        def __init__(s, a, b): s.r = (a, b)
        def __getitem__(s, i): return s.r[i]
    cur, oth = V2(ARE[0], AIM[0]), G
    nxt = gt.sub(0, 2)
    for r in range(1, 16):
        sc += [f'v_fma_f32 {oth[0]}, {LAM[0]}, {cur[0]}, {ARE[r]}', f'v_fma_f32 {oth[1]}, {LAM[0]}, {cur[1]}, {AIM[r]}',
               f'v_fma_f32 {oth[0]}, -{LAM[1]}, {cur[1]}, {oth[0]}', f'v_fma_f32 {oth[1]}, {LAM[1]}, {cur[0]}, {oth[1]}']
        cur, oth = oth, (nxt if r == 1 else cur)
    sc += [f's_lshl_b32 {sA}, {sW}, 9\ns_add_u32 {sA}, {sA}, {L_SEG}\nv_lshl_add_u32 {vt0}, {vL}, 3, {sA}', f'ds_write_b64 {vt0}, {cur.t(0,2)}']
    k.fill.extend([f's_xor_b32 {sA}, {sW}, 1\ns_lshl_b32 {sA}, {sA}, 12\ns_add_u32 {sA}, {sA}, {L_RED4}\nv_add_u32 {vt1}, {sA}, {vL16}\nv_xor_b32 {vt2}, 4096, {vt1}'] + sc)
    k.drain_hi()
    k.region()
    k.emit_all(g4)
    stamp('g4_mfma')
    k.lock += 1
    for q in range(4):
        I(f'ds_write_b128 {vt1}, {ACC[1].t(4*q,4)} offset:{q*1024}')
    k.barrier()
    for q in range(4):
        I(f'ds_read_b128 {ACC[1].t(4*q,4)}, {vt2} offset:{q*1024}')
    for q in range(8):
        I(f'v_pk_add_f32 {a0.t(2*q,2)}, {a0.t(2*q,2)}, {ACC[1].t(2*q,2)}')
    X1P = V.alloc(8, 4, 'x1p')
    for i in range(8):
        I(f'v_cvt_pk_bf16_f32 {X1P[i]}, {a0[2*i]}, {a0[2*i+1]}')
    SQ = ACC[1].sub(0, 2); tq = ACC[1].sub(2, 2)
    stores([f'buffer_store_dwordx4 {X1P.t(0,4)}, {vL16}, {WS}, {sOWN} offen', f'buffer_store_dwordx4 {X1P.t(4,4)}, {vL16}, {WS}, {sOWN} offen offset:1024'])
    k.emit_all(dsums(X1P, SQ, tq, vONE)); k.emit_all(xswap(SQ, tq, 32))
    I('s_mov_b32 exec_hi, 0')
    stores([f'buffer_store_dwordx2 {SQ}, {vL16}, {WS}, {sST3} offen'])
    I('s_mov_b64 exec, -1')
    k.lock -= 1
    stamp('x1_st')
    k.bg.extend(w3_dma(2))
    S.release(sOWN, sST3)
    k.drain_fill()
    V.release(TM, CSB, vW2r, vONE); A.release(WF)
    for a in ACC: V.release(a)
    k.barrier()
    k.bg.extend(w3_dma(3))

    E = V.at(64, 16, 'segs')
    I(f'v_lshlrev_b32 {vt0}, 3, {vL31}\nv_add_u32 {vt0}, {L_SEG}, {vt0}')
    for s in range(8):
        I(f'ds_read_b64 {E.t(2*s,2)}, {vt0} offset:{s*256}')
    publish(2)
    stamp('x1_pub')
    CIN = V.alloc(2, 2, 'cin'); P = V2(E[0], E[1]); Qq = gt.sub(2, 2); Q2 = gt.sub(0, 2)
    I(f's_lshl_b32 {sA}, {sW}, 1\nv_add_u32 {vt0}, {sA}, {vH}\nv_mov_b32 {CIN[0]}, 0\nv_mov_b32 {CIN[1]}, 0')
    for s in range(1, 8):
        I(f'v_cmp_eq_u32 vcc, {s}, {vt0}\nv_fma_f32 {Qq[0]}, {L16[0]}, {P[0]}, {E[2*s]}\nv_fma_f32 {Qq[1]}, {L16[0]}, {P[1]}, {E[2*s+1]}'
          f'\nv_cndmask_b32 {CIN[0]}, {CIN[0]}, {P[0]}, vcc\nv_cndmask_b32 {CIN[1]}, {CIN[1]}, {P[1]}, vcc')
        I(f'v_fma_f32 {Qq[0]}, -{L16[1]}, {P[1]}, {Qq[0]}\nv_fma_f32 {Qq[1]}, {L16[1]}, {P[0]}, {Qq[1]}')
        P, Qq = Qq, (Q2 if s == 1 else P)
    I(f'v_mov_b32 {E[0]}, {P[0]}\nv_mov_b32 {E[1]}, {vTAGV}\nv_mov_b32 {E[2]}, {P[1]}\nv_mov_b32 {E[3]}, {vTAGV}')
    sSC = S.alloc(1, name='scanbase')
    I(f's_lshl_b32 {sSC}, {sJ}, 9\ns_add_u32 {sSC}, {sSC}, {O_SCAN}\ns_lshl_b32 {sA}, {sT}, 13\ns_add_u32 {sA}, {sA}, {sSC}\nv_lshlrev_b32 {vt0}, 4, {vL31}')
    I(f's_cmp_lg_u32 {sW}, 0\ns_cselect_b32 {sA}, 0x80000000, {sA}\ns_mov_b32 exec_hi, 0')
    I(f'buffer_store_dwordx4 {E.t(0,4)}, {vt0}, {WS}, {sA} offen sc0 sc1')
    I('s_mov_b64 exec, -1')
    V.release(E, G, gt, L16)
    stamp('scan1')

    sWT = S.alloc(1, name='wtbase'); sWB = S.alloc(1, name='wtb'); vWTF = V.alloc(2, 1)
    I(f's_lshl_b32 {sA}, {sCG}, 2\ns_add_u32 {sA}, {sA}, {sW}\ns_lshl_b32 {sB}, {sA}, 10\ns_add_u32 {sB}, {sB}, {O_WTF}\ns_mul_i32 {sWT}, {sA}, {WTS}\ns_add_u32 {sWT}, {sWT}, {O_WT}\ns_add_u32 {sWB}, {sWT}, 65536')
    I(f'v_and_b32 {vWTF[1]}, 7, {vL}\nv_lshl_add_u32 {vWTF[1]}, {vWTF[1]}, 7, {sB}')
    wtf_load = f'buffer_load_dword {vWTF[0]}, {vWTF[1]}, {WS}, 0 offen sc1'
    I(wtf_load)
    I(flag_load(vFV, sFL, 512))
    stWT = Stream(sWT); stWB = Stream(sWB)
    k.raw('; WTSTART')

    def wt_load(key, frag):
        def f(k_):
            q = Q.take(key)
            off = stWT.at(frag * 1024)
            I(f'buffer_load_dwordx4 {q}, {vLN[key[2]]}, {WS}, {sWT} offen offset:{off}')
        return f

    def wb_load(i):
        def f(k_):
            off = stWB.at(i * 1024)
            if i % 2 == 0:
                I(f's_add_u32 m0, {sL4}, {(i // 2) * 8192 - off}' if i else f's_mov_b32 m0, {sL4}')
            I(f'buffer_load_dwordx4 {vL16}, {WS}, {sWB} offen offset:{off} lds #wb')
        return f
    sHS = [S.alloc(1), S.alloc(1)]; sHH = [S.alloc(1), S.alloc(1)]; sL4 = S.alloc(1); sB1 = S.alloc(1)
    stX = Stream(sB0); stHS = [Stream(r) for r in sHS]; stH = [Stream(r) for r in sHH]
    req = [(ks, ('xa', ks, 0), 'x1', act_load(('xa', ks, 0), ks, stX)) for ks in range(32)]
    for kc in range(16):
        req += [(100 + kc, ('c', kc, ni), 'wt', wt_load(('c', kc, ni), 2 * kc)) for ni in range(2)]
        req += [(100 + kc, ('hs', kc, ti), 'hs', act_load(('hs', kc, ti), kc, stHS[ti])) for ti in range(2)]
    for n in range(28):
        if n < 16:
            req += [(200 + n, ('w4', n, ni), 'wt', wt_load(('w4', n, ni), 32 + 2 * n)) for ni in range(2)]
        else:
            req += [(o.get('wb_pri', 90) + 0.01 * n, ('wb', n, ni), 'wb' if n < 23 else 'wb2', wb_load(2 * (n - 16) + ni)) for ni in range(2)]
        req += [(200 + n, ('h', n, ti), 'ha' if n < 16 else 'hb', act_load(('h', n, ti), n, stH[ti])) for ti in range(2)]
    req.sort(key=lambda r: r[0])
    c.avail = set(); c.xlim = 0; c.res = 0; c.wcap = 0
    PF5 = o.get('pf5', 8)

    def nheld(name):
        return sum(1 for q in Q.map if q[0] == name)

    def nreq(name):
        return sum(1 for r in req if r[1][0] == name)

    def pick(dt, force=None):
        for r in req:
            u, key, grp, fn = r
            if force is not None:
                if key != force:
                    if key[0] == force[0] and key[2] == force[2]:
                        raise RuntimeError(('order', key, force))
                    continue
                assert grp in c.avail, key
            else:
                if grp not in c.avail or (key[0] == 'xa' and u >= c.xlim):
                    continue
                if key[0] == 'w4' and u - 200 >= c.wcap:
                    continue
                if dt < (k.gap if grp in ('wt', 'wb', 'wb2') else k.higap):
                    return None
                res = c.res + (max(0, PF5 + 1 - nheld('xa')) if nreq('xa') and key[0] != 'xa' else 0)
                if key[0] == 'hs': res -= c.res
                if key[0] != 'wb' and len(Q.free) <= res * (key[0] != 'xa'):
                    continue
            req.remove(r)
            c.iss[key] = k.t
            return fn
        return None

    def need(*keys):
        for key in keys:
            if key not in c.use: c.use[key] = k.t
            if not Q.has(key):
                c.late.append(key)
                if key[0] == 'w4':
                    while nreq('c'):
                        k.run(pick(0, force=[r[1] for r in req if r[1][0] == 'c'][0]))
                k.run(pick(0, force=key))
    c.late = []; c.iss = {}; c.use = {}
    k.src = pick
    QA0 = A.at(0, 128, 'qa0'); QA3 = A.at(192, 64, 'qa3')
    Q.add(QA3); Q.add(QA0)

    vW3r = V.alloc(6, 1, 'w3rd')
    I(f'v_bfe_u32 {vt1}, {vL}, 4, 1\nv_lshlrev_b32 {vt2}, 2, {vt1}\nv_bfe_u32 {vt0}, {vL}, 2, 2\nv_add_u32 {vt0}, {vt0}, {vt2}\nv_lshlrev_b32 {vt0}, 5, {vt0}\nv_lshl_add_u32 {vt0}, {vt1}, 8, {vt0}'
      f'\nv_and_b32 {vt1}, 1, {vL}\nv_lshl_add_u32 {vt0}, {vt1}, 4, {vt0}\nv_bfe_u32 {vt1}, {vL}, 1, 1\nv_lshl_add_u32 {vt0}, {vt1}, 3, {vt0}\nv_mul_u32_u24 {vt1}, 1792, {vH}\nv_add_u32 {vW3r[0]}, {vt0}, {vt1}\nv_xor_b32 {vW3r[1]}, 128, {vW3r[0]}')
    I(f'v_add_u32 {vW3r[2]}, {L_W3B}, {vW3r[0]}\nv_add_u32 {vW3r[3]}, {L_W3B}, {vW3r[1]}\nv_add_u32 {vW3r[4]}, {L_UP}, {vW3r[0]}\nv_add_u32 {vW3r[5]}, {L_UP}, {vW3r[1]}')
    I(f's_lshl_b32 {sB}, {sN32}, 1\ns_lshl_b32 {sA}, 0x33333333, {sB}\ns_bitcmp1_b32 {sW}, 1\ns_cselect_b32 {sM[0]}, 0, {sA}\ns_cselect_b32 {sM[1]}, {sA}, 0')
    I(f's_lshl_b32 {sB0}, {sW}, 15\ns_add_u32 {sB0}, {sB0}, {sTB}\ns_add_u32 {sB0}, {sB0}, {O_X1}')
    I(f's_lshl_b32 {sB1}, {sW}, 12\ns_add_u32 {sB1}, {sB1}, {sTB}\ns_add_u32 {sB1}, {sB1}, {O_ST3}')
    sM2 = S.alloc(2, 2)
    I(f's_lshl_b32 {sB}, {sTH}, 1\ns_lshl_b32 {sA}, 0x3333, {sB}\ns_lshl_b32 {sC}, {sW}, 4\ns_mov_b32 {sM2[0]}, {sA}\ns_mov_b32 {sM2[1]}, 0\ns_lshl_b64 {sM2}, {sM2}, {sC}')

    def act_base(dst, off, kpt, k0mul):
        for ti in range(2):
            I(f's_xor_b32 {sA}, {sT32}, {ti}\ns_lshl_b32 {sB}, {sTH}, 1\ns_add_u32 {sA}, {sA}, {sB}\ns_mul_i32 {sA}, {sA}, {kpt}\ns_mul_i32 {sB}, {sW}, {k0mul}\ns_add_u32 {sA}, {sA}, {sB}\ns_lshl_b32 {sA}, {sA}, 10\ns_add_u32 {sA}, {sA}, {sTB}\ns_add_u32 {dst[ti]}, {sA}, {off}')
    act_base(sHS, O_HS, 64, 16)
    act_base(sHH, O_H, 112, 28)
    sHSo = S.alloc(1); sHa = S.alloc(1); sHb = S.alloc(1)
    I(f's_lshl_b32 {sA}, {sW}, 6\ns_lshl_b32 {sB}, {sJ}, 2\ns_add_u32 {sA}, {sA}, {sB}\ns_lshl_b32 {sA}, {sA}, 10\ns_add_u32 {sA}, {sA}, {sTB}\ns_add_u32 {sHSo}, {sA}, {O_HS}')
    I(f's_mul_i32 {sA}, {sW}, 112\ns_lshr_b32 {sB}, {sJ}, 2\ns_mul_i32 {sB}, {sB}, 28\ns_add_u32 {sA}, {sA}, {sB}\ns_lshl_b32 {sA}, {sA}, 10\ns_add_u32 {sA}, {sA}, {sTB}\ns_add_u32 {sA}, {sA}, {O_H}'
      f'\ns_and_b32 {sB}, {sJ}, 3\ns_lshl_b32 {sC}, {sB}, 12\ns_add_u32 {sHa}, {sA}, {sC}\ns_mul_i32 {sC}, {sB}, 3072\ns_add_u32 {sHb}, {sA}, {sC}\ns_add_u32 {sHb}, {sHb}, 16384\ns_lshl_b32 {sL4}, {sW}, 11')
    vREDw = V.alloc(3, 1, 'redw'); vREDr = V.alloc(1, name='redr')
    for i in range(1, 4):
        I(f's_xor_b32 {sA}, {sW}, {i}\ns_mul_i32 {sA}, {sA}, 12288\ns_add_u32 {sA}, {sA}, {L_RED + (i-1)*4096}\nv_add_u32 {vREDw[i-1]}, {sA}, {vL16}')
    I(f'v_add_u32 {vREDr}, {sSTG}, {vL16}')
    k.drain_bg()
    V.release(vW3o); S.release(sW3s)

    WF = V.at(192, 24, 'wf5'); ONES = V.at(216, 4, 'ones'); CS3 = V.at(64, 28, 'cs3')
    EG = V.at(220, 32, 'eg'); vEGo = V.alloc(1); SP = V.at(160, 16, 'sp')
    vcs = V.alloc(3, 1)
    for i in range(4):
        I(f'v_mov_b32 {ONES[i]}, 0x3f803f80')
    I(f'v_bfe_u32 {vt0}, {vL}, 2, 2\nv_lshlrev_b32 {vt0}, 5, {vt0}\nv_and_b32 {vt1}, 3, {vL}\nv_lshl_add_u32 {vt0}, {vt1}, 3, {vt0}\nv_lshrrev_b32 {vt1}, 4, {vL}\nv_mul_u32_u24 {vt1}, 1792, {vt1}\nv_add_u32 {vt0}, {vt0}, {vt1}')
    I(f'v_add_u32 {vcs[0]}, {sW3d}, {vt0}\nv_add_u32 {vcs[2]}, {sSTG}, {vt0}\nv_add_u32 {vcs[1]}, {L_W3B}, {vcs[0]}')
    S.release(sW3d)
    I(f's_sub_u32 {sA}, {sT}, 1\nv_sub_u32 {vt0}, {sA}, {vH}\nv_lshlrev_b32 {vt0}, 13, {vt0}\nv_lshl_add_u32 {vEGo}, {vL31}, 4, {vt0}')
    eg_loads = [f'v_subrev_u32 {vt3}, {i*16384}, {vEGo}\nbuffer_load_dwordx4 {EG.t(4*i,4)}, {vt3}, {WS}, {sSC} offen sc1' for i in range(8)]

    def x1_go():
        lazy_check(vFV, sFL, 512, sM)
        stamp('x1_seen')
        c.avail.add('x1')
        k.hi.extend([pick(0, force=('xa', ks, 0)) for ks in range(PF5)])
        k.hi.extend(f'buffer_load_dwordx4 {SP.t(4*i_,4)}, {vL16}, {WS}, {sB1} offen offset:{i_*1024} sc1' for i_ in range(4))

    def wt_go(k_=None):
        retry([wtf_load], [f'v_cmp_ne_u32 vcc, {vWTF[0]}, {vTAGV}'], 'wtf')
        stamp('wt_seen')
        c.avail.add('wt'); c.wcap = o.get('nw4', 7); c.res = o.get('hsres', 8)
    wt_go()
    for kc in range(o.get('nc0', 6)):
        for ni in range(2):
            k.run(pick(0, force=('c', kc, ni)))
    if o.get('x1c', 0) < 0:
        x1_go()
    cj = [(t, s) for s in range(4) for t in range(7)]
    k.region()
    for i in range(len(cj) + 3):
        if i == o.get('x1c', 0):
            x1_go()
        if i < len(cj):
            t, s = cj[i]; b = (i % 6) * 4
            if i == 0 or i == 21:
                k.drain_hi()
                k.wait_vm_tag('w3b' if i == 21 else 'w3')
            for rd in range(2):
                I(f'ds_read_b64_tr_b16 {WF.t(b+2*rd,2)}, {vcs[[0, 0, 1, 2][s]]} offset:{(4*7168 if s == 1 else 0) + t*256 + rd*128}')
        if i >= 3:
            t, s = cj[i-3]; b = ((i-3) % 6) * 4
            k.anchor(f'v_mfma_f32_16x16x32_bf16 {CS3.t(4*t,4)}, {WF.t(b,4)}, {ONES}, {CS3.t(4*t,4) if s else 0}')
    V.release(vcs, ONES)
    I(f's_lshl_b32 {sA}, {sW}, 9\ns_add_u32 {sA}, {sA}, {L_CS3}\nv_lshrrev_b32 {vt0}, 4, {vL}\nv_lshl_add_u32 {vt1}, {vt0}, 4, {sA}')
    I('s_mov_b32 exec_lo, 0x00010001\ns_mov_b32 exec_hi, 0x00010001')
    for t in range(7):
        I(f'ds_write_b128 {vt1}, {CS3.t(4*t,4)} offset:{t*64}')
    I('s_mov_b64 exec, -1')
    V.release(CS3)
    k.drain_hi()
    k.barrier()
    stamp('g5_go')
    S.release(sB1)

    A5 = [V.at(64 + 16 * p, 16, f'acc5_{p}') for p in range(4)]
    vEX = V.alloc(1); C0 = V.alloc(2, 2); C1 = V.alloc(2, 2); K3 = V.alloc(4, 2, 'k3')
    f5 = [At(o.get('eg_at', 2))] + eg_loads
    st5 = []
    for d, s_ in ((0, 4), (8, 12), (0, 8)):
        st5 += [f'v_add_f32 {SP[d+i]}, {SP[d+i]}, {SP[s_+i]}' for i in range(4)]
    st5 += [f'v_add_f32 {SP[0]}, {SP[0]}, {SP[2]}', f'v_add_f32 {SP[1]}, {SP[1]}, {SP[3]}']
    st5 += xswap(SP.sub(0, 2), SP.sub(2, 2), 32)
    st5 += finish_stats(SP.sub(0, 2), K3[2], SP[4], None, SP.sub(2, 2), SD=K3[3])
    st5 += [f'v_mul_f32 {K3[0]}, {hx(GC0)}, {SP[4]}', f'v_mul_f32 {SP[5]}, {SP[4]}, {SP[4]}', f'v_mul_f32 {SP[4]}, {hx(GC1)}, {SP[4]}', f'v_mul_f32 {K3[1]}, {SP[4]}, {SP[5]}']
    f5 += st5
    ct = SP.sub(8, 8)
    f5 += [f'v_lshlrev_b32 {vt0}, 3, {vL}', f'v_add_u32 {vt1}, {L_CS3}, {vt0}']
    f5 += [f'ds_read_b64 {ct.t(2*w,2)}, {vt1} offset:{w*512}' for w in range(4)]
    f5 += [f'v_add_u32 {vt1}, {L_CS3T}, {vt0}']
    f5 += [f'v_add_f32 {ct[0]}, {ct[0]}, {ct[2]}', f'v_add_f32 {ct[1]}, {ct[1]}, {ct[3]}', f'v_add_f32 {ct[4]}, {ct[4]}, {ct[6]}', f'v_add_f32 {ct[5]}, {ct[5]}, {ct[7]}', f'v_add_f32 {ct[0]}, {ct[0]}, {ct[4]}', f'v_add_f32 {ct[1]}, {ct[1]}, {ct[5]}']
    f5 += [f'ds_write_b64 {vt1}, {ct.t(0,2)}']
    egt = [f'v_mov_b32 {vt0}, 0']
    for i in range(8):
        egt.append(f'v_cmp_le_i32 vcc, {i*16384}, {vEGo}\nv_xor_b32 {vt2}, {EG[4*i+1]}, {EG[4*i+3]}\nv_cndmask_b32 {vEX}, 0, {vTAGV}, vcc\nv_xor_b32 {vt1}, {EG[4*i+1]}, {vEX}\nv_or3_b32 {vt0}, {vt0}, {vt1}, {vt2}')
    egt.append(f'v_cmp_ne_u32 vcc, 0, {vt0}')

    def eg_fin(k_):
        lp = 'L_egslow'; ld = 'L_egok'
        I(f'{egt[-1]}\ns_mov_b32 {sBG}, 0\ns_cbranch_vccnz {lp}')
        k.label(ld)
        sub = Asm()
        for t in eg_loads:
            sub.I(t)
        sub.waitcnt(vm=0)
        sub.emit_all(egt)
        sub.I(f's_add_u32 {sBG}, {sBG}, 1\ns_cmp_gt_u32 {sBG}, {SPIN}\ns_cbranch_scc1 {ld}\ns_cbranch_vccnz {lp}\ns_branch {ld}')
        k.tail += [lp + ':'] + sub.lines
        stamp('eg_in')
    f5 += [At(o.get('eg_chk', 24))] + egt[:-1] + [Item(eg_fin, 12)]
    cur, oth = V2(EG[28], EG[30]), C1
    for i in range(6, -1, -1):
        f5 += [f'v_fma_f32 {oth[0]}, {L256[0]}, {cur[0]}, {EG[4*i]}', f'v_fma_f32 {oth[1]}, {L256[0]}, {cur[1]}, {EG[4*i+2]}',
               f'v_fma_f32 {oth[0]}, -{L256[1]}, {cur[1]}, {oth[0]}', f'v_fma_f32 {oth[1]}, {L256[1]}, {cur[0]}, {oth[1]}']
        cur, oth = oth, (C0 if i == 6 else cur)
    f5 += [f'v_mov_b32 {oth[0]}, {cur[0]}', f'v_mov_b32 {oth[1]}, {cur[1]}', f'v_permlane32_swap_b32 {oth[0]}, {cur[0]}', f'v_permlane32_swap_b32 {oth[1]}, {cur[1]}',
           f'v_fmac_f32 {oth[0]}, {L128[0]}, {cur[0]}', f'v_fmac_f32 {oth[1]}, {L128[0]}, {cur[1]}', f'v_fma_f32 {oth[0]}, -{L128[1]}, {cur[1]}, {oth[0]}', f'v_fmac_f32 {oth[1]}, {L128[1]}, {cur[0]}',
           f'v_fmac_f32 {CIN[0]}, {LOWN[0]}, {oth[0]}', f'v_fmac_f32 {CIN[1]}, {LOWN[0]}, {oth[1]}', f'v_fma_f32 {CIN[0]}, -{LOWN[1]}, {oth[1]}, {CIN[0]}', f'v_fmac_f32 {CIN[1]}, {LOWN[1]}, {oth[0]}']
    g = CIN; gt = C0
    for r in range(16):
        f5 += [f'v_fma_f32 {gt[0]}, {LAM[0]}, {g[0]}, {ARE[r]}', f'v_fma_f32 {gt[1]}, {LAM[0]}, {g[1]}, {AIM[r]}',
               f'v_fma_f32 {ARE[r]}, -{LAM[1]}, {g[1]}, {gt[0]}', f'v_fma_f32 {AIM[r]}, {LAM[1]}, {g[0]}, {gt[1]}']
        g = V2(ARE[r], AIM[r])
    HR = EG.sub(0, 16); HI = EG.sub(16, 16); PR = ARE.sub(0, 8); PI = ARE.sub(8, 8)
    for r in range(16):
        f5 += [f'v_mul_f32 {HR[r]}, {CF[0]}, {ARE[r]}', f'v_mul_f32 {HI[r]}, -{CF[0]}, {AIM[r]}']
    for r in range(16):
        f5 += [f'v_fma_f32 {HR[r]}, -{CF[1]}, {AIM[r]}, {HR[r]}', f'v_fma_f32 {HI[r]}, -{CF[1]}, {ARE[r]}, {HI[r]}']
    for i in range(8):
        f5 += [f'v_cvt_pk_bf16_f32 {PR[i]}, {HR[2*i]}, {HR[2*i+1]}', f'v_cvt_pk_bf16_f32 {PI[i]}, {HI[2*i]}, {HI[2*i+1]}']
    TRS = 80
    f5 += [f'v_mul_u32_u24 {vt0}, {TRS}, {vL31}', f'v_lshl_add_u32 {vt0}, {vH}, 5, {vt0}', f'v_add_u32 {vt0}, {sSTG}, {vt0}',
           f'ds_write_b128 {vt0}, {PR.t(0,4)} offset:7168', f'ds_write_b128 {vt0}, {PR.t(4,4)} offset:{7168+16}', f'ds_write_b128 {vt0}, {PI.t(0,4)} offset:{7168+32*TRS}', f'ds_write_b128 {vt0}, {PI.t(4,4)} offset:{7168+32*TRS+16}',
           f'v_bfe_u32 {vt1}, {vL}, 2, 2', f'v_lshl_add_u32 {vt1}, {vH}, 3, {vt1}', f'v_mul_u32_u24 {vt1}, {TRS}, {vt1}', f'v_and_b32 {vt0}, 1, {vL}', f'v_lshl_add_u32 {vt1}, {vt0}, 5, {vt1}', f'v_bfe_u32 {vt0}, {vL}, 4, 1',
           f'v_lshl_add_u32 {vt1}, {vt0}, 4, {vt1}', f'v_bfe_u32 {vt0}, {vL}, 1, 1', f'v_lshl_add_u32 {vt1}, {vt0}, 3, {vt1}', f'v_add_u32 {vt1}, {sSTG}, {vt1}']
    HF = EG.sub(0, 16)
    f5 += [f'ds_read_b64_tr_b16 {HF.t(4*f+2*rd,2)}, {vt1} offset:{7168 + (16*f + 4*rd)*TRS}' for f in range(4) for rd in range(2)]
    f5 += [f'v_lshlrev_b32 {vt3}, 5, {vH}', f'v_add_u32 {vt3}, {L_CS3T}, {vt3}']

    def hs_store(k_):
        stores([f'buffer_store_dwordx4 {HF.t(4*f,4)}, {vL16}, {WS}, {sHSo} offen offset:{f*1024}' for f in range(4)], tag='sths')
        stamp('hs_st')
        n0 = k.nanch
        k.fill.extend([At(n0 + o.get('pub3', 16)), Item(lambda k_: (publish(3, 'sths'), stamp('hs_pub')), 24), At(n0 + o.get('hsf', 30)), flag_load(vFV, sFL, 768), At(n0 + o.get('hsc', 46)), Item(hs_go, 12)])

    def hs_go(k_):
        lazy_check(vFV, sFL, 768, sM2)
        stamp('hs_seen')
        c.avail.add('hs'); c.wcap = 16; c.res = 0
    f5 += [Item(hs_store, 24)]
    k.fill.extend(f5)

    def w3read(i):
        ks, p = i // 4, i % 4
        g_ = ks // 2
        base = 0 if g_ < 8 else (2 if g_ < 12 else 4)
        off = (g_ * 7168 if g_ < 8 else ((g_ - 8) * 7168 if g_ < 12 else (g_ - 12) * STGW)) + (ks % 2) * 3584 + p * 512
        b = (i % NB) * 4
        return [f'ds_read_b64_tr_b16 {WF.t(b+2*rd,2)}, {vW3r[base+rd]} offset:{off}' for rd in range(2)]
    g5 = []
    for i in range(AH):
        g5 += w3read(i)
    for i in range(128):
        ks, p = i // 4, i % 4
        if i + AH < 128:
            g5 += w3read(i + AH)
        if p == 0 and ks + PF5 < 32:
            g5.append(lambda k_, ks=ks: setattr(c, 'xlim', ks + PF5 + 1))

        def f(k_, i=i, ks=ks, p=p):
            need(('xa', ks, 0))
            I(f'v_mfma_f32_32x32x16_bf16 {A5[p]}, {WF.t((i % NB)*4,4)}, {Q[("xa", ks, 0)]}, {A5[p] if ks else 0}')
            if p == 3:
                Q.give(('xa', ks, 0))
        g5.append(Anchor(f))
        if i in (31, 63, 95):
            g5 += fstamp(f'g5_{i+1}')
        if i in (64, 96):
            g5.append(lambda k_, i=i: (k._emit('s_barrier'), c.avail.add('wb' if i == 64 else 'wb2')))
    k.region()
    k.slack = o.get('slack5', 12); k.gap = o.get('gap5', 44); k.higap = o.get('higap5', 40)
    k.emit_all(g5)
    k.slack = 0
    while any(isinstance(t, Item) and t.fn is hs_store for t in k.fill):
        t = k.fill.popleft()
        if not isinstance(t, At):
            k.run(t); k.after()
    left = [t for t in k.fill if not isinstance(t, At)]
    k.fill.clear()
    k.barrier()
    stamp('g5_mfma')
    k.gap = o.get('gap6', 48); k.higap = o.get('higap6', 40)
    V.release(C0, C1, CIN, LAM, CF, L128, L256, LOWN, vEX, vEGo, vW3r, SP, EG, ARE, AIM, vWTF)
    S.release(sSC, sSTG, sHSo)

    CSX = [V.at(160, 16, 'csx0'), V.at(220, 16, 'csx1')]; GT = V.at(236, 16, 'gt5'); OP = V.at(176, 8, 'hout')

    def cs_read(p):
        return [f'ds_read_b128 {CSX[p%2].t(4*q,4)}, {vt3} offset:{p*128 + (q>>1)*64 + (q&1)*16}' for q in range(4 if p < 3 else 2)]
    k.emit_all(cs_read(0) + cs_read(1))
    for p in range(2):
        L = gelu_pk(A5[p], CSX[p], K3, GT, [OP[i] for i in range(8)])
        step = len(L) // (len(left) + 1) if left else 0
        for n, t in enumerate(L):
            I(t)
            if left and n % 24 == 23:
                k.run(left.pop(0))
        k.emit_all(cs_read(p + 2))
        stores([f'buffer_store_dwordx4 {OP.t(4*u,4)}, {vL16}, {WS}, {sHa} offen offset:{p*2048 + u*1024}' for u in range(2)], tag='sth')
    for t in left:
        k.run(t)
    stamp('ha_st')
    V.release(A5[0], A5[1])
    S.release(sHa)

    def gemm64(ACC_, wname, aname, klist, init0=False, n0=0):
        L = []
        for n in klist:
            for ti in range(2):
                for ni in range(2):
                    def f(k_, ti=ti, ni=ni, n=n):
                        lds = wname == 'w4' and n >= 16
                        need((aname, n, ti))
                        if not lds:
                            need((wname, n, ni))
                        acc = ACC_[2*ti+ni]
                        wq = WF.t(((2*n + ni) % NB)*4, 4) if lds else Q[(wname, n, ni)]
                        I(f'v_mfma_f32_32x32x16_bf16 {acc}, {wq}, {Q[(aname, n, ti)]}, {acc if (n or (init0 and ti == 0 and ni == 0)) else 0}')
                        if ni == 1:
                            Q.give((aname, n, ti))
                        if ti == 1 and not lds:
                            Q.give((wname, n, ni))
                    L.append(Anchor(f))
        return L
    ACC2 = [V.at(64, 16), V.at(80, 16), V.at(128, 16), V.at(144, 16)]
    DS = V.alloc(8, 4, 'dskip')
    OP2 = V.at(184, 8, 'hout2')
    eb = [At(o.get('pub4', 6)), Item(lambda k_: (publish(4, 'sth'), stamp('ha_pub')), 24)]
    eb += gelu_1(A5[2], CSX[0], K3, GT, [OP2[i] for i in range(8)])
    eb += [Item(lambda k_: stores([f'buffer_store_dwordx4 {OP2.t(4*u,4)}, {vL16}, {WS}, {sHb} offen offset:{u*1024}' for u in range(2)], tag='sth'), 16)]
    eb += gelu_1(A5[3].sub(0, 8), CSX[1], K3, GT, [OP[i] for i in range(4)])

    def hb_store(k_):
        stores([f'buffer_store_dwordx4 {OP.t(0,4)}, {vL16}, {WS}, {sHb} offen offset:2048'], tag='sth')
        stamp('hb_st')
        V.release(GT, K3, *CSX, A5[2], A5[3])
        Q.add(V.at(220, 32, 'qv2'))
        n0 = k.nanch
        k.fill.extend([At(n0 + o.get('pub5', 12)), Item(lambda k_: (publish(5, 'sth'), stamp('hb_pub')), 24)])

    def ha_go(k_):
        lazy_check(vFV, sFL, 1024, sM2)
        stamp('ha_seen')
        c.avail.add('ha')
    eb += [Item(hb_store, 12)]
    eb += [f's_lshl_b32 {sB}, {sCG}, 7\ns_lshl_b32 {sA}, {sN32}, 6\ns_add_u32 {sB}, {sB}, {sA}\nv_lshlrev_b32 {vt1}, 4, {vH}'
           f'\nbuffer_load_dwordx4 {DS.t(0,4)}, {vt1}, {SRD["DSK"]}, {sB} offen\nbuffer_load_dwordx4 {DS.t(4,4)}, {vt1}, {SRD["DSK"]}, {sB} offen offset:32']
    g2 = []
    for i, t in enumerate(gemm64(ACC2, 'c', 'hs', list(range(16)))):
        if i == o.get('haf', 24):
            g2.append(flag_load(vFV, sFL, 1024))
        if i == o.get('hac', 40):
            g2.append(ha_go)
        g2.append(t)
        if i in (15, 31, 47):
            g2 += fstamp(f'g2_{i+1}')
    k.fill.extend(eb)
    k.region()
    k.emit_all(g2)
    k.drain_fill()
    stamp('g2_mfma')
    V.release(OP, OP2)
    S.release(*sHS, sHb)

    ACC6 = [V.at(176, 16), V.at(96, 16), V.at(112, 16), V.at(160, 16)]
    k.emit_all(unpack(ACC6[0], X1P))
    V.release(X1P)

    def reduce4(ACC_):
        L = []
        for i in range(1, 4):
            L += [f'ds_write_b128 {vREDw[i-1]}, {ACC_[i].t(4*q,4)} offset:{q*1024}' for q in range(4)]
        L += ['@barrier']
        for i in range(3):
            L += [f'ds_read_b128 {ACC_[i+1].t(4*q,4)}, {vREDr} offset:{i*4096+q*1024}' for q in range(4)]
        return L
    SS = ACC2[0]
    r2 = reduce4(ACC2)
    for i in range(3):
        r2 += [f'v_add_f32 {SS[q]}, {SS[q]}, {ACC2[i+1][q]}' for q in range(16)]
    r2 += ['@barrier']
    f1 = ACC2[1]; f2 = ACC2[2]
    r2 += unpack(f1, XNT) + unpack(f2, DS)
    r2 += [f'v_fmac_f32 {SS[i]}, {f1[i]}, {f2[i]}' for i in range(16)]
    XT = DS

    def r2_done(k_):
        I(f'buffer_load_dwordx4 {XT.t(0,4)}, {vTo}, {SRD["X"]}, 0 offen\nbuffer_load_dwordx4 {XT.t(4,4)}, {vTo}, {SRD["X"]}, 0 offen offset:32')
        stamp('g2')
        for a in ACC2[1:]:
            Q.add(a)
    r2 += [Item(r2_done, 8)]

    def hb_go(k_):
        lazy_check(vFV, sFL, 1280, sM2)
        stamp('hb_seen')
        c.avail.add('hb')
    vLW = V.alloc(2, 1)

    def wbread(n):
        return ([f'v_add_u32 {vLW[ni]}, 0x10000, {vLW[ni]}' for ni in range(2) if n == 24]
                + [f'ds_read_b128 {WF.t(((2*n + ni) % NB)*4, 4)}, {vLW[ni]} offset:{((n-16)*8192) & 0xffff}' for ni in range(2)])

    def wb_wait(k_):
        while nreq('wb'):
            c.late.append('wb')
            k.run(pick(0, force=[r[1] for r in req if r[1][0] == 'wb'][0]))
        k.wait_vm_tag('wb')
    g6 = [flag_load(vFV, sFL, 1280)]
    for i, t in enumerate(gemm64(ACC6, 'w4', 'h', list(range(28)), init0=True)):
        n = i // 4
        if i == o.get('hbc', 12):
            g6.append(hb_go)
        if i == 14 * 4:
            g6.append(wb_wait)
        if i % 4 == 0 and 16 <= n + 2 < 28:
            g6 += wbread(n + 2)
        g6.append(t)
        if i in (31, 63, 95):
            g6 += fstamp(f'g6_{i+1}')
    k.fill.extend([f'v_add_u32 {vLW[0]}, {sL4}, {vLN[0]}', f'v_add_u32 {vLW[1]}, {sL4}, {vLN[1]}'] + r2)
    k.region()
    k.emit_all(g6)
    k.drain_fill()
    stamp('g6_mfma')
    k.emit_all(reduce4(ACC6))
    a0 = ACC6[0]; f1 = ACC6[1]; e_ = ACC6[2]; NL = V.alloc(2, 2)
    I(f'v_mov_b32 {NL[0]}, {hx(-LOG2E)}\nv_mov_b32 {NL[1]}, 1.0\nv_lshlrev_b32 {vt0}, 1, {vTo}')
    for i in range(3):
        for q in range(8):
            I(f'v_pk_add_f32 {a0.t(2*q,2)}, {a0.t(2*q,2)}, {ACC6[i+1].t(2*q,2)}')
    for i in range(8): I(f'v_pk_mul_f32 {e_.t(2*i,2)}, {a0.t(2*i,2)}, {NL} op_sel_hi:[1,0]')
    for i in range(16): I(f'v_exp_f32 {e_[i]}, {e_[i]}')
    k.emit_all(unpack(f1, XT))
    for i in range(8): I(f'v_pk_add_f32 {e_.t(2*i,2)}, {e_.t(2*i,2)}, {NL} op_sel:[0,1] op_sel_hi:[1,1]')
    for i in range(16): I(f'v_rcp_f32 {e_[i]}, {e_[i]}')
    for i in range(8): I(f'v_pk_mul_f32 {a0.t(2*i,2)}, {a0.t(2*i,2)}, {SS.t(2*i,2)}')
    for q in range(4):
        for i in (2 * q, 2 * q + 1):
            I(f'v_pk_fma_f32 {a0.t(2*i,2)}, {a0.t(2*i,2)}, {e_.t(2*i,2)}, {f1.t(2*i,2)}')
        I(f'buffer_store_dwordx4 {a0.t(4*q,4)}, {vt0}, {SRD["OUT"]}, 0 offen offset:{(q>>1)*64 + (q&1)*16}')
    stamp('end')
    stamp('rt1')
    if o['stamps']:
        stamp_flush()
        I(f's_lshl_b32 {sA}, s2, 2\ns_add_u32 {sA}, {sA}, {sW}\ns_lshl_b32 {sA}, {sA}, 8\ns_add_u32 {sA}, {sA}, {O_DBG}')
        I(f'buffer_store_dword {c.vSTP}, {vFLG}, {WS}, {sA} offen')
    I(f's_lshl_b32 {sA}, s2, 2\ns_add_u32 {sA}, {sA}, {sW}\ns_cmp_lg_u32 {sA}, 1020\ns_cbranch_scc1 L_end\ns_mov_b32 {sA}, {O_EPOCH}\ns_mov_b64 exec, 1')
    I(f'buffer_store_dword {vTAGV}, {vZERO}, {WS}, {sA} offen sc0 sc1')
    k.label('L_end')
    k.raw('  s_endpgm')
    assert not k.bg and not k.hi and not k.fill and not req
    ntset = set(o.get('nt', []))
    def ntfix(l):
        t = l.strip()
        if not t.startswith('buffer_'): return l
        if '\n' in t: return '\n'.join(ntfix(x) for x in l.split('\n'))
        for nm_ in ntset:
            if nm_ in SRD and f' {SRD[nm_]},' in t and ' nt' not in t:
                return (l[:-4] + ' nt lds') if l.endswith(' lds') else l + ' nt'
            if nm_ == 'WT' and t.startswith('buffer_load') and (f', {sWT} offen' in t or f', {sWB} offen' in t) and f' {WS},' in t and ' sc1' not in t and c.wt0 <= 0:
                return (l[:-4] + ' nt lds') if l.endswith(' lds') else l + ' nt'
        return l
    c.wt0 = 0
    i_wt = [i for i, l in enumerate(k.lines) if l.startswith('; WTSTART')][0]
    k.lines = [ntfix(l) if ('WT' not in ntset or True) and (i > i_wt or f' {WS},' not in l) else l for i, l in enumerate(k.lines)]
    print('late', c.late)
    if o.get('lead'):
        for nm_ in ('xa', 'c', 'hs', 'w4', 'h', 'wb'):
            print(nm_, ' '.join(f"{kk[1]}.{kk[2]}:{c.iss[kk]}+{c.use.get(kk, 0) - c.iss[kk]}" for kk in sorted(c.iss) if kk[0] == nm_))
        print('marks', c.marks)
    return k.lines + k.tail, k


from gen import layout

if __name__ == '__main__':
    import json
    opts = json.loads(sys.argv[2]) if len(sys.argv) > 2 else {}
    body, k = gen(opts)
    txt, size = layout(body, k)
    open(sys.argv[1], 'w').write(txt)
    print('code bytes', size, 'vpeak', k.V.peak, 'apeak', k.A.peak, 'speak', k.S.peak, k.stat, 'est', k.t)
    open(sys.argv[1] + '.names', 'w').write(','.join(k.stampnames))
```

```python
import sys, struct, math
sys.path.insert(0, 'work')
from asmb import *
from sched import *

KNAME = 'recurrent_scan__ssm_conv_s5__mixer_s_mlp__prompt_kernel'
HDR = open('recurrent_scan__ssm_conv_s5__mixer_s_mlp__prompt.s.ref').read().split('; @launch')[0]

def f2u(x):
    return struct.unpack('<I', struct.pack('<f', x))[0]
def hx(x):
    return '0x%08x' % f2u(x)

TS = 0x120000
O_H1, O_X1, O_HS, O_H = 0x20000, 0x40000, 0x60000, 0xA0000
O_REC, O_ST3, O_FLG, O_IDS = 0x110000, 0x111000, 0x118000, 0x119000
O_SCAN = 0x1400000
O_EPOCH = 0x1480000
O_WTF = 0x14C0000
O_WT = 0x1500000
WTS = 88 * 1024
O_DBG = 0x1900000
L_BB, BROW = 0, 1040
L_W1 = 66560
L_MISC = 99328
L_HALO = L_MISC
L_HRED = L_MISC + 4096
L_TOK = L_MISC + 5632
L_CSW = L_MISC + 6656
L_SEG = L_HALO
L_CS3 = L_HALO + 2048
L_CS3T = L_HRED
L_UP = 106496
XSW = 4608
L_W2A = L_UP + 4 * XSW
STGW = 12288
L_RED4 = L_UP
L_W3B = 57344
L_TOK2 = L_HALO + 2048
L_CSB = L_CSW
LW4 = 24576
L_RED = L_UP
LDS_BYTES = 163840
SPIN = 50000

LOG2E = 1.4426950408889634
GC0 = -2.0 * math.sqrt(2.0 / math.pi) * LOG2E
GC1 = GC0 * 0.044715


class Ctx:
    pass


def gen(opts=None):
    o = dict(stamps=False, stop=None)
    o.update(opts or {})
    k = Sched()
    I = k.I
    V, A, S = k.V, k.A, k.S
    k.raw(HDR.rstrip('\n'))
    k.raw(f'; @launch grid=(256,1,1) block=(256,1,1) lds={LDS_BYTES}')
    k.raw('.amdgcn_target "amdgcn-amd-amdhsa--gfx950"\n.text\n.globl %s\n.p2align 12\n.type %s,@function\n%s:' % (KNAME, KNAME, KNAME))

    KA = S.at(16, 16, 'ka0'); KB = S.at(32, 16, 'ka1'); KW = S.at(48, 2, 'kaws')
    names = ['X', 'BRE', 'BIM', 'CRE', 'CIM', 'W1', 'W2', 'W3', 'W4', 'OUT', 'WS', 'DSK']
    SRD = {n: S.at(52 + 4 * i, 4, n) for i, n in enumerate(names)}
    sT, sJ, sW = [S.alloc(1, name=n) for n in ('T', 'J', 'W')]
    sA, sB, sC, sD = [S.alloc(1, name=f'tmp{i}') for i in range(4)]
    sXJ = S.alloc(4, 1, 'xj')
    sEP = S.alloc(1, name='epoch'); sBG = S.alloc(1, name='bgtmp')
    sM = S.at(50, 2, 'mask')

    nstamp = [0]
    c = Ctx(); c.STP = None; c.vSTP = None
    c.pend = []; c.flip = 0

    def stamp_flush():
        for pr, i in c.pend:
            I(f'v_writelane_b32 {c.vSTP}, {pr[0]}, {i}')
        c.pend = []

    c.marks = []
    def stamp(name, pair=None):
        c.marks.append((name, k.t))
        if o['stamps']:
            i = nstamp[0]; nstamp[0] += 1
            if pair is None:
                stamp_flush()
                pair = c.STP[c.flip]; c.flip ^= 1
            I(f's_memrealtime {pair}' if name.startswith('rt') else f's_memtime {pair}')
            c.pend.append((pair, i))
            k.stampnames.append(name)
    k.stampnames = []

    def fstamp(name):
        return [Item(lambda k_: stamp(name), 0)] if o.get('fine') else []

    I('s_cmp_ge_u32 s2, 256\ns_cbranch_scc1 L_end')
    if o['stamps']:
        c.STP = [None, None]; c.S0 = S.at(100, 2, 'stamp0')
    stamp('start', c.S0 if o['stamps'] else None)
    I(f's_load_dwordx16 {KA}, s[0:1], 0')
    I(f's_load_dwordx16 {KB}, s[0:1], 64')
    I(f's_load_dwordx2 {KW}, s[0:1], 128')
    vJUNK = V.at(65, 1, 'junk')
    I(f's_getpc_b64 {sM}')
    k.label('L_pc')
    I(f's_lshr_b32 {sA}, s2, 3\ns_lshl_b32 {sA}, {sA}, 11')
    I(f'v_lshl_add_u32 {vJUNK}, v0, 3, {sA}\nv_min_u32 {vJUNK}, L_codeend-L_pc-4, {vJUNK}\nglobal_load_dword {vJUNK}, {vJUNK}, {sM}')
    vL = V.alloc(1, name='lane'); vt0 = V.alloc(1); vt1 = V.alloc(1); vt2 = V.alloc(1); vt3 = V.alloc(1)
    I(f'v_and_b32 {vL}, 63, v0')
    I(f'v_lshrrev_b32 {vt0}, 6, v0')
    I(f'v_readfirstlane_b32 {sW}, {vt0}')
    I(f's_and_b32 {sT}, s2, 7\ns_lshl_b32 {sT}, {sT}, 1\ns_lshr_b32 {sA}, s2, 7\ns_add_u32 {sT}, {sT}, {sA}')
    I(f's_lshr_b32 {sJ}, s2, 3\ns_and_b32 {sJ}, {sJ}, 15')
    vL31 = V.alloc(1, name='l31'); vH = V.alloc(1, name='h'); vL16 = V.alloc(1, name='lane*16')
    vTAU = V.alloc(1, name='tau'); vMASK = V.alloc(1, name='hi16mask'); vTAGV = V.alloc(1, name='tagv'); vZERO = V.alloc(1, name='zero')
    vTJ = V.alloc(2, 1, 'touch'); vFLG = V.alloc(1, name='flagoff'); vLN = V.alloc(2, 1, 'lane16^nt'); vTRI = V.alloc(1, name='tr_inner')
    if o['stamps']:
        c.vSTP = V.alloc(1, name='stamps')
    I(f'v_and_b32 {vL31}, 31, {vL}\nv_lshrrev_b32 {vH}, 5, {vL}\nv_lshlrev_b32 {vL16}, 4, {vL}')
    vSo = V.alloc(1); vHo = V.alloc(1); vXo = V.alloc(1, name='xo'); vW1o = V.alloc(1, name='w1o')
    I(f'v_lshl_add_u32 {vSo}, {vH}, 9, {vL16}')
    I(f's_lshl_b32 {sD}, {sT}, 7\ns_lshr_b32 {sB}, {sJ}, 2\ns_lshl_b32 {sB}, {sB}, 5\ns_add_u32 {sA}, {sD}, {sB}\ns_and_b32 {sB}, {sJ}, 3\ns_lshl_b32 {sB}, {sB}, 2\ns_add_u32 {sA}, {sA}, {sB}'
      f'\ns_lshr_b32 {sB}, {sW}, 1\ns_lshl_b32 {sB}, {sB}, 4\ns_add_u32 {sA}, {sA}, {sB}\ns_and_b32 {sB}, {sW}, 1\ns_lshl_b32 {sB}, {sB}, 1\ns_add_u32 {sA}, {sA}, {sB}\ns_lshl_b32 {sA}, {sA}, 10\nv_add_u32 {vSo}, {sA}, {vSo}')
    I(f'v_and_b32 {vt1}, 1, {vL}\nv_lshlrev_b32 {vt1}, 10, {vt1}\nv_lshrrev_b32 {vt0}, 1, {vL31}\nv_lshl_add_u32 {vHo}, {vt0}, 4, {vt1}')
    I(f's_bitcmp1_b32 {sJ}, 2\ns_cselect_b32 {sC}, 128, -2\ns_add_u32 {sC}, {sC}, {sD}\ns_lshl_b32 {sC}, {sC}, 10\ns_lshl_b32 {sB}, {sW}, 8\ns_add_u32 {sC}, {sC}, {sB}\nv_add_u32 {vHo}, {sC}, {vHo}')
    I(f'v_lshrrev_b32 {vt0}, 5, {vL}\nv_lshlrev_b32 {vt0}, 4, {vt0}\nv_bfe_u32 {vt1}, {vL}, 3, 2\nv_add_u32 {vt0}, {vt0}, {vt1}\nv_lshlrev_b32 {vt0}, 10, {vt0}\nv_and_b32 {vt1}, 7, {vL}\nv_lshl_add_u32 {vXo}, {vt1}, 4, {vt0}')
    I(f's_lshl_b32 {sB}, {sW}, 5\ns_add_u32 {sA}, {sD}, {sB}\ns_lshl_b32 {sXJ[0]}, {sA}, 10\ns_add_u32 {sXJ[1]}, {sXJ[0]}, 4096\ns_add_u32 {sXJ[2]}, {sXJ[0]}, 8192\ns_add_u32 {sXJ[3]}, {sXJ[0]}, 12288')
    vPo = V.alloc(1, name='piece16x64')
    I(f'v_lshrrev_b32 {vt0}, 2, {vL}\nv_lshlrev_b32 {vt0}, 10, {vt0}\nv_and_b32 {vt1}, 3, {vL}\nv_lshl_add_u32 {vPo}, {vt1}, 4, {vt0}')
    I(f's_lshl_b32 {sA}, {sW}, 17\ns_lshl_b32 {sB}, {sJ}, 6\ns_add_u32 {sA}, {sA}, {sB}\nv_add_u32 {vW1o}, {sA}, {vPo}')
    XP = V.at(240, 8, 'xp'); HP = V.at(248, 4, 'hp')
    for i in range(4):
        I(f'v_mov_b32 {HP[i]}, 0x3f803f80')
    I(f's_lshl_b32 {sB}, {sW}, 13\ns_add_u32 m0, {sB}, {L_W1}\ns_mov_b32 {sD}, {O_EPOCH}\ns_mov_b32 {sA}, 0')

    def srd(name, lo, size):
        r = SRD[name]
        I(f's_mov_b32 {r[0]}, {lo[0]}\ns_and_b32 {r[1]}, {lo[1]}, 0xffff\ns_mov_b32 {r[2]}, {size}\ns_mov_b32 {r[3]}, 0x20000')
    srd('X', KA.sub(0, 2), 0x200000)
    I(f's_load_dword {sEP}, {KW}, {sD}')
    stamp('ka', sM)
    I(f'buffer_load_dwordx4 {XP.t(0,4)}, {vSo}, {SRD["X"]}, 0 offen')
    I(f'buffer_load_dwordx4 {XP.t(4,4)}, {vSo}, {SRD["X"]}, 0 offen offset:512')
    I('s_mov_b32 exec_hi, 0')
    I(f'buffer_load_dwordx4 {HP}, {vHo}, {SRD["X"]}, 0 offen')
    I('s_mov_b64 exec, -1')
    srd('W1', KB.sub(4, 2), 0x80000)
    NW0 = o.get('nw0', 4)
    for i in range(NW0):
        I(f'buffer_load_dwordx4 {vW1o}, {SRD["W1"]}, {sA} offen lds #w1')
        if i < NW0 - 1:
            I(f's_add_u32 {sA}, {sA}, 16384\ns_add_u32 m0, m0, 1024')
    vLre = V.alloc(1); vLim = V.alloc(1); vLdt = V.alloc(1)
    I(f's_lshl_b32 {sA}, {sJ}, 6\nv_lshl_add_u32 {vSo}, {vL31}, 1, {sA}')
    I(f'global_load_ushort {vLre}, {vSo}, {KA.t(2,2)}\nglobal_load_ushort {vLim}, {vSo}, {KA.t(4,2)}\nglobal_load_ushort {vLdt}, {vSo}, {KA.t(14,2)}')
    V.release(vSo, vHo)
    srd('BRE', KA.sub(6, 2), 0x80000); srd('BIM', KA.sub(8, 2), 0x80000)
    S.release(KA.sub(0, 10))
    sW1d = S.alloc(1, name='w1dst')
    I(f's_lshl_b32 {sW1d}, {sW}, 13')
    w1_rest = [f's_add_u32 m0, {sW1d}, {L_W1 + i*1024}\ns_mov_b32 {sBG}, {i*16384}\nbuffer_load_dwordx4 {vW1o}, {SRD["W1"]}, {sBG} offen lds #w1' for i in range(NW0, 8)]
    srd('WS', KW, 0x10000000)
    WS = SRD['WS']
    XN = A.at(0, 128, 'XN')

    def x_load(kg, j):
        return f'buffer_load_dwordx4 {XN.t(16*kg + 4*j, 4)}, {vXo}, {SRD["X"]}, {sXJ[j]} offen offset:{kg*128}'
    xl = [x_load(kg, j) for kg in range(8) for j in range(4)]
    srd('W2', KB.sub(6, 2), 0x80000); srd('W3', KB.sub(8, 2), 1835008); srd('W4', KB.sub(10, 2), 1835008)
    srd('CRE', KA.sub(10, 2), 0x80000); srd('CIM', KA.sub(12, 2), 0x80000)
    srd('OUT', KB.sub(12, 2), 0x400000)
    srd('DSK', KB.sub(0, 2), 1024)
    S.release(KA.sub(10, 6), KB, KW)
    sTB, sTAG, sSLOW, sXCC = [S.alloc(1, name=n) for n in ('TB', 'TAG', 'SLOW', 'xcc')]
    if o['stamps']:
        c.STP = [S.alloc(2, 2, 'stamps'), S.alloc(2, 2, 'stamps')]
        c.E = [S.alloc(2, 2) for _ in range(2)]
    stamp('w1_iss', c.E[0] if o['stamps'] else None)
    if o.get('dbg') is not None:
        c.RT = S.alloc(2, 2, 'rt0')
        I(f's_memrealtime {c.RT}')
    I(f's_getreg_b32 {sXCC}, hwreg(HW_REG_XCC_ID)\ns_and_b32 {sXCC}, {sXCC}, 15\ns_mul_i32 {sTB}, {sT}, {TS}')
    I(f'v_mov_b32 {vZERO}, 0\ns_add_u32 {sTAG}, {sEP}, 16\ns_and_b32 {sTAG}, {sTAG}, -16\nv_mov_b32 {vTAGV}, {sTAG}')
    I(f's_or_b32 {sA}, {sTAG}, {sXCC}\nv_mov_b32 {vt0}, {sA}\ns_lshl_b32 {sB}, {sJ}, 7\ns_add_u32 {sB}, {sB}, {sTB}\ns_add_u32 {sB}, {sB}, {O_IDS}\ns_mov_b64 exec, 1')
    I(f's_cmp_lg_u32 {sW}, 0\ns_cselect_b32 {sB}, 0x80000000, {sB}')
    I(f'buffer_store_dword {vt0}, {vZERO}, {WS}, {sB} offen sc0 sc1')
    S.release(sEP)
    I('s_mov_b64 exec, 0')
    for w in range(4):
        I(f's_cmp_eq_u32 {sW}, {w}\ns_cbranch_scc1 L_stub{w}')
    k.label('L_stubret')
    I('s_mov_b64 exec, -1')
    stamp('stubs')
    stamp('rt0')

    sTH, sCG, sN32, sT32 = [S.alloc(1, name=n) for n in ('th', 'cg', 'n32', 't32')]
    I(f's_lshr_b32 {sTH}, {sJ}, 3\ns_and_b32 {sCG}, {sJ}, 7\ns_and_b32 {sN32}, {sW}, 1\ns_lshr_b32 {sT32}, {sW}, 1')
    I(f'v_mov_b32 {vMASK}, 0xffff0000\nv_lshlrev_b32 {vFLG}, 2, {vL}')

    TCH = o.get('touch', 'hxsHo')

    def touch(which, sbase, n, srd_=None, vaddr=None, off=0):
        if which not in TCH:
            return []
        pre = vaddr or (f'v_min_u32 {vTJ[1]}, {n-1}, {vL}\nv_lshlrev_b32 {vTJ[1]}, 7, {vTJ[1]}')
        return [f'{pre}\nbuffer_load_dword {vTJ[0]}, {vTJ[1]}, {srd_ or WS}, {sbase} offen offset:{off}']

    def unpack(dst, src):
        L = []
        for i in range(src.n):
            L.append(f'v_lshlrev_b32 {dst[2*i]}, 16, {src[i]}')
            L.append(f'v_and_b32 {dst[2*i+1]}, {vMASK}, {src[i]}')
        return L

    def zipl(*ls):
        out = []
        for i in range(max(len(x) for x in ls)):
            for x in ls:
                if i < len(x):
                    out.append(x[i])
        return out

    def dsums(P, SQ, t, one):
        n = P.n
        L = []
        for i in range(n):
            a, b = (SQ[0], SQ[1]) if i % 2 == 0 else (t[0], t[1])
            L.append(f'v_dot2_f32_bf16 {a}, {P[i]}, {one}, {a if i >= 2 else 0}')
            L.append(f'v_dot2_f32_bf16 {b}, {P[i]}, {P[i]}, {b if i >= 2 else 0}')
        L.append(f'v_add_f32 {SQ[0]}, {SQ[0]}, {t[0]}')
        L.append(f'v_add_f32 {SQ[1]}, {SQ[1]}, {t[1]}')
        return L

    def xswap(SQ, t, which):
        n = SQ.n
        return ([f'v_mov_b32 {t[i]}, {SQ[i]}' for i in range(n)] + [f'v_permlane{which}_swap_b32 {SQ[i]}, {t[i]}' for i in range(n)]
                + [f'v_add_f32 {SQ[i]}, {SQ[i]}, {t[i]}' for i in range(n)])

    def ror(SQ):
        return [f'v_add_f32_dpp {SQ[i]}, {SQ[i]}, {SQ[i]} row_ror:{r} row_mask:0xf bank_mask:0xf' for r in (8, 4, 2, 1) for i in range(SQ.n)]

    def finish_stats(SQ, NM, RI, PK, t, SD=None, n=512):
        L = [f'v_mul_f32 {SQ[0]}, {hx(1.0/n)}, {SQ[0]}', f'v_mul_f32 {SQ[1]}, {hx(1.0/n)}, {SQ[1]}',
             f'v_fma_f32 {SQ[1]}, -{SQ[0]}, {SQ[0]}, {SQ[1]}', f'v_max_f32 {SQ[1]}, 0, {SQ[1]}',
             f'v_cvt_pk_bf16_f32 {t[0]}, {SQ[0]}, {SQ[1]}',
             f'v_and_b32 {t[1]}, {vMASK}, {t[0]}', f'v_add_f32 {t[1]}, {hx(1e-5)}, {t[1]}', f'v_cvt_pk_bf16_f32 {t[1]}, {t[1]}, {t[1]}',
             f'v_and_b32 {t[1]}, {vMASK}, {t[1]}', f'v_sqrt_f32 {t[1]}, {t[1]}', f'v_cvt_pk_bf16_f32 {t[1]}, {t[1]}, {t[1]}', f'v_and_b32 {SD or t[1]}, {vMASK}, {t[1]}']
        if RI is not None:
            L.append(f'v_rcp_f32 {RI}, {SD or t[1]}')
        if PK is not None:
            L.append(f'v_and_or_b32 {PK}, {t[0]}, {vFFFF}, {SD or t[1]}')
        if NM is not None:
            L.append(f'v_lshlrev_b32 {NM}, 16, {t[0]}')
            L.append(f'v_xor_b32 {NM}, 0x80000000, {NM}')
        return L

    def stores(L, tag='st'):
        k.lock += 1
        ls = k.newlabel('L_slow'); lr = k.newlabel('L_sret')
        I(f's_cmp_lg_u32 {sSLOW}, 0')
        mark = len(k.lines)
        for t in L:
            I(t + f' #{tag}')
        body = k.lines[mark:]
        del k.lines[mark:]
        pre = []
        while body and not body[0].lstrip().startswith('buffer_store'):
            pre.append(body.pop(0))
        k.lines += pre
        k.lines.append(f'  s_cbranch_scc1 {ls}')
        k.scc_live = False
        k.lines += [b + o.get('stmod', '') if b.lstrip().startswith('buffer_store') and tag != 'flag' else b for b in body]
        k.lines.append(lr + ':')
        k.tail.append(ls + ':')
        for b in body:
            k.tail.append(b + ' sc0 sc1' if b.lstrip().startswith('buffer_store') else b)
        k.tail.append(f'  s_branch {lr}')
        k.lock -= 1

    def publish(phase, tag='st'):
        k.lock += 1
        k.wait_vm_tag(tag)
        I('s_mov_b64 exec, 1')
        stores([f'buffer_store_dword {vTAGV}, {vZERO}, {WS}, {sMYF} offen offset:{phase*256}'], tag='flag')
        I('s_mov_b64 exec, -1')
        k.lock -= 1

    def lazy_check(vdst, sbase, off, mask):
        lo = k.newlabel('L_lz'); lr = k.newlabel('L_lzr')
        k.lock += 1
        I(f'v_cmp_ne_u32 vcc, {vdst}, {vTAGV}\ns_and_b64 vcc, vcc, {mask}\ns_cbranch_scc1 {lo}')
        k.lock -= 1
        k.label(lr)
        k.tail.append(f'{lo}:\n  s_mov_b32 {sBG}, 0\n{lo}_p:\n  buffer_load_dword {vdst}, {vFLG}, {WS}, {sbase} offen offset:{off} sc1\n  s_waitcnt vmcnt(0)\n  v_cmp_ne_u32 vcc, {vdst}, {vTAGV}\n  s_add_u32 {sBG}, {sBG}, 1\n  s_cmp_gt_u32 {sBG}, {SPIN}\n  s_cbranch_scc1 {lr}\n  s_and_b64 vcc, vcc, {mask}\n  s_cbranch_scc1 {lo}_p\n  s_branch {lr}')

    def flag_load(vdst, sbase, off):
        return f'buffer_load_dword {vdst}, {vFLG}, {WS}, {sbase} offen offset:{off} sc1'

    def retry(loads, test, name):
        lp = k.newlabel('L_' + name); ld = k.newlabel('L_' + name + 'd')
        k.lock += 1
        k.emit_all(test)
        I(f's_mov_b32 {sBG}, 0\ns_cbranch_vccnz {lp}')
        k.lock -= 1
        k.label(ld)
        sub = Asm()
        for t in loads:
            sub.I(t)
        sub.waitcnt(vm=0)
        sub.emit_all(test)
        sub.I(f's_add_u32 {sBG}, {sBG}, 1\ns_cmp_gt_u32 {sBG}, {SPIN}\ns_cbranch_scc1 {ld}\ns_cbranch_vccnz {lp}\ns_branch {ld}')
        k.tail += [lp + ':'] + sub.lines

    F = V.at(224, 16, 'F'); SQ = V.alloc(2, 2, 'SQ'); tq = V.alloc(2, 2, 'tq')
    NM = V.alloc(2, 2, 'nm'); RI = V.alloc(2, 2, 'ri'); REC = V.alloc(4, 4, 'rec'); vONE = V.alloc(1, name='one2'); vFFFF = V.alloc(1, name='ffff')
    I(f'v_mov_b32 {vONE}, 0x3f803f80\nv_mov_b32 {vFFFF}, 0xffff\nv_mov_b32 {REC[1]}, {vTAGV}\nv_mov_b32 {REC[3]}, {vTAGV}')
    sFL = S.alloc(1, name='flagbase'); sMYF = S.alloc(1, name='myflag'); sREC = S.alloc(1, name='rec')
    I(f's_add_u32 {sFL}, {sTB}, {O_FLG}\ns_lshl_b32 {sMYF}, {sJ}, 4\ns_lshl_b32 {sA}, {sW}, 2\ns_add_u32 {sMYF}, {sMYF}, {sA}\ns_add_u32 {sMYF}, {sMYF}, {sFL}\ns_add_u32 {sREC}, {sTB}, {O_REC}')
    vRW = V.alloc(2, 1)
    I(f's_lshl_b32 {sA}, {sJ}, 2\ns_add_u32 {sA}, {sA}, {sW}\ns_lshl_b32 {sB}, {sA}, 5\ns_add_u32 {sB}, {sB}, {sREC}\nv_lshl_add_u32 {vRW[0]}, {vH}, 4, {sB}')
    I(f's_add_u32 {sA}, {sA}, 1\ns_and_b32 {sA}, {sA}, 63\ns_cmp_le_u32 {sA}, 1\ns_cselect_b32 {sA}, 0, 0x80000000\nv_or_b32 {vRW[1]}, {sA}, {vRW[0]}')
    vHw = V.alloc(1)
    I(f's_lshl_b32 {sA}, {sW}, 10\ns_add_u32 {sA}, {sA}, {L_HALO}\nv_lshrrev_b32 {vt0}, 1, {vL31}\nv_lshlrev_b32 {vt0}, 6, {vt0}\nv_and_b32 {vt1}, 1, {vL}\nv_lshl_add_u32 {vt0}, {vt1}, 4, {vt0}\nv_lshl_add_u32 {vt0}, {vH}, 5, {vt0}\nv_add_u32 {vHw}, {sA}, {vt0}')
    vID = V.alloc(1, name='ids'); vIDo = V.alloc(1)
    I(f's_add_u32 {sB}, {sTB}, {O_IDS}\nv_and_b32 {vIDo}, 15, {vL}\nv_lshl_add_u32 {vIDo}, {vIDo}, 7, {sB}')
    id_load = f'buffer_load_dword {vID}, {vIDo}, {WS}, 0 offen sc1'

    def ids_check(k_=None):
        retry([id_load], [f'v_and_b32 {vt0}, -16, {vID}', f'v_cmp_ne_u32 vcc, {sTAG}, {vt0}'], 'id')
        I(f's_or_b32 {sB}, {sTAG}, {sXCC}\nv_cmp_ne_u32 vcc, {sB}, {vID}\ns_cmp_lg_u64 vcc, 0\ns_cselect_b32 {sSLOW}, 1, 0')
        if o.get('force_slow'):
            I(f's_mov_b32 {sSLOW}, 1')

    RP = V.at(208, 4, 'recp'); RH = V.at(216, 4, 'rech'); vRo = V.at(220, 1); vRHo = V.at(221, 1)
    I(f's_lshl_b32 {sA}, {sW}, 9\ns_add_u32 {sA}, {sA}, {sREC}\nv_lshl_add_u32 {vRo}, {vL31}, 4, {sA}')
    I(f's_mov_b32 {sB}, {TS + 2048}\ns_bitcmp1_b32 {sJ}, 2\ns_cselect_b32 {sA}, {sB}, {-TS + 2048 + 2016}\ns_add_u32 {sA}, {sA}, {sREC}\nv_and_b32 {vt0}, 1, {vL}\nv_lshl_add_u32 {vRHo}, {vt0}, 4, {sA}')
    sHE = S.alloc(1, name='haloexists')
    I(f's_bitcmp1_b32 {sJ}, 2\ns_cselect_b32 {sB}, 15, 0\ns_cmp_eq_u32 {sT}, {sB}\ns_cselect_b32 {sHE}, 0, -1')
    rec_loads = [f'buffer_load_dwordx4 {RP}, {vRo}, {WS}, 0 offen sc1', f'buffer_load_dwordx4 {RH}, {vRHo}, {WS}, 0 offen sc1']
    sBs = S.alloc(1, name='bsrc'); sBd = S.alloc(1, name='bdst')
    I(f's_lshl_b32 {sBs}, {sJ}, 15\ns_add_u32 {sBs}, {sBs}, {sW1d}\ns_mul_i32 {sBd}, {sW}, {8*BROW}')

    def bdma(i):
        nm_ = 'BRE' if i % 2 == 0 else 'BIM'
        r = i // 2
        t = f's_add_u32 m0, {sBd}, {L_BB + (32 if i % 2 else 0) * BROW + r * BROW - (r % 4) * 1024}\n'
        if i == 8:
            t += f's_add_u32 {sBs}, {sBs}, 4096\n'
        return t + f'buffer_load_dwordx4 {vL16}, {SRD[nm_]}, {sBs} offen offset:{(r%4)*1024} lds #b'

    I(f'v_bfe_u32 {vt1}, {vL}, 4, 1\nv_lshlrev_b32 {vt0}, 5, {vt1}\nv_and_b32 {vt1}, 1, {vL}\nv_lshl_add_u32 {vt0}, {vt1}, 4, {vt0}\nv_bfe_u32 {vt1}, {vL}, 1, 1\nv_lshl_add_u32 {vt2}, {vt1}, 3, {vt0}')
    I(f'v_bfe_u32 {vt0}, {vL}, 2, 2\nv_lshl_add_u32 {vTRI}, {vt0}, 6, {vt2}\nv_lshl_add_u32 {vTRI}, {vH}, 9, {vTRI}')
    vW1r = V.alloc(1, name='w1rd')
    I(f'v_add_u32 {vW1r}, {L_W1}, {vTRI}')
    vW2r = V.at(119, 2, 'w2rd')
    I(f'v_lshl_add_u32 {vt2}, {vt0}, 7, {vt2}\nv_lshl_add_u32 {vt2}, {vH}, 10, {vt2}\nv_bfe_u32 {vt1}, {vL}, 3, 1\nv_xor_b32 {vt1}, {sN32}, {vt1}\ns_mov_b32 {sB}, {L_W1}\ns_cmp_eq_u32 {sN32}, 0\ns_cselect_b32 {sA}, {L_W2A}, {sB}\nv_add_u32 {vt2}, {sA}, {vt2}')
    I(f'v_lshl_add_u32 {vW2r[0]}, {vt1}, 6, {vt2}\nv_xor_b32 {vW2r[1]}, 64, {vW2r[0]}')
    vXw = V.alloc(1); vXr = V.alloc(1); sXS = S.alloc(1, name='xs')
    I(f's_mul_i32 {sXS}, {sW}, {XSW}\ns_add_u32 {sXS}, {sXS}, {L_UP}\nv_lshrrev_b32 {vt0}, 3, {vL}\nv_mul_u32_u24 {vt0}, 144, {vt0}\nv_and_b32 {vt1}, 7, {vL}\nv_lshl_add_u32 {vt0}, {vt1}, 4, {vt0}\nv_add_u32 {vXw}, {sXS}, {vt0}')
    I(f'v_mul_u32_u24 {vt0}, 144, {vL31}\nv_lshl_add_u32 {vt0}, {vH}, 4, {vt0}\nv_add_u32 {vXr}, {sXS}, {vt0}')
    sH1 = S.alloc(1, name='h1base'); sDEL = sD
    I(f's_lshr_b32 {sA}, {sJ}, 3\ns_add_u32 {sDEL}, {sA}, 1\ns_sub_u32 {sB}, 0, {sDEL}\ns_bitcmp1_b32 {sJ}, 2\ns_cselect_b32 {sDEL}, {sB}, {sDEL}')
    I(f's_lshl_b32 {sH1}, {sJ}, 11\ns_add_u32 {sH1}, {sH1}, {sTB}\ns_add_u32 {sH1}, {sH1}, {O_H1}')

    def h1_rowoff(dst, tp, ta, tb):
        return [f'v_bfe_u32 {ta}, {tp}, 2, 2', f'v_lshlrev_b32 {ta}, 3, {ta}', f'v_bfe_u32 {tb}, {tp}, 4, 1', f'v_lshl_add_u32 {ta}, {tb}, 2, {ta}', f'v_and_b32 {tb}, 3, {tp}', f'v_add_u32 {ta}, {ta}, {tb}', f'v_lshlrev_b32 {ta}, 4, {ta}',
                f'v_lshrrev_b32 {tb}, 5, {tp}', f'v_lshl_add_u32 {ta}, {tb}, 15, {ta}', f'v_cmp_gt_u32 vcc, 128, {tp}\nv_bfrev_b32 {tb}, 1\nv_cndmask_b32 {dst}, {tb}, {ta}, vcc']
    CS1 = V.at(80, 16, 'cs1'); hz = V.at(96, 14, 'hz'); vH1o = V.at(222, 1, 'h1off'); vHHo = V.at(223, 1, 'h1halo'); HZ = V.at(126, 2, 'halo dot, colsum')
    hf = [f'v_and_b32 {hz[8]}, 1, {vL}', f'v_lshlrev_b32 {hz[8]}, 7, {hz[8]}', f'v_lshrrev_b32 {hz[9]}, 1, {vL}', f'v_lshl_add_u32 {hz[8]}, {hz[9]}, 2, {hz[8]}', f'v_add_u32 {hz[8]}, {L_HRED}, {hz[8]}', f'v_lshlrev_b32 {hz[10]}, 2, {hz[9]}', f'v_add_u32 {hz[11]}, {L_HRED + 256}, {hz[10]}']
    hf += [f's_lshl_b32 {sA}, {sW}, 7\ns_add_u32 {sA}, {sA}, {L_TOK}\nv_add_u32 {hz[10]}, {sA}, {hz[10]}', f'v_lshl_add_u32 {hz[12]}, {vH}, 6, {sA}']
    hf += [f'v_bfe_u32 {hz[0]}, {vL31}, 2, 1', f'v_lshlrev_b32 {hz[0]}, 4, {hz[0]}', f'v_lshrrev_b32 {hz[1]}, 3, {vL31}', f'v_lshl_add_u32 {hz[0]}, {hz[1]}, 2, {hz[0]}', f'v_and_b32 {hz[1]}, 3, {vL31}', f'v_add_u32 {vTAU}, {hz[0]}, {hz[1]}']
    hf += [f's_bitcmp1_b32 {sJ}, 2\ns_cselect_b32 {sB}, 128, -2\ns_add_u32 {sB}, {sB}, {sDEL}\nv_and_b32 {hz[2]}, 1, {vL}\nv_add_u32 {hz[2]}, {sB}, {hz[2]}']
    hf += h1_rowoff(hz[3], hz[2], hz[4], hz[5])
    hf += [f'v_bfe_u32 {hz[4]}, {hz[9]}, 3, 1', f'v_lshl_add_u32 {hz[3]}, {hz[4]}, 10, {hz[3]}', f'v_lshrrev_b32 {hz[4]}, 4, {hz[9]}', f'v_lshl_add_u32 {hz[3]}, {hz[4]}, 9, {hz[3]}', f'v_and_b32 {hz[4]}, 7, {hz[9]}', f'v_lshl_add_u32 {hz[3]}, {hz[4]}, 1, {hz[3]}']
    hf += [f's_cmp_lg_u32 {sW}, 0\ns_cselect_b32 {sB}, 0x80000000, 0\nv_or_b32 {vHHo}, {sB}, {hz[3]}']
    hf += [f's_lshl_b32 {sB}, {sW}, 5\ns_add_u32 {sB}, {sB}, {sDEL}\nv_add_u32 {hz[2]}, {sB}, {vTAU}']
    hf += h1_rowoff(vH1o, hz[2], hz[4], hz[5])
    hf += [f'v_lshl_add_u32 {vH1o}, {vH}, 9, {vH1o}']
    vHa = V.at(122, 3, 'ha')
    hf += [f'v_min_u32 {vt0}, 2, {vL31}\nv_lshlrev_b32 {vt0}, 4, {vt0}\nv_lshl_add_u32 {vt0}, {vH}, 6, {vt0}\ns_lshl_b32 {sB}, {sW}, 10\ns_add_u32 {sB}, {sB}, {L_HALO}\nv_add_u32 {vHa[0]}, {sB}, {vt0}',
           f'v_add_u32 {vHa[1]}, {sW1d}, {vW1r}',
           f's_mul_i32 {sB}, {sW}, 384\ns_add_u32 {sB}, {sB}, {L_HRED}\nv_lshlrev_b32 {vt0}, 7, {vL31}\nv_lshl_add_u32 {vt0}, {vH}, 6, {vt0}\nv_add_u32 {vHa[2]}, {sB}, {vt0}']
    vW3o = V.at(112, 7, 'w3o')
    a_, b_, c_, d0, dl, e_ = hz[0], hz[1], hz[2], hz[6], hz[7], hz[3]
    hf += [f'v_bfe_u32 {a_}, {vL}, 1, 3', f'v_xor_b32 {b_}, 4, {a_}', f'v_sub_u32 {b_}, {b_}, {a_}', f'v_mul_i32_i24 {dl}, 3584, {b_}', f'v_mul_u32_u24 {a_}, 3584, {a_}', f'v_and_b32 {b_}, 1, {vL}', f'v_lshl_add_u32 {d0}, {b_}, 4, {a_}', f'v_lshrrev_b32 {e_}, 4, {vL}',
           f'v_mov_b32 {hz[4]}, 28448', f's_mul_i32 {sA}, {sW}, {32*3584}\ns_mul_i32 {sB}, {sJ}, 224\ns_add_u32 {sA}, {sA}, {sB}\nv_add_u32 {d0}, {sA}, {d0}']
    for n in range(7):
        hf += [f'v_add_u32 {a_}, {4*n}, {e_}', f'v_mul_u32_u24 {b_}, 37, {a_}', f'v_lshrrev_b32 {b_}, 8, {b_}', f'v_add_u32 {c_}, {a_}, {b_}', f'v_and_b32 {c_}, 1, {c_}',
               f'v_lshl_add_u32 {a_}, {a_}, 5, {d0}', f'v_mad_i32_i24 {a_}, {c_}, {dl}, {a_}', f'v_mad_u32_u24 {vW3o[n]}, {b_}, {hz[4]}, {a_}']
    for ni in range(2):
        hf += [f's_xor_b32 {sA}, {sN32}, {ni}\ns_lshl_b32 {sA}, {sA}, 10\nv_add_u32 {vLN[ni]}, {sA}, {vL16}']
    vBr = V.at(121, 1, 'brd')
    hf += [f'v_mul_u32_u24 {vBr}, {BROW}, {vL31}', f'v_lshl_add_u32 {vBr}, {vH}, 4, {vBr}']
    vCo, vP4o, vPCd, vP4d, vRTo, vW2o, vCSr, vCSw = [V.at(192 + i, 1, n) for i, n in enumerate(('co', 'p4o', 'pcd', 'p4d', 'rto', 'w2o', 'csr', 'csw'))]
    hf += [f'v_lshrrev_b32 {vt0}, 3, {vL}\nv_bfe_u32 {vt1}, {vL}, 4, 1\nv_lshlrev_b32 {vt1}, 2, {vt1}\nv_and_b32 {vt2}, 7, {vL}\nv_xor_b32 {vt1}, {vt1}, {vt2}\nv_lshlrev_b32 {vt1}, 4, {vt1}\nv_lshl_add_u32 {vW2o}, {vt0}, 10, {vt1}',
           f's_lshl_b32 {sB}, {sW}, 16\ns_lshl_b32 {sA}, {sCG}, 7\ns_add_u32 {sB}, {sB}, {sA}\nv_add_u32 {vW2o}, {sB}, {vW2o}']

    def w2dma(half, i):
        return f's_add_u32 m0, {sW1d}, {(L_W1 if half else L_W2A) + i*1024}\ns_mov_b32 {sBG}, {half*262144 + i*8192}\nbuffer_load_dwordx4 {vW2o}, {SRD["W2"]}, {sBG} offen lds #w2'
    hf += [f'v_and_b32 {vt0}, 7, {vL}\nv_bfe_u32 {vt1}, {vL}, 3, 1\nv_lshl_add_u32 {vt0}, {vt1}, 5, {vt0}\ns_lshl_b32 {sA}, {sW}, 3\nv_add_u32 {vt0}, {sA}, {vt0}\nv_lshlrev_b32 {vCSw}, 2, {vt0}\nv_add_u32 {vCSw}, {L_CSB}, {vCSw}',
           f'v_mul_u32_u24 {vt0}, {BROW}, {vt0}\nv_lshrrev_b32 {vt1}, 4, {vL}\nv_lshl_add_u32 {vCSr}, {vt1}, 4, {vt0}']
    sPI, sWF = [S.alloc(1, name=n) for n in ('pi', 'wf')]
    sPW, sPC, sPD = sC, sD, sBG
    hf += [f's_and_b32 {sPW}, {sJ}, 1\ns_lshl_b32 {sPW}, {sPW}, 1\ns_and_b32 {sA}, {sT}, 1\ns_add_u32 {sPW}, {sPW}, {sA}\ns_lshr_b32 {sPI}, {sT}, 1\ns_lshr_b32 {sPC}, {sJ}, 1'
           f'\nv_and_b32 {vt0}, 0x13, {vL}\nv_bfe_u32 {vt1}, {vL}, 2, 1\nv_lshl_add_u32 {vt0}, {vt1}, 3, {vt0}\nv_bfe_u32 {vt1}, {vL}, 3, 1\nv_lshl_add_u32 {vt0}, {vt1}, 2, {vt0}\nv_lshlrev_b32 {vt0}, 10, {vt0}\nv_lshl_add_u32 {vt0}, {vH}, 4, {vt0}'
           f'\ns_lshl_b32 {sA}, {sPC}, 16\ns_lshl_b32 {sB}, {sN32}, 15\ns_add_u32 {sA}, {sA}, {sB}\ns_lshl_b32 {sB}, {sPW}, 8\ns_add_u32 {sA}, {sA}, {sB}\ns_lshr_b32 {sB}, {sPI}, 1\ns_lshl_b32 {sB}, {sB}, 6\ns_add_u32 {sA}, {sA}, {sB}\ns_lshl_b32 {sB}, {sT32}, 5\ns_add_u32 {sA}, {sA}, {sB}\nv_add_u32 {vCo}, {sA}, {vt0}'
           f'\ns_mul_i32 {sA}, {sPW}, 448\ns_lshr_b32 {sB}, {sPI}, 1\ns_mul_i32 {sB}, {sB}, 112\ns_add_u32 {sA}, {sA}, {sB}\ns_lshl_b32 {sB}, {sW}, 5\ns_add_u32 {sA}, {sA}, {sB}\ns_lshl_b32 {sA}, {sA}, 10\ns_lshl_b32 {sB}, {sPC}, 7\ns_add_u32 {sA}, {sA}, {sB}\ns_and_b32 {sB}, {sPI}, 1\ns_lshl_b32 {sB}, {sB}, 6\ns_add_u32 {sA}, {sA}, {sB}\nv_add_u32 {vP4o}, {sA}, {vPo}'
           f'\ns_lshl_b32 {sA}, {sPC}, 2\ns_add_u32 {sA}, {sA}, {sPW}\ns_mul_i32 {sPD}, {sA}, {WTS}\ns_add_u32 {sPD}, {sPD}, {O_WT}'
           f'\ns_lshl_b32 {sA}, {sA}, 3\ns_add_u32 {sA}, {sA}, {sPI}\ns_lshl_b32 {sA}, {sA}, 7\ns_add_u32 {sWF}, {sA}, {O_WTF}\ns_cmp_lg_u32 {sW}, 0\ns_cselect_b32 {sWF}, 0x80000000, {sWF}'
           f'\ns_lshl_b32 {sA}, {sPI}, 2\ns_add_u32 {sA}, {sA}, {sW}\ns_lshl_b32 {sA}, {sA}, 10\ns_add_u32 {sA}, {sA}, {sPD}\nv_add_u32 {vPCd}, {sA}, {vL16}'
           f'\ns_lshr_b32 {sA}, {sPI}, 1\ns_lshl_b32 {sB}, {sA}, 2\ns_mul_i32 {sA}, {sA}, 3\ns_add_u32 {sA}, {sA}, 12\ns_cmp_lt_u32 {sW}, 2\ns_cselect_b32 {sA}, {sB}, {sA}\ns_lshl_b32 {sB}, {sW}, 1\ns_add_u32 {sA}, {sA}, {sB}\ns_lshl_b32 {sA}, {sA}, 1'
           f'\ns_and_b32 {sB}, {sPI}, 1\ns_add_u32 {sA}, {sA}, {sB}\ns_add_u32 {sA}, {sA}, 32\ns_lshl_b32 {sA}, {sA}, 10\ns_add_u32 {sA}, {sA}, {sPD}\nv_add_u32 {vP4d}, {sA}, {vL16}']
    vTo = V.alloc(1, name='tileoff'); sOWN = S.alloc(1, name='ownfrag'); sB0 = S.alloc(1); sST3 = S.alloc(1)
    hf += [f's_lshl_b32 {sC}, {sTH}, 1\ns_add_u32 {sC}, {sC}, {sT32}\ns_lshl_b32 {sA}, {sT}, 2\ns_add_u32 {sA}, {sA}, {sC}\ns_lshl_b32 {sA}, {sA}, 15\ns_lshl_b32 {sB}, {sCG}, 7\ns_add_u32 {sA}, {sA}, {sB}\ns_lshl_b32 {sB}, {sN32}, 6\ns_add_u32 {sA}, {sA}, {sB}'
           f'\nv_lshlrev_b32 {vt0}, 10, {vTAU}\nv_lshl_add_u32 {vt0}, {vH}, 4, {vt0}\nv_add_u32 {vTo}, {sA}, {vt0}'
           f'\ns_lshl_b32 {sA}, {sC}, 9\ns_add_u32 {sA}, {sA}, {sREC}\nv_lshl_add_u32 {vRTo}, {vL31}, 4, {sA}'
           f'\ns_lshl_b32 {sA}, {sC}, 15\ns_add_u32 {sA}, {sA}, {sTB}\ns_lshl_b32 {sB}, {sN32}, 14\ns_add_u32 {sB0}, {sA}, {sB}\ns_add_u32 {sB0}, {sB0}, {O_H1}'
           f'\ns_lshl_b32 {sB}, {sCG}, 12\ns_add_u32 {sA}, {sA}, {sB}\ns_lshl_b32 {sB}, {sN32}, 11\ns_add_u32 {sA}, {sA}, {sB}\ns_add_u32 {sOWN}, {sA}, {O_X1}'
           f'\ns_lshl_b32 {sA}, {sC}, 12\ns_lshl_b32 {sB}, {sCG}, 9\ns_add_u32 {sA}, {sA}, {sB}\ns_lshl_b32 {sB}, {sN32}, 3\ns_add_u32 {sA}, {sA}, {sB}\ns_add_u32 {sA}, {sA}, {sTB}\ns_add_u32 {sST3}, {sA}, {O_ST3}'
           f'\ns_sub_u32 {sM[1]}, 0, {sN32}\ns_not_b32 {sM[0]}, {sM[1]}']
    S.release(sREC); V.release(vPo)
    k.emit_all(hf)
    stamp('prep')
    k.gap = o.get('gap0', 40)
    NXI = o.get('nxi', 12)
    th1 = touch('h', sH1, 16, vaddr=f's_lshl_b32 {sBG}, {sW}, 15\nv_and_b32 {vTJ[1]}, 15, {vL}\nv_lshl_add_u32 {vTJ[1]}, {vTJ[1]}, 7, {sBG}')
    k.bg.extend(w1_rest + xl[:NXI] + [id_load] + xl[NXI:] + th1)

    def xT(kg):
        return ([f'ds_write_b128 {vXw}, {XN.t(16*kg + 4*j, 4)} offset:{j*1152}' for j in range(4)]
                + [f'ds_read_b128 {XN.t(16*kg + 4*j, 4)}, {vXr} offset:{j*32}' for j in range(4)])

    def bg_until(L):
        while any(t in k.bg for t in L):
            k.run(k.bg.popleft())

    L1 = dsums(XP, SQ, tq, vONE)
    k.emit_all(L1[:1])
    stamp('x_in')
    k.emit_all(zipl(L1[1:], unpack(F, XP)))
    I(f'ds_write_b128 {vHw}, {HP}')
    k.emit_all(ror(SQ) + xswap(SQ, tq, 16))
    k.emit_all(finish_stats(SQ, NM[0], RI[0], REC[0], tq))
    nm = NM.t(0, 2); ri = RI.t(0, 2)
    for i in range(8):
        I(f'v_pk_add_f32 {F.t(2*i,2)}, {F.t(2*i,2)}, {nm} op_sel_hi:[1,0]')
    for i in range(8):
        I(f'v_cvt_pk_bf16_f32 {XP[i]}, {F[2*i]}, {F[2*i+1]}')
    k.emit_all(unpack(F, XP))
    for i in range(8):
        I(f'v_pk_mul_f32 {F.t(2*i,2)}, {F.t(2*i,2)}, {ri} op_sel_hi:[1,0]')
    for i in range(8):
        I(f'v_cvt_pk_bf16_f32 {XP[i]}, {F[2*i]}, {F[2*i+1]}')
    k.emit_all(dsums(XP, SQ, tq, vONE))
    k.emit_all(ror(SQ) + xswap(SQ, tq, 16))
    k.emit_all(finish_stats(SQ, None, None, REC[2], tq))
    bg_until([id_load])
    ids_check()
    I('s_mov_b32 exec_lo, 1\ns_mov_b32 exec_hi, 1')
    stores([f'buffer_store_dwordx4 {REC}, {vRW[0]}, {WS}, 0 offen'], tag='rec')
    I(f'buffer_store_dwordx4 {REC}, {vRW[1]}, {WS}, 0 offen offset:2048 sc0 sc1')
    I('s_mov_b64 exec, -1')
    stamp('rec_st')
    V.release(F, SQ, tq, NM, RI, REC, XP, HP, vHw, vJUNK, vRW, vFFFF, vID, vIDo)
    NB0 = o.get('nb0', 6)
    k.bg.extend([bdma(i) for i in range(NB0)] + rec_loads + [bdma(i) for i in range(NB0, 16)] + [w2dma(0, i) for i in range(8)])

    LAM, CF, L16, L128, LOWN, L256 = [V.at(180 + 2 * i, 2, n) for i, n in enumerate(('lam', 'coef2', 'lam16', 'lam128', 'lown', 'lam256'))]
    T = V.at(160, 8, 'ctmp')
    cc = [f'v_lshlrev_b32 {vLre}, 16, {vLre}', f'v_lshlrev_b32 {vLim}, 16, {vLim}', f'v_lshlrev_b32 {vLdt}, 16, {vLdt}',
          f'v_mul_f32 {T[0]}, {hx(LOG2E)}, {vLdt}', f'v_exp_f32 {T[0]}, {T[0]}', f'v_cvt_pk_bf16_f32 {T[0]}, {T[0]}, {T[0]}', f'v_lshlrev_b32 {T[0]}, 16, {T[0]}',
          f'v_mul_f32 {T[1]}, {T[0]}, {vLre}', f'v_mul_f32 {T[2]}, {T[0]}, {vLim}', f'v_mul_f32 {T[1]}, {hx(LOG2E)}, {T[1]}', f'v_exp_f32 {T[1]}, {T[1]}',
          f'v_mul_f32 {T[2]}, {hx(1.0 / (2 * math.pi))}, {T[2]}', f'v_rndne_f32 {T[3]}, {T[2]}', f'v_sub_f32 {T[2]}, {T[2]}, {T[3]}',
          f'v_cos_f32 {T[3]}, {T[2]}', f'v_sin_f32 {T[4]}, {T[2]}', f'v_mul_f32 {LAM[0]}, {T[1]}, {T[3]}', f'v_mul_f32 {LAM[1]}, {T[1]}, {T[4]}', f'v_add_f32 {T[0]}, -1.0, {LAM[0]}',
          f'v_mul_f32 {T[1]}, {vLre}, {vLre}', f'v_fmac_f32 {T[1]}, {vLim}, {vLim}', f'v_rcp_f32 {T[1]}, {T[1]}', f'v_add_f32 {T[1]}, {T[1]}, {T[1]}',
          f'v_mul_f32 {T[2]}, {T[0]}, {vLre}', f'v_fmac_f32 {T[2]}, {LAM[1]}, {vLim}', f'v_mul_f32 {CF[0]}, {T[2]}, {T[1]}',
          f'v_mul_f32 {T[3]}, {LAM[1]}, {vLre}', f'v_fma_f32 {T[3]}, -{T[0]}, {vLim}, {T[3]}', f'v_mul_f32 {CF[1]}, {T[3]}, {T[1]}']

    def csq(d, s):
        return [f'v_mul_f32 {d[0]}, {s[1]}, {s[1]}', f'v_mul_f32 {d[1]}, {s[0]}, {s[1]}', f'v_fma_f32 {d[0]}, {s[0]}, {s[0]}, -{d[0]}', f'v_add_f32 {d[1]}, {d[1]}, {d[1]}']

    def cmul(d, a, b):
        return [f'v_mul_f32 {d[0]}, {a[1]}, {b[1]}', f'v_mul_f32 {d[1]}, {a[0]}, {b[1]}', f'v_fma_f32 {d[0]}, {a[0]}, {b[0]}, -{d[0]}', f'v_fmac_f32 {d[1]}, {a[1]}, {b[0]}']
    Ta, Tb, Tc, Td = T.sub(0, 2), T.sub(2, 2), T.sub(4, 2), T.sub(6, 2)
    cc += csq(Ta, LAM) + csq(Tb, Ta) + csq(Ta, Tb) + csq(L16, Ta) + csq(Ta, L16) + csq(Tb, Ta) + csq(L128, Tb) + csq(L256, L128)
    cc += [f'v_mov_b32 {Td[0]}, 1.0', f'v_mov_b32 {Td[1]}, 0',
           f'v_cmp_eq_u32 vcc, 1, {vH}\nv_cndmask_b32 {Tc[0]}, {Td[0]}, {L16[0]}, vcc\nv_cndmask_b32 {Tc[1]}, {Td[1]}, {L16[1]}, vcc',
           f's_bitcmp1_b32 {sW}, 0\ns_cselect_b64 vcc, -1, 0\nv_cndmask_b32 {Ta[0]}, {Td[0]}, {Ta[0]}, vcc\nv_cndmask_b32 {Ta[1]}, {Td[1]}, {Ta[1]}, vcc',
           f's_bitcmp1_b32 {sW}, 1\ns_cselect_b64 vcc, -1, 0\nv_cndmask_b32 {Tb[0]}, {Td[0]}, {Tb[0]}, vcc\nv_cndmask_b32 {Tb[1]}, {Td[1]}, {Tb[1]}, vcc']
    cc += cmul(Td, Tc, Ta) + cmul(LOWN, Td, Tb)

    HA = V.at(64, 16, 'hacc'); WF = A.at(192, 24, 'wf')
    NXT = o.get('nxt', 2)
    bg_until(w1_rest + xl[:4*NXT])
    k.wait_vm_tag('w1')
    stamp('w1_in')
    V.release(vW1o)
    k.region()
    for i in range(8):
        b = (i % 3) * 8
        I(f'ds_read_b64_tr_b16 {WF.t(b,2)}, {vHa[1]} offset:{i*1024}\nds_read_b64_tr_b16 {WF.t(b+2,2)}, {vHa[1]} offset:{i*1024+256}\nds_read_b128 {WF.t(b+4,4)}, {vHa[0]} offset:{i*128}')
        if i >= 2:
            j = i - 2; bb = (j % 3) * 8
            k.anchor(f'v_mfma_f32_32x32x16_bf16 {HA}, {WF.t(bb,4)}, {WF.t(bb+4,4)}, {HA if j else 0}')
    for j in (6, 7):
        bb = (j % 3) * 8
        k.anchor(f'v_mfma_f32_32x32x16_bf16 {HA}, {WF.t(bb,4)}, {WF.t(bb+4,4)}, {HA}')
    for kg in range(NXT):
        k.emit_all(xT(kg))
    I('s_mov_b32 exec_lo, 7\ns_mov_b32 exec_hi, 7')
    for i in range(4):
        I(f'ds_write_b128 {vHa[2]}, {HA.t(4*i,4)} offset:{16*i}')
    I('s_mov_b64 exec, -1')
    V.release(HA, vHa)
    k.barrier()
    stamp('g3_go')

    KK = V.alloc(4, 2, 'k0 k1 nm sd'); KH_ = V.alloc(4, 2, 'halo k0 k1 nm sd'); e4 = V.at(168, 8, 'e4')
    hf = []
    for w in range(4):
        hf += [f'ds_read_b32 {hz[w]}, {hz[8]} offset:{w*384}', f'ds_read_b32 {hz[4+w]}, {hz[11]} offset:{w*384}']
    hf += cc[:12]
    hf += [f'v_add_f32 {hz[0]}, {hz[0]}, {hz[1]}', f'v_add_f32 {hz[2]}, {hz[2]}, {hz[3]}', f'v_add_f32 {hz[4]}, {hz[4]}, {hz[5]}', f'v_add_f32 {hz[6]}, {hz[6]}, {hz[7]}', f'v_add_f32 {HZ[0]}, {hz[0]}, {hz[2]}', f'v_add_f32 {HZ[1]}, {hz[4]}, {hz[6]}']
    hf += [f'ds_write_b32 {hz[10]}, {HZ[1]}'] + [f'ds_read_b128 {CS1.t(4*i,4)}, {hz[12]} offset:{16*i}' for i in range(4)]
    hf += cc[12:]
    rtest = [f'v_xor_b32 {e4[0]}, {RP[1]}, {vTAGV}', f'v_xor_b32 {e4[1]}, {RP[3]}, {vTAGV}', f'v_xor_b32 {e4[4]}, {RH[1]}, {vTAGV}', f'v_xor_b32 {e4[5]}, {RH[3]}, {vTAGV}',
             f'v_or_b32 {e4[0]}, {e4[0]}, {e4[1]}', f'v_or_b32 {e4[4]}, {e4[4]}, {e4[5]}', f'v_and_or_b32 {e4[1]}, {e4[4]}, {sHE}, {e4[0]}', f'v_cmp_ne_u32 vcc, 0, {e4[1]}']

    def tokconst(R, K_, t):
        return [f'v_lshlrev_b32 {t[0]}, 16, {R[0]}', f'v_and_b32 {t[1]}, {vMASK}, {R[0]}', f'v_lshlrev_b32 {t[2]}, 16, {R[2]}', f'v_and_b32 {t[3]}, {vMASK}, {R[2]}',
                f'v_mul_f32 {K_[3]}, {t[1]}, {t[3]}', f'v_rcp_f32 {t[3]}, {K_[3]}', f'v_fma_f32 {K_[2]}, -{t[2]}, {t[1]}, -{t[0]}',
                f'v_mul_f32 {K_[0]}, {hx(GC0)}, {t[3]}', f'v_mul_f32 {t[2]}, {t[3]}, {t[3]}', f'v_mul_f32 {t[3]}, {hx(GC1)}, {t[3]}', f'v_mul_f32 {K_[1]}, {t[2]}, {t[3]}']
    z, u = HZ[0], HZ[1]
    halo = [f'v_fmac_f32 {z}, {KH_[2]}, {u}', f'v_mul_f32 {u}, {z}, {z}', f'v_fma_f32 {u}, {u}, {KH_[1]}, {KH_[0]}', f'v_mul_f32 {u}, {u}, {z}', f'v_exp_f32 {u}, {u}', f'v_fma_f32 {u}, {u}, {KH_[3]}, {KH_[3]}',
            f'v_rcp_f32 {u}, {u}', f'v_mul_f32 {u}, {u}, {z}', f'v_cvt_pk_bf16_f32 {u}, {u}, {u}', f'v_and_b32 {u}, {sHE}, {u}']
    hf += [At(o.get('rec_at', 24)), Item(lambda k_: (bg_until(rec_loads), retry(rec_loads, rtest, 'rec'), stamp('rec_in')), 12)]
    hf += zipl(tokconst(RP, KK, e4.sub(0, 4)), tokconst(RH, KH_, e4.sub(4, 4))) + halo
    hf += [f'v_rcp_f32 {e4[1]}, {e4[1]}', f's_lshl_b32 {sA}, {sW}, 8\ns_add_u32 {sA}, {sA}, {L_TOK2}\nv_lshl_add_u32 {vt0}, {vTAU}, 2, {sA}', f'ds_write2_b32 {vt0}, {e4[0]}, {e4[1]} offset1:32']
    k.fill.extend(hf)

    A3 = V.at(64, 16, 'a3')
    NB, AH = 6, 3

    def w1read(ks):
        b = (ks % NB) * 4
        return [f'ds_read_b64_tr_b16 {WF.t(b,2)}, {vW1r} offset:{ks*1024}', f'ds_read_b64_tr_b16 {WF.t(b+2,2)}, {vW1r} offset:{ks*1024+256}']
    g3 = []
    for ks in range(AH):
        g3 += w1read(ks)
    for ks in range(32):
        kg = ks // 4 + NXT
        if kg < 8:
            T_ = xT(kg)
            g3 += {0: [lambda k_, kg=kg: bg_until(xl[:4*kg+4])] + T_[0:2], 1: T_[2:5], 2: T_[5:8], 3: []}[ks % 4]
        if ks + AH < 32:
            g3 += w1read(ks + AH)
        g3.append(f'v_mfma_f32_32x32x16_bf16 {A3}, {WF.t((ks % NB)*4,4)}, {XN.t(4*ks,4)}, {A3 if ks else 0}')
        if ks in (7, 15, 23):
            g3 += fstamp(f'g3_{ks+1}')
    k.region()
    k.slack = o.get('slack3', 24)
    k.emit_all(g3)
    k.slack = 0
    k.drain_fill()
    stamp('g3_done')
    V.release(hz, vXw, vXr, vXo, T, vLre, vLim, vLdt)
    S.release(sXJ)

    def gelu_pk(Z, CS, K_, t, outs):
        n = Z.n // 2
        P = lambda R, i: R.t(2 * i, 2)
        k01, k23 = K_.t(0, 2), K_.t(2, 2)
        L = []
        for i in range(n): L.append(f'v_pk_fma_f32 {P(Z,i)}, {P(CS,i)}, {k23}, {P(Z,i)} op_sel_hi:[1,0,1]')
        for i in range(n): L.append(f'v_pk_mul_f32 {P(t,i)}, {P(Z,i)}, {P(Z,i)}')
        for i in range(n): L.append(f'v_pk_fma_f32 {P(t,i)}, {P(t,i)}, {k01}, {k01} op_sel:[0,1,0] op_sel_hi:[1,1,0]')
        for i in range(n): L.append(f'v_pk_mul_f32 {P(t,i)}, {P(t,i)}, {P(Z,i)}')
        for i in range(2 * n): L.append(f'v_exp_f32 {t[i]}, {t[i]}')
        for i in range(n): L.append(f'v_pk_fma_f32 {P(t,i)}, {P(t,i)}, {k23}, {k23} op_sel:[0,1,1] op_sel_hi:[1,1,1]')
        for i in range(2 * n): L.append(f'v_rcp_f32 {t[i]}, {t[i]}')
        for i in range(n): L.append(f'v_pk_mul_f32 {P(t,i)}, {P(t,i)}, {P(Z,i)}')
        for i in range(n): L.append(f'v_cvt_pk_bf16_f32 {outs[i]}, {t[2*i]}, {t[2*i+1]}')
        return L

    def gelu_1(Z, CS, K_, t, outs):
        n = Z.n
        L = []
        for i in range(n): L.append(f'v_fmac_f32 {Z[i]}, {CS[i]}, {K_[2]}')
        for i in range(n): L.append(f'v_mul_f32 {t[i]}, {Z[i]}, {Z[i]}')
        for i in range(n): L.append(f'v_fma_f32 {t[i]}, {t[i]}, {K_[1]}, {K_[0]}')
        for i in range(n): L.append(f'v_mul_f32 {t[i]}, {t[i]}, {Z[i]}')
        for i in range(n): L.append(f'v_exp_f32 {t[i]}, {t[i]}')
        for i in range(n): L.append(f'v_fma_f32 {t[i]}, {t[i]}, {K_[3]}, {K_[3]}')
        for i in range(n): L.append(f'v_rcp_f32 {t[i]}, {t[i]}')
        for i in range(n): L.append(f'v_mul_f32 {t[i]}, {t[i]}, {Z[i]}')
        for i in range(n // 2): L.append(f'v_cvt_pk_bf16_f32 {outs[i]}, {t[2*i]}, {t[2*i+1]}')
        return L
    GT = V.at(128, 16, 'gt'); HP2 = V.at(104, 8, 'h1p')
    k.lock += o.get('quiet3', 0)
    k.emit_all(gelu_pk(A3, CS1, KK, GT, [HP2[i] for i in range(8)]))
    stores([f'buffer_store_dwordx4 {HP2.t(0,4)}, {vH1o}, {WS}, {sH1} offen', f'buffer_store_dwordx4 {HP2.t(4,4)}, {vH1o}, {WS}, {sH1} offen offset:1024',
            f'buffer_store_short {u}, {vHHo}, {WS}, {sH1} offen'])
    k.lock -= o.get('quiet3', 0)
    stamp('h1_st')
    V.release(A3, CS1, KK, KH_, e4, GT, RP, RH, vRo, vRHo, vH1o, vHHo, HZ, vW1r)
    S.release(sH1, sHE)

    CQ = V.at(240, 4, 'cpiece'); PT = V.at(244, 8, 'pt')

    def c_raw(k_):
        I(f's_bitcmp1_b32 {sPI}, 0\ns_cbranch_scc1 L_cim')
        k.raw(f'  buffer_load_dwordx4 {CQ}, {vCo}, {SRD["CRE"]}, 0 offen\n  s_branch L_cdone\nL_cim:')
        I(f'buffer_load_dwordx4 {CQ}, {vCo}, {SRD["CIM"]}, 0 offen #craw')
        k.label('L_cdone')
    XT = V.at(96, 8, 'xtile'); XNT = V.alloc(8, 4, 'xnt'); RT = V.at(252, 4, 'rect')
    xt_loads = [f'buffer_load_dwordx4 {XT.t(0,4)}, {vTo}, {SRD["X"]}, 0 offen', f'buffer_load_dwordx4 {XT.t(4,4)}, {vTo}, {SRD["X"]}, 0 offen offset:32']
    rt_load = f'buffer_load_dwordx4 {RT}, {vRTo}, {WS}, 0 offen sc1'
    bg_until([bdma(15)])
    S.release(sBs, sBd)
    k.gap = o.get('gap1', 64)
    rest = list(k.bg); k.bg.clear()
    tx1 = touch('x', sOWN, 16) + touch('x', sST3, 4)
    k.bg.extend([rt_load] + xt_loads + rest + tx1 + [c_raw, f's_mov_b32 m0, {sXS}\nbuffer_load_dwordx4 {vP4o}, {SRD["W4"]}, 0 offen lds #praw',
                 f's_add_u32 m0, {sXS}, 1024\ns_movk_i32 {sBG}, 16384\nbuffer_load_dwordx4 {vP4o}, {SRD["W4"]}, {sBG} offen lds #praw'])
    k.wait_vm_tag('b')
    k.barrier()
    stamp('g1_go')
    k.bg.extend(w2dma(1, i) for i in range(8))

    ARE = V.at(128, 16, 'are'); AIM = V.at(144, 16, 'aim')
    ACC = [V.at(64, 16, 'acc4a'), V.at(80, 16, 'acc4b')]
    a0 = ACC[0]
    xn = [Item(lambda k_: (bg_until([rt_load] + xt_loads), retry([rt_load], [f'v_xor_b32 {vt0}, {RT[1]}, {vTAGV}', f'v_cmp_ne_u32 vcc, 0, {vt0}'], 'rt')), 16),
          f'v_and_b32 {RT[1]}, {vMASK}, {RT[0]}', f'v_lshlrev_b32 {RT[0]}, 16, {RT[0]}', f'v_rcp_f32 {RT[1]}, {RT[1]}']
    xn += unpack(a0, XT)
    xn += [f'v_sub_f32 {a0[i]}, {a0[i]}, {RT[0]}' for i in range(16)]
    xn += [f'v_cvt_pk_bf16_f32 {XNT[i]}, {a0[2*i]}, {a0[2*i+1]}' for i in range(8)]
    xn += unpack(a0, XNT)
    xn += [f'v_mul_f32 {a0[i]}, {a0[i]}, {RT[1]}' for i in range(16)]
    xn += [f'v_cvt_pk_bf16_f32 {XNT[i]}, {a0[2*i]}, {a0[2*i+1]}' for i in range(8)]
    xn += unpack(a0, XNT)

    pst = [f'v_add_u32 {vt3}, {sXS}, {vTRI}', '@waitvm praw']
    pst += [f'ds_read_b64_tr_b16 {PT.t(4*s+2*rd,2)}, {vt3} offset:{s*1024 + rd*256}' for s in range(2) for rd in range(2)]
    pst += [f'buffer_store_dwordx4 {CQ}, {vPCd}, {WS}, 0 offen sc0 sc1 #wt', f's_cmp_eq_u32 {sW}, 3\ns_cselect_b32 {sA}, 0x80000000, 0',
            f'buffer_store_dwordx4 {PT.t(0,4)}, {vP4d}, {WS}, 0 offen sc0 sc1 #wt', f'buffer_store_dwordx4 {PT.t(4,4)}, {vP4d}, {WS}, {sA} offen offset:2048 sc0 sc1 #wt']

    Q = Quads()
    k.Q = Q
    QA1 = A.at(128, 64, 'qa1'); Q.add(QA1)

    class Stream:
        def __init__(s, r):
            s.r = r; s.base = 0

        def at(s, off):
            assert off >= s.base
            if off >= s.base + 4096:
                nb = off & ~4095
                I(f's_add_u32 {s.r}, {s.r}, {nb - s.base}')
                s.base = nb
            return off - s.base

    def act_load(key, pos, st):
        def f(k_):
            q = Q.take(key)
            off = st.at(pos * 1024)
            I(f'buffer_load_dwordx4 {q}, {vL16}, {WS}, {st.r} offen offset:{off}' + o.get('actmod', ' sc1'))
        return f
    vFV = V.alloc(1, name='flagval')

    def h1_go(k_):
        lazy_check(vFV, sFL, 256, sM)
        stamp('h1_seen')
        st = Stream(sB0)
        k.hi.extend(act_load(('h1', ks, 0), ks, st) for ks in range(16))
    ONES = V.at(200, 4, 'ones'); CSD = V.at(204, 4, 'csd')
    k.fill.extend([f'v_mov_b32 {ONES[i]}, 0x3f803f80' for i in range(4)] + [At(o.get('pub1at', 6)), Item(lambda k_: (publish(1), stamp('h1_pub')), 24), At(o.get('xn_at', 12))] + xn + [At(o.get('pst_at', 40))] + pst)
    late1 = [At(o.get('h1f', 36)), flag_load(vFV, sFL, 256), At(o.get('h1c', 52)), Item(h1_go, 12)]

    def bread(i):
        if i >= 64:
            return f'ds_read_b128 {WF.t((i % NB)*4,4)}, {vCSr} offset:{(i-64)*64}'
        return f'ds_read_b128 {WF.t((i % NB)*4,4)}, {vBr} offset:{(i//2)*32 + (32*BROW if i % 2 else 0)}'
    g1 = [bread(i) for i in range(4)]
    for i in range(80):
        if i + 4 < 80:
            g1.append(bread(i + 4))
        if i == o.get('h1f', 36):
            g1.append(flag_load(vFV, sFL, 256))
        if i == o.get('h1c', 52):
            g1.append(h1_go)
        if i < 64:
            acc = AIM if i % 2 else ARE
            g1.append(f'v_mfma_f32_32x32x16_bf16 {acc}, {XN.t(4*(i//2),4)}, {WF.t((i % NB)*4,4)}, {acc if i >= 2 else 0}')
        else:
            g1.append(f'v_mfma_f32_16x16x32_bf16 {CSD}, {ONES}, {WF.t((i % NB)*4,4)}, {CSD if i > 64 else 0}')
        if i in (15, 31, 47, 63):
            g1 += fstamp(f'g1_{i+1}')
    k.region()
    k.emit_all(g1)
    k.drain_fill()
    I(f'ds_write_b32 {vCSw}, {CSD[0]}')
    stamp('g1_done')
    A.release(XN)
    k.drain_bg()
    V.release(HP2, vBr, vCo, vP4o, vPCd, vP4d, CQ, PT, RT, vRTo, XT, vW2o, vCSr, vCSw, ONES, CSD)
    S.release(sPI, sXS)
    k.wait_vm_tag('w2'); k.wait_vm_tag('wt')
    k.barrier()
    I('s_mov_b64 exec, 1')
    I(f'buffer_store_dword {vTAGV}, {vZERO}, {WS}, {sWF} offen sc0 sc1')
    I('s_mov_b64 exec, -1')
    S.release(sWF)
    stamp('g4_go')

    sW3d = S.alloc(1, name='w3dst'); sSTG = S.alloc(1, name='stgbase')
    I(f's_mul_i32 {sW3d}, {sW}, 7168\ns_mul_i32 {sSTG}, {sW}, {STGW}\ns_add_u32 {sSTG}, {sSTG}, {L_UP}')
    sW3s = sW1d

    def w3_dma(q):
        L = []
        for n in range(7):
            m0 = f's_add_u32 m0, {sW3d}, {q*4*7168 + n*1024}' if q < 3 else f's_add_u32 m0, {sSTG}, {n*1024}'
            if n == 0:
                m0 += f'\ns_mov_b32 {sW3s}, {q*4*32*3584}'
            L.append(f'{m0}\nbuffer_load_dwordx4 {vW3o[n]}, {SRD["W3"]}, {sW3s} offen lds #w3' + ('b' if q == 3 else ''))
        return L
    k.bg.extend(w3_dma(0) + w3_dma(1))

    def w2read(i):
        ks, ni = i // 2, i % 2
        b = (i % NB) * 4
        return [f'ds_read_b64_tr_b16 {WF.t(b+2*rd,2)}, {vW2r[ni]} offset:{ks*2048 + rd*512}' for rd in range(2)]
    g4 = []
    for i in range(AH):
        g4 += w2read(i)
    for i in range(32):
        if i + AH < 32:
            g4 += w2read(i + AH)

        def f(k_, i=i):
            ks, ni = i // 2, i % 2
            I(f'v_mfma_f32_32x32x16_bf16 {ACC[ni]}, {WF.t((i % NB)*4,4)}, {Q[("h1", ks, 0)]}, {ACC[ni] if (ks or ni == 0) else 0}')
            if ni == 1:
                Q.give(('h1', ks, 0))
        g4.append(Anchor(f))
    TM = V.at(200, 32, 'tokm'); CSB = V.alloc(2, 2, 'csb')
    sc = [f'v_lshlrev_b32 {vt0}, 2, {vL31}', f'v_add_u32 {vt0}, {L_CSB}, {vt0}',
          f'ds_read2_b32 {CSB}, {vt0} offset1:32',
          f's_lshl_b32 {sA}, {sW}, 8\ns_add_u32 {sA}, {sA}, {L_TOK2}\nv_lshl_add_u32 {vt0}, {vH}, 6, {sA}']
    sc += [f'ds_read_b128 {TM.t(4*i,4)}, {vt0} offset:{(i//4)*128 + (i%4)*16}' for i in range(8)]
    for r in range(16):
        sc += [f'v_fma_f32 {ARE[r]}, -{TM[r]}, {CSB[0]}, {ARE[r]}', f'v_fma_f32 {AIM[r]}, -{TM[r]}, {CSB[1]}, {AIM[r]}']
    for r in range(16):
        sc += [f'v_mul_f32 {ARE[r]}, {TM[16+r]}, {ARE[r]}', f'v_mul_f32 {AIM[r]}, {TM[16+r]}, {AIM[r]}']
    G = V.alloc(2, 2, 'g'); gt = V.alloc(4, 2)

    class V2:
        def __init__(s, a, b): s.r = (a, b)
        def __getitem__(s, i): return s.r[i]
    cur, oth = V2(ARE[0], AIM[0]), G
    nxt = gt.sub(0, 2)
    for r in range(1, 16):
        sc += [f'v_fma_f32 {oth[0]}, {LAM[0]}, {cur[0]}, {ARE[r]}', f'v_fma_f32 {oth[1]}, {LAM[0]}, {cur[1]}, {AIM[r]}',
               f'v_fma_f32 {oth[0]}, -{LAM[1]}, {cur[1]}, {oth[0]}', f'v_fma_f32 {oth[1]}, {LAM[1]}, {cur[0]}, {oth[1]}']
        cur, oth = oth, (nxt if r == 1 else cur)
    sc += [f's_lshl_b32 {sA}, {sW}, 9\ns_add_u32 {sA}, {sA}, {L_SEG}\nv_lshl_add_u32 {vt0}, {vL}, 3, {sA}', f'ds_write_b64 {vt0}, {cur.t(0,2)}']
    k.fill.extend([f's_xor_b32 {sA}, {sW}, 1\ns_lshl_b32 {sA}, {sA}, 12\ns_add_u32 {sA}, {sA}, {L_RED4}\nv_add_u32 {vt1}, {sA}, {vL16}\nv_xor_b32 {vt2}, 4096, {vt1}'] + sc)
    k.drain_hi()
    k.region()
    k.emit_all(g4)
    stamp('g4_mfma')
    k.lock += 1
    for q in range(4):
        I(f'ds_write_b128 {vt1}, {ACC[1].t(4*q,4)} offset:{q*1024}')
    k.barrier()
    for q in range(4):
        I(f'ds_read_b128 {ACC[1].t(4*q,4)}, {vt2} offset:{q*1024}')
    for q in range(8):
        I(f'v_pk_add_f32 {a0.t(2*q,2)}, {a0.t(2*q,2)}, {ACC[1].t(2*q,2)}')
    X1P = V.alloc(8, 4, 'x1p')
    for i in range(8):
        I(f'v_cvt_pk_bf16_f32 {X1P[i]}, {a0[2*i]}, {a0[2*i+1]}')
    SQ = ACC[1].sub(0, 2); tq = ACC[1].sub(2, 2)
    stores([f'buffer_store_dwordx4 {X1P.t(0,4)}, {vL16}, {WS}, {sOWN} offen', f'buffer_store_dwordx4 {X1P.t(4,4)}, {vL16}, {WS}, {sOWN} offen offset:1024'])
    k.emit_all(dsums(X1P, SQ, tq, vONE)); k.emit_all(xswap(SQ, tq, 32))
    I('s_mov_b32 exec_hi, 0')
    stores([f'buffer_store_dwordx2 {SQ}, {vL16}, {WS}, {sST3} offen'])
    I('s_mov_b64 exec, -1')
    k.lock -= 1
    stamp('x1_st')
    k.bg.extend(w3_dma(2))
    S.release(sOWN, sST3)
    k.drain_fill()
    V.release(TM, CSB, vW2r, vONE); A.release(WF)
    for a in ACC: V.release(a)
    k.barrier()
    k.bg.extend(w3_dma(3))

    E = V.at(64, 16, 'segs')
    I(f'v_lshlrev_b32 {vt0}, 3, {vL31}\nv_add_u32 {vt0}, {L_SEG}, {vt0}')
    for s in range(8):
        I(f'ds_read_b64 {E.t(2*s,2)}, {vt0} offset:{s*256}')
    publish(2)
    stamp('x1_pub')
    CIN = V.alloc(2, 2, 'cin'); P = V2(E[0], E[1]); Qq = gt.sub(2, 2); Q2 = gt.sub(0, 2)
    I(f's_lshl_b32 {sA}, {sW}, 1\nv_add_u32 {vt0}, {sA}, {vH}\nv_mov_b32 {CIN[0]}, 0\nv_mov_b32 {CIN[1]}, 0')
    for s in range(1, 8):
        I(f'v_cmp_eq_u32 vcc, {s}, {vt0}\nv_fma_f32 {Qq[0]}, {L16[0]}, {P[0]}, {E[2*s]}\nv_fma_f32 {Qq[1]}, {L16[0]}, {P[1]}, {E[2*s+1]}'
          f'\nv_cndmask_b32 {CIN[0]}, {CIN[0]}, {P[0]}, vcc\nv_cndmask_b32 {CIN[1]}, {CIN[1]}, {P[1]}, vcc')
        I(f'v_fma_f32 {Qq[0]}, -{L16[1]}, {P[1]}, {Qq[0]}\nv_fma_f32 {Qq[1]}, {L16[1]}, {P[0]}, {Qq[1]}')
        P, Qq = Qq, (Q2 if s == 1 else P)
    I(f'v_mov_b32 {E[0]}, {P[0]}\nv_mov_b32 {E[1]}, {vTAGV}\nv_mov_b32 {E[2]}, {P[1]}\nv_mov_b32 {E[3]}, {vTAGV}')
    sSC = S.alloc(1, name='scanbase')
    I(f's_lshl_b32 {sSC}, {sJ}, 9\ns_add_u32 {sSC}, {sSC}, {O_SCAN}\ns_lshl_b32 {sA}, {sT}, 13\ns_add_u32 {sA}, {sA}, {sSC}\nv_lshlrev_b32 {vt0}, 4, {vL31}')
    I(f's_cmp_lg_u32 {sW}, 0\ns_cselect_b32 {sA}, 0x80000000, {sA}\ns_mov_b32 exec_hi, 0')
    I(f'buffer_store_dwordx4 {E.t(0,4)}, {vt0}, {WS}, {sA} offen sc0 sc1')
    I('s_mov_b64 exec, -1')
    V.release(E, G, gt, L16)
    stamp('scan1')

    sWT = S.alloc(1, name='wtbase'); sWB = S.alloc(1, name='wtb'); vWTF = V.alloc(2, 1)
    I(f's_lshl_b32 {sA}, {sCG}, 2\ns_add_u32 {sA}, {sA}, {sW}\ns_lshl_b32 {sB}, {sA}, 10\ns_add_u32 {sB}, {sB}, {O_WTF}\ns_mul_i32 {sWT}, {sA}, {WTS}\ns_add_u32 {sWT}, {sWT}, {O_WT}\ns_add_u32 {sWB}, {sWT}, 65536')
    I(f'v_and_b32 {vWTF[1]}, 7, {vL}\nv_lshl_add_u32 {vWTF[1]}, {vWTF[1]}, 7, {sB}')
    wtf_load = f'buffer_load_dword {vWTF[0]}, {vWTF[1]}, {WS}, 0 offen sc1'
    I(wtf_load)
    I(flag_load(vFV, sFL, 512))
    stWT = Stream(sWT); stWB = Stream(sWB)
    k.raw('; WTSTART')

    def wt_load(key, frag):
        def f(k_):
            q = Q.take(key)
            off = stWT.at(frag * 1024)
            I(f'buffer_load_dwordx4 {q}, {vLN[key[2]]}, {WS}, {sWT} offen offset:{off}')
        return f

    def wb_load(i):
        def f(k_):
            off = stWB.at(i * 1024)
            if i % 2 == 0:
                I(f's_add_u32 m0, {sL4}, {(i // 2) * 8192 - off}' if i else f's_mov_b32 m0, {sL4}')
            I(f'buffer_load_dwordx4 {vL16}, {WS}, {sWB} offen offset:{off} lds #wb')
        return f
    sHS = [S.alloc(1), S.alloc(1)]; sHH = [S.alloc(1), S.alloc(1)]; sL4 = S.alloc(1); sB1 = S.alloc(1)
    stX = Stream(sB0); stHS = [Stream(r) for r in sHS]; stH = [Stream(r) for r in sHH]
    req = [(ks, ('xa', ks, 0), 'x1', act_load(('xa', ks, 0), ks, stX)) for ks in range(32)]
    for kc in range(16):
        req += [(100 + kc, ('c', kc, ni), 'wt', wt_load(('c', kc, ni), 2 * kc)) for ni in range(2)]
        req += [(100 + kc, ('hs', kc, ti), 'hs', act_load(('hs', kc, ti), kc, stHS[ti])) for ti in range(2)]
    for n in range(28):
        if n < 16:
            req += [(200 + n, ('w4', n, ni), 'wt', wt_load(('w4', n, ni), 32 + 2 * n)) for ni in range(2)]
        else:
            req += [(o.get('wb_pri', 90) + 0.01 * n, ('wb', n, ni), 'wb' if n < 23 else 'wb2', wb_load(2 * (n - 16) + ni)) for ni in range(2)]
        req += [(200 + n, ('h', n, ti), 'ha' if n < 16 else 'hb', act_load(('h', n, ti), n, stH[ti])) for ti in range(2)]
    req.sort(key=lambda r: r[0])
    c.avail = set(); c.xlim = 0; c.res = 0; c.wcap = 0
    PF5 = o.get('pf5', 8)

    def nheld(name):
        return sum(1 for q in Q.map if q[0] == name)

    def nreq(name):
        return sum(1 for r in req if r[1][0] == name)

    def pick(dt, force=None):
        for r in req:
            u, key, grp, fn = r
            if force is not None:
                if key != force:
                    if key[0] == force[0] and key[2] == force[2]:
                        raise RuntimeError(('order', key, force))
                    continue
                assert grp in c.avail, key
            else:
                if grp not in c.avail or (key[0] == 'xa' and u >= c.xlim):
                    continue
                if key[0] == 'w4' and u - 200 >= c.wcap:
                    continue
                if dt < (k.gap if grp in ('wt', 'wb', 'wb2') else k.higap):
                    return None
                res = c.res + (max(0, PF5 + 1 - nheld('xa')) if nreq('xa') and key[0] != 'xa' else 0)
                if key[0] == 'hs': res -= c.res
                if key[0] != 'wb' and len(Q.free) <= res * (key[0] != 'xa'):
                    continue
            req.remove(r)
            c.iss[key] = k.t
            return fn
        return None

    def need(*keys):
        for key in keys:
            if key not in c.use: c.use[key] = k.t
            if not Q.has(key):
                c.late.append(key)
                if key[0] == 'w4':
                    while nreq('c'):
                        k.run(pick(0, force=[r[1] for r in req if r[1][0] == 'c'][0]))
                k.run(pick(0, force=key))
    c.late = []; c.iss = {}; c.use = {}
    k.src = pick
    QA0 = A.at(0, 128, 'qa0'); QA3 = A.at(192, 64, 'qa3')
    Q.add(QA3); Q.add(QA0)

    vW3r = V.alloc(6, 1, 'w3rd')
    I(f'v_bfe_u32 {vt1}, {vL}, 4, 1\nv_lshlrev_b32 {vt2}, 2, {vt1}\nv_bfe_u32 {vt0}, {vL}, 2, 2\nv_add_u32 {vt0}, {vt0}, {vt2}\nv_lshlrev_b32 {vt0}, 5, {vt0}\nv_lshl_add_u32 {vt0}, {vt1}, 8, {vt0}'
      f'\nv_and_b32 {vt1}, 1, {vL}\nv_lshl_add_u32 {vt0}, {vt1}, 4, {vt0}\nv_bfe_u32 {vt1}, {vL}, 1, 1\nv_lshl_add_u32 {vt0}, {vt1}, 3, {vt0}\nv_mul_u32_u24 {vt1}, 1792, {vH}\nv_add_u32 {vW3r[0]}, {vt0}, {vt1}\nv_xor_b32 {vW3r[1]}, 128, {vW3r[0]}')
    I(f'v_add_u32 {vW3r[2]}, {L_W3B}, {vW3r[0]}\nv_add_u32 {vW3r[3]}, {L_W3B}, {vW3r[1]}\nv_add_u32 {vW3r[4]}, {L_UP}, {vW3r[0]}\nv_add_u32 {vW3r[5]}, {L_UP}, {vW3r[1]}')
    I(f's_lshl_b32 {sB}, {sN32}, 1\ns_lshl_b32 {sA}, 0x33333333, {sB}\ns_bitcmp1_b32 {sW}, 1\ns_cselect_b32 {sM[0]}, 0, {sA}\ns_cselect_b32 {sM[1]}, {sA}, 0')
    I(f's_lshl_b32 {sB0}, {sW}, 15\ns_add_u32 {sB0}, {sB0}, {sTB}\ns_add_u32 {sB0}, {sB0}, {O_X1}')
    I(f's_lshl_b32 {sB1}, {sW}, 12\ns_add_u32 {sB1}, {sB1}, {sTB}\ns_add_u32 {sB1}, {sB1}, {O_ST3}')
    sM2 = S.alloc(2, 2)
    I(f's_lshl_b32 {sB}, {sTH}, 1\ns_lshl_b32 {sA}, 0x3333, {sB}\ns_lshl_b32 {sC}, {sW}, 4\ns_mov_b32 {sM2[0]}, {sA}\ns_mov_b32 {sM2[1]}, 0\ns_lshl_b64 {sM2}, {sM2}, {sC}')

    def act_base(dst, off, kpt, k0mul):
        for ti in range(2):
            I(f's_xor_b32 {sA}, {sT32}, {ti}\ns_lshl_b32 {sB}, {sTH}, 1\ns_add_u32 {sA}, {sA}, {sB}\ns_mul_i32 {sA}, {sA}, {kpt}\ns_mul_i32 {sB}, {sW}, {k0mul}\ns_add_u32 {sA}, {sA}, {sB}\ns_lshl_b32 {sA}, {sA}, 10\ns_add_u32 {sA}, {sA}, {sTB}\ns_add_u32 {dst[ti]}, {sA}, {off}')
    act_base(sHS, O_HS, 64, 16)
    act_base(sHH, O_H, 112, 28)
    sHSo = S.alloc(1); sHa = S.alloc(1); sHb = S.alloc(1)
    I(f's_lshl_b32 {sA}, {sW}, 6\ns_lshl_b32 {sB}, {sJ}, 2\ns_add_u32 {sA}, {sA}, {sB}\ns_lshl_b32 {sA}, {sA}, 10\ns_add_u32 {sA}, {sA}, {sTB}\ns_add_u32 {sHSo}, {sA}, {O_HS}')
    I(f's_mul_i32 {sA}, {sW}, 112\ns_lshr_b32 {sB}, {sJ}, 2\ns_mul_i32 {sB}, {sB}, 28\ns_add_u32 {sA}, {sA}, {sB}\ns_lshl_b32 {sA}, {sA}, 10\ns_add_u32 {sA}, {sA}, {sTB}\ns_add_u32 {sA}, {sA}, {O_H}'
      f'\ns_and_b32 {sB}, {sJ}, 3\ns_lshl_b32 {sC}, {sB}, 12\ns_add_u32 {sHa}, {sA}, {sC}\ns_mul_i32 {sC}, {sB}, 3072\ns_add_u32 {sHb}, {sA}, {sC}\ns_add_u32 {sHb}, {sHb}, 16384\ns_lshl_b32 {sL4}, {sW}, 11')
    vREDw = V.alloc(3, 1, 'redw'); vREDr = V.alloc(1, name='redr')
    for i in range(1, 4):
        I(f's_xor_b32 {sA}, {sW}, {i}\ns_mul_i32 {sA}, {sA}, 12288\ns_add_u32 {sA}, {sA}, {L_RED + (i-1)*4096}\nv_add_u32 {vREDw[i-1]}, {sA}, {vL16}')
    I(f'v_add_u32 {vREDr}, {sSTG}, {vL16}')
    k.drain_bg()
    V.release(vW3o); S.release(sW3s)
    k.emit_all(touch('s', sHSo, 32))

    WF = V.at(192, 24, 'wf5'); ONES = V.at(216, 4, 'ones'); CS3 = V.at(64, 28, 'cs3')
    EG = V.at(220, 32, 'eg'); vEGo = V.alloc(1); SP = V.at(160, 16, 'sp')
    vcs = V.alloc(3, 1)
    for i in range(4):
        I(f'v_mov_b32 {ONES[i]}, 0x3f803f80')
    I(f'v_bfe_u32 {vt0}, {vL}, 2, 2\nv_lshlrev_b32 {vt0}, 5, {vt0}\nv_and_b32 {vt1}, 3, {vL}\nv_lshl_add_u32 {vt0}, {vt1}, 3, {vt0}\nv_lshrrev_b32 {vt1}, 4, {vL}\nv_mul_u32_u24 {vt1}, 1792, {vt1}\nv_add_u32 {vt0}, {vt0}, {vt1}')
    I(f'v_add_u32 {vcs[0]}, {sW3d}, {vt0}\nv_add_u32 {vcs[2]}, {sSTG}, {vt0}\nv_add_u32 {vcs[1]}, {L_W3B}, {vcs[0]}')
    S.release(sW3d)
    I(f's_sub_u32 {sA}, {sT}, 1\nv_sub_u32 {vt0}, {sA}, {vH}\nv_lshlrev_b32 {vt0}, 13, {vt0}\nv_lshl_add_u32 {vEGo}, {vL31}, 4, {vt0}')
    eg_loads = [f'v_subrev_u32 {vt3}, {i*16384}, {vEGo}\nbuffer_load_dwordx4 {EG.t(4*i,4)}, {vt3}, {WS}, {sSC} offen sc1' for i in range(8)]

    def x1_go():
        lazy_check(vFV, sFL, 512, sM)
        stamp('x1_seen')
        c.avail.add('x1')
        k.hi.extend([pick(0, force=('xa', ks, 0)) for ks in range(PF5)])
        k.hi.extend(f'buffer_load_dwordx4 {SP.t(4*i_,4)}, {vL16}, {WS}, {sB1} offen offset:{i_*1024} sc1' for i_ in range(4))

    def wt_go(k_=None):
        retry([wtf_load], [f'v_cmp_ne_u32 vcc, {vWTF[0]}, {vTAGV}'], 'wtf')
        stamp('wt_seen')
        c.avail.add('wt'); c.wcap = o.get('nw4', 7); c.res = o.get('hsres', 8)
    wt_go()
    for kc in range(o.get('nc0', 6)):
        for ni in range(2):
            k.run(pick(0, force=('c', kc, ni)))
    if o.get('x1c', 0) < 0:
        x1_go()
    cj = [(t, s) for s in range(4) for t in range(7)]
    k.region()
    for i in range(len(cj) + 3):
        if i == o.get('x1c', 0):
            x1_go()
        if i < len(cj):
            t, s = cj[i]; b = (i % 6) * 4
            if i == 0 or i == 21:
                k.drain_hi()
                k.wait_vm_tag('w3b' if i == 21 else 'w3')
            for rd in range(2):
                I(f'ds_read_b64_tr_b16 {WF.t(b+2*rd,2)}, {vcs[[0, 0, 1, 2][s]]} offset:{(4*7168 if s == 1 else 0) + t*256 + rd*128}')
        if i >= 3:
            t, s = cj[i-3]; b = ((i-3) % 6) * 4
            k.anchor(f'v_mfma_f32_16x16x32_bf16 {CS3.t(4*t,4)}, {WF.t(b,4)}, {ONES}, {CS3.t(4*t,4) if s else 0}')
    V.release(vcs, ONES)
    I(f's_lshl_b32 {sA}, {sW}, 9\ns_add_u32 {sA}, {sA}, {L_CS3}\nv_lshrrev_b32 {vt0}, 4, {vL}\nv_lshl_add_u32 {vt1}, {vt0}, 4, {sA}')
    I('s_mov_b32 exec_lo, 0x00010001\ns_mov_b32 exec_hi, 0x00010001')
    for t in range(7):
        I(f'ds_write_b128 {vt1}, {CS3.t(4*t,4)} offset:{t*64}')
    I('s_mov_b64 exec, -1')
    V.release(CS3)
    k.drain_hi()
    k.barrier()
    stamp('g5_go')
    S.release(sB1)

    A5 = [V.at(64 + 16 * p, 16, f'acc5_{p}') for p in range(4)]
    vEX = V.alloc(1); C0 = V.alloc(2, 2); C1 = V.alloc(2, 2); K3 = V.alloc(4, 2, 'k3')
    f5 = [At(o.get('eg_at', 2))] + eg_loads
    tH = touch('H', sHa, 32) + touch('H', sHb, 24)
    st5 = []
    for d, s_ in ((0, 4), (8, 12), (0, 8)):
        st5 += [f'v_add_f32 {SP[d+i]}, {SP[d+i]}, {SP[s_+i]}' for i in range(4)]
    st5 += [f'v_add_f32 {SP[0]}, {SP[0]}, {SP[2]}', f'v_add_f32 {SP[1]}, {SP[1]}, {SP[3]}']
    st5 += xswap(SP.sub(0, 2), SP.sub(2, 2), 32)
    st5 += finish_stats(SP.sub(0, 2), K3[2], SP[4], None, SP.sub(2, 2), SD=K3[3])
    st5 += [f'v_mul_f32 {K3[0]}, {hx(GC0)}, {SP[4]}', f'v_mul_f32 {SP[5]}, {SP[4]}, {SP[4]}', f'v_mul_f32 {SP[4]}, {hx(GC1)}, {SP[4]}', f'v_mul_f32 {K3[1]}, {SP[4]}, {SP[5]}']
    f5 += st5
    ct = SP.sub(8, 8)
    f5 += [f'v_lshlrev_b32 {vt0}, 3, {vL}', f'v_add_u32 {vt1}, {L_CS3}, {vt0}']
    f5 += [f'ds_read_b64 {ct.t(2*w,2)}, {vt1} offset:{w*512}' for w in range(4)]
    f5 += [f'v_add_u32 {vt1}, {L_CS3T}, {vt0}']
    f5 += [f'v_add_f32 {ct[0]}, {ct[0]}, {ct[2]}', f'v_add_f32 {ct[1]}, {ct[1]}, {ct[3]}', f'v_add_f32 {ct[4]}, {ct[4]}, {ct[6]}', f'v_add_f32 {ct[5]}, {ct[5]}, {ct[7]}', f'v_add_f32 {ct[0]}, {ct[0]}, {ct[4]}', f'v_add_f32 {ct[1]}, {ct[1]}, {ct[5]}']
    f5 += [f'ds_write_b64 {vt1}, {ct.t(0,2)}']
    egt = [f'v_mov_b32 {vt0}, 0']
    for i in range(8):
        egt.append(f'v_cmp_le_i32 vcc, {i*16384}, {vEGo}\nv_xor_b32 {vt2}, {EG[4*i+1]}, {EG[4*i+3]}\nv_cndmask_b32 {vEX}, 0, {vTAGV}, vcc\nv_xor_b32 {vt1}, {EG[4*i+1]}, {vEX}\nv_or3_b32 {vt0}, {vt0}, {vt1}, {vt2}')
    egt.append(f'v_cmp_ne_u32 vcc, 0, {vt0}')

    def eg_fin(k_):
        lp = 'L_egslow'; ld = 'L_egok'
        I(f'{egt[-1]}\ns_mov_b32 {sBG}, 0\ns_cbranch_vccnz {lp}')
        k.label(ld)
        sub = Asm()
        for t in eg_loads:
            sub.I(t)
        sub.waitcnt(vm=0)
        sub.emit_all(egt)
        sub.I(f's_add_u32 {sBG}, {sBG}, 1\ns_cmp_gt_u32 {sBG}, {SPIN}\ns_cbranch_scc1 {ld}\ns_cbranch_vccnz {lp}\ns_branch {ld}')
        k.tail += [lp + ':'] + sub.lines
        stamp('eg_in')
    f5 += [At(o.get('eg_chk', 24))] + egt[:-1] + [Item(eg_fin, 12)]
    cur, oth = V2(EG[28], EG[30]), C1
    for i in range(6, -1, -1):
        f5 += [f'v_fma_f32 {oth[0]}, {L256[0]}, {cur[0]}, {EG[4*i]}', f'v_fma_f32 {oth[1]}, {L256[0]}, {cur[1]}, {EG[4*i+2]}',
               f'v_fma_f32 {oth[0]}, -{L256[1]}, {cur[1]}, {oth[0]}', f'v_fma_f32 {oth[1]}, {L256[1]}, {cur[0]}, {oth[1]}']
        cur, oth = oth, (C0 if i == 6 else cur)
    f5 += [f'v_mov_b32 {oth[0]}, {cur[0]}', f'v_mov_b32 {oth[1]}, {cur[1]}', f'v_permlane32_swap_b32 {oth[0]}, {cur[0]}', f'v_permlane32_swap_b32 {oth[1]}, {cur[1]}',
           f'v_fmac_f32 {oth[0]}, {L128[0]}, {cur[0]}', f'v_fmac_f32 {oth[1]}, {L128[0]}, {cur[1]}', f'v_fma_f32 {oth[0]}, -{L128[1]}, {cur[1]}, {oth[0]}', f'v_fmac_f32 {oth[1]}, {L128[1]}, {cur[0]}',
           f'v_fmac_f32 {CIN[0]}, {LOWN[0]}, {oth[0]}', f'v_fmac_f32 {CIN[1]}, {LOWN[0]}, {oth[1]}', f'v_fma_f32 {CIN[0]}, -{LOWN[1]}, {oth[1]}, {CIN[0]}', f'v_fmac_f32 {CIN[1]}, {LOWN[1]}, {oth[0]}']
    g = CIN; gt = C0
    for r in range(16):
        f5 += [f'v_fma_f32 {gt[0]}, {LAM[0]}, {g[0]}, {ARE[r]}', f'v_fma_f32 {gt[1]}, {LAM[0]}, {g[1]}, {AIM[r]}',
               f'v_fma_f32 {ARE[r]}, -{LAM[1]}, {g[1]}, {gt[0]}', f'v_fma_f32 {AIM[r]}, {LAM[1]}, {g[0]}, {gt[1]}']
        g = V2(ARE[r], AIM[r])
    HR = EG.sub(0, 16); HI = EG.sub(16, 16); PR = ARE.sub(0, 8); PI = ARE.sub(8, 8)
    for r in range(16):
        f5 += [f'v_mul_f32 {HR[r]}, {CF[0]}, {ARE[r]}', f'v_mul_f32 {HI[r]}, -{CF[0]}, {AIM[r]}']
    for r in range(16):
        f5 += [f'v_fma_f32 {HR[r]}, -{CF[1]}, {AIM[r]}, {HR[r]}', f'v_fma_f32 {HI[r]}, -{CF[1]}, {ARE[r]}, {HI[r]}']
    for i in range(8):
        f5 += [f'v_cvt_pk_bf16_f32 {PR[i]}, {HR[2*i]}, {HR[2*i+1]}', f'v_cvt_pk_bf16_f32 {PI[i]}, {HI[2*i]}, {HI[2*i+1]}']
    TRS = 80
    f5 += [f'v_mul_u32_u24 {vt0}, {TRS}, {vL31}', f'v_lshl_add_u32 {vt0}, {vH}, 5, {vt0}', f'v_add_u32 {vt0}, {sSTG}, {vt0}',
           f'ds_write_b128 {vt0}, {PR.t(0,4)} offset:7168', f'ds_write_b128 {vt0}, {PR.t(4,4)} offset:{7168+16}', f'ds_write_b128 {vt0}, {PI.t(0,4)} offset:{7168+32*TRS}', f'ds_write_b128 {vt0}, {PI.t(4,4)} offset:{7168+32*TRS+16}',
           f'v_bfe_u32 {vt1}, {vL}, 2, 2', f'v_lshl_add_u32 {vt1}, {vH}, 3, {vt1}', f'v_mul_u32_u24 {vt1}, {TRS}, {vt1}', f'v_and_b32 {vt0}, 1, {vL}', f'v_lshl_add_u32 {vt1}, {vt0}, 5, {vt1}', f'v_bfe_u32 {vt0}, {vL}, 4, 1',
           f'v_lshl_add_u32 {vt1}, {vt0}, 4, {vt1}', f'v_bfe_u32 {vt0}, {vL}, 1, 1', f'v_lshl_add_u32 {vt1}, {vt0}, 3, {vt1}', f'v_add_u32 {vt1}, {sSTG}, {vt1}']
    HF = EG.sub(0, 16)
    f5 += [f'ds_read_b64_tr_b16 {HF.t(4*f+2*rd,2)}, {vt1} offset:{7168 + (16*f + 4*rd)*TRS}' for f in range(4) for rd in range(2)]
    f5 += [f'v_lshlrev_b32 {vt3}, 5, {vH}', f'v_add_u32 {vt3}, {L_CS3T}, {vt3}']

    def hs_store(k_):
        stores([f'buffer_store_dwordx4 {HF.t(4*f,4)}, {vL16}, {WS}, {sHSo} offen offset:{f*1024}' for f in range(4)], tag='sths')
        stamp('hs_st')
        n0 = k.nanch
        k.fill.extend([At(n0 + o.get('pub3', 16)), Item(lambda k_: (publish(3, 'sths'), stamp('hs_pub')), 24), At(n0 + o.get('hsf', 30)), flag_load(vFV, sFL, 768), At(n0 + o.get('hsc', 46)), Item(hs_go, 12)])

    def hs_go(k_):
        lazy_check(vFV, sFL, 768, sM2)
        stamp('hs_seen')
        c.avail.add('hs'); c.wcap = 16; c.res = 0
    f5 += [Item(hs_store, 24)]
    k.fill.extend(f5)

    def w3read(i):
        ks, p = i // 4, i % 4
        g_ = ks // 2
        base = 0 if g_ < 8 else (2 if g_ < 12 else 4)
        off = (g_ * 7168 if g_ < 8 else ((g_ - 8) * 7168 if g_ < 12 else (g_ - 12) * STGW)) + (ks % 2) * 3584 + p * 512
        b = (i % NB) * 4
        return [f'ds_read_b64_tr_b16 {WF.t(b+2*rd,2)}, {vW3r[base+rd]} offset:{off}' for rd in range(2)]
    g5 = []
    for i in range(AH):
        g5 += w3read(i)
    for i in range(128):
        ks, p = i // 4, i % 4
        if i + AH < 128:
            g5 += w3read(i + AH)
        if p == 0 and ks + PF5 < 32:
            g5.append(lambda k_, ks=ks: setattr(c, 'xlim', ks + PF5 + 1))

        def f(k_, i=i, ks=ks, p=p):
            need(('xa', ks, 0))
            I(f'v_mfma_f32_32x32x16_bf16 {A5[p]}, {WF.t((i % NB)*4,4)}, {Q[("xa", ks, 0)]}, {A5[p] if ks else 0}')
            if p == 3:
                Q.give(('xa', ks, 0))
        g5.append(Anchor(f))
        if i in (31, 63, 95):
            g5 += fstamp(f'g5_{i+1}')
        if i == o.get('tH_at', 40):
            g5 += tH
        if i in (64, 96):
            g5.append(lambda k_, i=i: (k._emit('s_barrier'), c.avail.add('wb' if i == 64 else 'wb2')))
    k.region()
    k.slack = o.get('slack5', 12); k.gap = o.get('gap5', 44); k.higap = o.get('higap5', 40)
    k.emit_all(g5)
    k.slack = 0
    while any(isinstance(t, Item) and t.fn is hs_store for t in k.fill):
        t = k.fill.popleft()
        if not isinstance(t, At):
            k.run(t); k.after()
    left = [t for t in k.fill if not isinstance(t, At)]
    k.fill.clear()
    k.barrier()
    stamp('g5_mfma')
    k.gap = o.get('gap6', 48); k.higap = o.get('higap6', 40)
    V.release(C0, C1, CIN, LAM, CF, L128, L256, LOWN, vEX, vEGo, vW3r, SP, EG, ARE, AIM, vWTF)
    S.release(sSC, sSTG, sHSo)

    CSX = [V.at(160, 16, 'csx0'), V.at(220, 16, 'csx1')]; GT = V.at(236, 16, 'gt5'); OP = V.at(176, 8, 'hout')

    def cs_read(p):
        return [f'ds_read_b128 {CSX[p%2].t(4*q,4)}, {vt3} offset:{p*128 + (q>>1)*64 + (q&1)*16}' for q in range(4 if p < 3 else 2)]
    k.emit_all(cs_read(0) + cs_read(1))
    for p in range(2):
        L = gelu_pk(A5[p], CSX[p], K3, GT, [OP[i] for i in range(8)])
        step = len(L) // (len(left) + 1) if left else 0
        for n, t in enumerate(L):
            I(t)
            if left and n % 24 == 23:
                k.run(left.pop(0))
        k.emit_all(cs_read(p + 2))
        stores([f'buffer_store_dwordx4 {OP.t(4*u,4)}, {vL16}, {WS}, {sHa} offen offset:{p*2048 + u*1024}' for u in range(2)], tag='sth')
    for t in left:
        k.run(t)
    stamp('ha_st')
    V.release(A5[0], A5[1])
    S.release(sHa)

    def gemm64(ACC_, wname, aname, klist, init0=False, n0=0):
        L = []
        for n in klist:
            for ti in range(2):
                for ni in range(2):
                    def f(k_, ti=ti, ni=ni, n=n):
                        lds = wname == 'w4' and n >= 16
                        need((aname, n, ti))
                        if not lds:
                            need((wname, n, ni))
                        acc = ACC_[2*ti+ni]
                        wq = WF.t(((2*n + ni) % NB)*4, 4) if lds else Q[(wname, n, ni)]
                        I(f'v_mfma_f32_32x32x16_bf16 {acc}, {wq}, {Q[(aname, n, ti)]}, {acc if (n or (init0 and ti == 0 and ni == 0)) else 0}')
                        if ni == 1:
                            Q.give((aname, n, ti))
                        if ti == 1 and not lds:
                            Q.give((wname, n, ni))
                    L.append(Anchor(f))
        return L
    ACC2 = [V.at(64, 16), V.at(80, 16), V.at(128, 16), V.at(144, 16)]
    DS = V.alloc(8, 4, 'dskip')
    OP2 = V.at(184, 8, 'hout2')
    eb = [At(o.get('pub4', 6)), Item(lambda k_: (publish(4, 'sth'), stamp('ha_pub')), 24)]
    eb += gelu_1(A5[2], CSX[0], K3, GT, [OP2[i] for i in range(8)])
    eb += [Item(lambda k_: stores([f'buffer_store_dwordx4 {OP2.t(4*u,4)}, {vL16}, {WS}, {sHb} offen offset:{u*1024}' for u in range(2)], tag='sth'), 16)]
    eb += gelu_1(A5[3].sub(0, 8), CSX[1], K3, GT, [OP[i] for i in range(4)])

    def hb_store(k_):
        stores([f'buffer_store_dwordx4 {OP.t(0,4)}, {vL16}, {WS}, {sHb} offen offset:2048'], tag='sth')
        stamp('hb_st')
        V.release(GT, K3, *CSX, A5[2], A5[3])
        Q.add(V.at(220, 32, 'qv2'))
        n0 = k.nanch
        k.fill.extend([At(n0 + o.get('pub5', 12)), Item(lambda k_: (publish(5, 'sth'), stamp('hb_pub')), 24)])

    def ha_go(k_):
        lazy_check(vFV, sFL, 1024, sM2)
        stamp('ha_seen')
        c.avail.add('ha')
    eb += [Item(hb_store, 12)]
    eb += [f's_lshl_b32 {sB}, {sCG}, 7\ns_lshl_b32 {sA}, {sN32}, 6\ns_add_u32 {sB}, {sB}, {sA}\nv_lshlrev_b32 {vt1}, 4, {vH}'
           f'\nbuffer_load_dwordx4 {DS.t(0,4)}, {vt1}, {SRD["DSK"]}, {sB} offen\nbuffer_load_dwordx4 {DS.t(4,4)}, {vt1}, {SRD["DSK"]}, {sB} offen offset:32']
    g2 = []
    for i, t in enumerate(gemm64(ACC2, 'c', 'hs', list(range(16)))):
        if i == o.get('to_at', 2):
            g2 += touch('o', 0, 32, SRD['OUT'], f'v_lshlrev_b32 {vTJ[1]}, 1, {vTo}')
        if i == o.get('haf', 24):
            g2.append(flag_load(vFV, sFL, 1024))
        if i == o.get('hac', 40):
            g2.append(ha_go)
        g2.append(t)
        if i in (15, 31, 47):
            g2 += fstamp(f'g2_{i+1}')
    k.fill.extend(eb)
    k.region()
    k.emit_all(g2)
    k.drain_fill()
    stamp('g2_mfma')
    V.release(OP, OP2)
    S.release(*sHS, sHb)

    ACC6 = [V.at(176, 16), V.at(96, 16), V.at(112, 16), V.at(160, 16)]
    k.emit_all(unpack(ACC6[0], X1P))
    V.release(X1P)

    def reduce4(ACC_):
        L = []
        for i in range(1, 4):
            L += [f'ds_write_b128 {vREDw[i-1]}, {ACC_[i].t(4*q,4)} offset:{q*1024}' for q in range(4)]
        L += ['@barrier']
        for i in range(3):
            L += [f'ds_read_b128 {ACC_[i+1].t(4*q,4)}, {vREDr} offset:{i*4096+q*1024}' for q in range(4)]
        return L
    SS = ACC2[0]
    r2 = reduce4(ACC2)
    for i in range(3):
        r2 += [f'v_add_f32 {SS[q]}, {SS[q]}, {ACC2[i+1][q]}' for q in range(16)]
    r2 += ['@barrier']
    f1 = ACC2[1]; f2 = ACC2[2]
    r2 += unpack(f1, XNT) + unpack(f2, DS)
    r2 += [f'v_fmac_f32 {SS[i]}, {f1[i]}, {f2[i]}' for i in range(16)]
    XT = DS

    def r2_done(k_):
        I(f'buffer_load_dwordx4 {XT.t(0,4)}, {vTo}, {SRD["X"]}, 0 offen\nbuffer_load_dwordx4 {XT.t(4,4)}, {vTo}, {SRD["X"]}, 0 offen offset:32')
        stamp('g2')
        for a in ACC2[1:]:
            Q.add(a)
    r2 += [Item(r2_done, 8)]

    def hb_go(k_):
        lazy_check(vFV, sFL, 1280, sM2)
        stamp('hb_seen')
        c.avail.add('hb')
    vLW = V.alloc(2, 1)

    def wbread(n):
        return ([f'v_add_u32 {vLW[ni]}, 0x10000, {vLW[ni]}' for ni in range(2) if n == 24]
                + [f'ds_read_b128 {WF.t(((2*n + ni) % NB)*4, 4)}, {vLW[ni]} offset:{((n-16)*8192) & 0xffff}' for ni in range(2)])

    def wb_wait(k_):
        while nreq('wb'):
            c.late.append('wb')
            k.run(pick(0, force=[r[1] for r in req if r[1][0] == 'wb'][0]))
        k.wait_vm_tag('wb')
    g6 = [flag_load(vFV, sFL, 1280)]
    for i, t in enumerate(gemm64(ACC6, 'w4', 'h', list(range(28)), init0=True)):
        n = i // 4
        if i == o.get('hbc', 12):
            g6.append(hb_go)
        if i == 14 * 4:
            g6.append(wb_wait)
        if i % 4 == 0 and 16 <= n + 2 < 28:
            g6 += wbread(n + 2)
        g6.append(t)
        if i in (31, 63, 95):
            g6 += fstamp(f'g6_{i+1}')
    k.fill.extend([f'v_add_u32 {vLW[0]}, {sL4}, {vLN[0]}', f'v_add_u32 {vLW[1]}, {sL4}, {vLN[1]}'] + r2)
    k.region()
    k.emit_all(g6)
    k.drain_fill()
    stamp('g6_mfma')
    k.emit_all(reduce4(ACC6))
    a0 = ACC6[0]; f1 = ACC6[1]; e_ = ACC6[2]; NL = V.alloc(2, 2)
    I(f'v_mov_b32 {NL[0]}, {hx(-LOG2E)}\nv_mov_b32 {NL[1]}, 1.0\nv_lshlrev_b32 {vt0}, 1, {vTo}')
    for i in range(3):
        for q in range(8):
            I(f'v_pk_add_f32 {a0.t(2*q,2)}, {a0.t(2*q,2)}, {ACC6[i+1].t(2*q,2)}')
    for i in range(8): I(f'v_pk_mul_f32 {e_.t(2*i,2)}, {a0.t(2*i,2)}, {NL} op_sel_hi:[1,0]')
    for i in range(16): I(f'v_exp_f32 {e_[i]}, {e_[i]}')
    k.emit_all(unpack(f1, XT))
    for i in range(8): I(f'v_pk_add_f32 {e_.t(2*i,2)}, {e_.t(2*i,2)}, {NL} op_sel:[0,1] op_sel_hi:[1,1]')
    for i in range(16): I(f'v_rcp_f32 {e_[i]}, {e_[i]}')
    for i in range(8): I(f'v_pk_mul_f32 {a0.t(2*i,2)}, {a0.t(2*i,2)}, {SS.t(2*i,2)}')
    for q in range(4):
        for i in (2 * q, 2 * q + 1):
            I(f'v_pk_fma_f32 {a0.t(2*i,2)}, {a0.t(2*i,2)}, {e_.t(2*i,2)}, {f1.t(2*i,2)}')
        I(f'buffer_store_dwordx4 {a0.t(4*q,4)}, {vt0}, {SRD["OUT"]}, 0 offen offset:{(q>>1)*64 + (q&1)*16}')
    stamp('end')
    stamp('rt1')
    if o['stamps']:
        stamp_flush()
        I(f's_lshl_b32 {sA}, s2, 2\ns_add_u32 {sA}, {sA}, {sW}\ns_lshl_b32 {sA}, {sA}, 8\ns_add_u32 {sA}, {sA}, {O_DBG}')
        I(f'buffer_store_dword {c.vSTP}, {vFLG}, {WS}, {sA} offen')
    I(f's_lshl_b32 {sA}, s2, 2\ns_add_u32 {sA}, {sA}, {sW}\ns_cmp_lg_u32 {sA}, 1020\ns_cbranch_scc1 L_end\ns_mov_b32 {sA}, {O_EPOCH}\ns_mov_b64 exec, 1')
    I(f'buffer_store_dword {vTAGV}, {vZERO}, {WS}, {sA} offen sc0 sc1')
    k.label('L_end')
    k.raw('  s_endpgm')
    assert not k.bg and not k.hi and not k.fill and not req
    ntset = set(o.get('nt', []))
    def ntfix(l):
        t = l.strip()
        if not t.startswith('buffer_'): return l
        if '\n' in t: return '\n'.join(ntfix(x) for x in l.split('\n'))
        for nm_ in ntset:
            if nm_ in SRD and f' {SRD[nm_]},' in t and ' nt' not in t:
                return (l[:-4] + ' nt lds') if l.endswith(' lds') else l + ' nt'
            if nm_ == 'WT' and t.startswith('buffer_load') and (f', {sWT} offen' in t or f', {sWB} offen' in t) and f' {WS},' in t and ' sc1' not in t and c.wt0 <= 0:
                return (l[:-4] + ' nt lds') if l.endswith(' lds') else l + ' nt'
        return l
    c.wt0 = 0
    i_wt = [i for i, l in enumerate(k.lines) if l.startswith('; WTSTART')][0]
    k.lines = [ntfix(l) if ('WT' not in ntset or True) and (i > i_wt or f' {WS},' not in l) else l for i, l in enumerate(k.lines)]
    print('late', c.late)
    if o.get('lead'):
        for nm_ in ('xa', 'c', 'hs', 'w4', 'h', 'wb'):
            print(nm_, ' '.join(f"{kk[1]}.{kk[2]}:{c.iss[kk]}+{c.use.get(kk, 0) - c.iss[kk]}" for kk in sorted(c.iss) if kk[0] == nm_))
        print('marks', c.marks)
    return k.lines + k.tail, k


from gen import layout

if __name__ == '__main__':
    import json
    opts = json.loads(sys.argv[2]) if len(sys.argv) > 2 else {}
    body, k = gen(opts)
    txt, size = layout(body, k)
    open(sys.argv[1], 'w').write(txt)
    print('code bytes', size, 'vpeak', k.V.peak, 'apeak', k.A.peak, 'speak', k.S.peak, k.stat, 'est', k.t)
    open(sys.argv[1] + '.names', 'w').write(','.join(k.stampnames))
```
